```python
import torch

def _softmax(x, axis=-1):
    return torch.softmax(x, dim=axis)
def _gelu(x):
    return torch.nn.functional.gelu(x, approximate="tanh")
def _silu(x):
    return torch.nn.functional.silu(x)
def _sigmoid(x):
    return torch.sigmoid(x)
def _layernorm(x, axis=-1, eps=1e-5):
    m = x.mean(dim=axis, keepdim=True)
    v = x.var(dim=axis, keepdim=True, unbiased=False)
    return (x - m) / torch.sqrt(v + eps)
def _scatter_add(tgt, idx, src, axis=0):
    return tgt.clone().index_add_(axis, idx, src)
def _segment_sum(src, seg, n):
    out = torch.zeros((n,) + src.shape[1:], dtype=src.dtype)
    return out.index_add_(0, seg, src)
def _pad(x, pw):
    flat = tuple(v for pair in reversed(pw) for v in pair)
    return torch.nn.functional.pad(x, flat)

kernel_name = 'standalone__mha_block_cached__near_ridge'

def setup_inputs():

    _w = (lambda a: (lambda t: t.to(torch.bfloat16) if t.is_floating_point() else t)(torch.as_tensor(a)))
    B, Sq, D = 8, 208, 512
    H, Sk, Dh = 32, 512, 128
    return {
        "x": _w((lambda *s: torch.randn(*s, dtype=torch.bfloat16) * 0.8)(B, Sq, D)),
        "k_cache": _w((lambda *s: torch.randn(*s, dtype=torch.bfloat16) * 0.8)(B, H, Sk, Dh)),
        "v_cache": _w((lambda *s: torch.randn(*s, dtype=torch.bfloat16) * 0.05)(B, H, Sk, Dh)),
        "wq": _w((lambda *s: torch.randn(*s, dtype=torch.bfloat16) * 0.8)(D, H * Dh) * (D ** -0.5)),
        "wo": _w((lambda *s: torch.randn(*s, dtype=torch.bfloat16) * 0.05)(H * Dh, D) * ((H * Dh) ** -0.5)),
    }

def reference(x, k_cache, v_cache, wq, wo):
    B, Sq, D = x.shape
    H, Dh = 32, 128
    q = (lambda x, *d: x.permute(*d))((x @ wq).reshape(B, Sq, H, Dh), 0, 2, 1, 3)
    scores = torch.einsum("bhqd,bhkd->bhqk", q, k_cache) * (Dh ** -0.5)
    p = _softmax(scores, axis=-1)
    o = torch.einsum("bhqk,bhkd->bhqd", p, v_cache)
    return (lambda x, *d: x.permute(*d))(o, 0, 2, 1, 3).reshape(B, Sq, H * Dh) @ wo
```

```python
import re

class Reg:
    __slots__ = ("k", "i", "n")
    def __init__(self, k, i, n=1):
        self.k, self.i, self.n = k, i, n
    def __str__(self):
        if self.k in ("vcc", "exec", "m0", "scc"):
            return self.k
        return f"{self.k}{self.i}" if self.n == 1 else f"{self.k}[{self.i}:{self.i+self.n-1}]"
    def units(self):
        if self.k in ("vcc", "exec", "m0", "scc"):
            return {(self.k, 0)}
        return {(self.k, self.i + j) for j in range(self.n)}
    def sub(self, off, n=1):
        assert off + n <= self.n, (str(self), off, n)
        return Reg(self.k, self.i + off, n)
    def __getitem__(self, j):
        return self.sub(j, 1)

def V(i, n=1): return Reg("v", i, n)
def A(i, n=1): return Reg("a", i, n)
def S(i, n=1): return Reg("s", i, n)
VCC = Reg("vcc", 0); EXEC = Reg("exec", 0); M0 = Reg("m0", 0)

TRANS = ("v_exp_f32", "v_log_f32", "v_rcp_f32", "v_rsq_f32", "v_sqrt_f32", "v_sin_f32", "v_cos_f32")

class Ins:
    def __init__(self, op, ops=(), mods="", raw=None, comment=None):
        self.op, self.ops, self.mods, self.raw, self.comment = op, list(ops), mods, raw, comment
        self.rd, self.wr = set(), set()
        self.cls = None
        self.pre_wait = {}
        self.pre_nop = 0
        self.classify()
    def regs(self, lst):
        s = set()
        for o in lst:
            if isinstance(o, Reg):
                s |= o.units()
        return s
    def classify(self):
        op, ops = self.op, self.ops
        if self.raw is not None:
            self.cls = "raw"; return
        if op.startswith("v_mfma"):
            self.cls = "mfma"; self.wr = self.regs(ops[:1]); self.rd = self.regs(ops[1:])
            self.rdC = self.regs(ops[3:4]); self.rdAB = self.regs(ops[1:3])
        elif op in ("v_swap_b32", "v_permlane32_swap_b32", "v_permlane16_swap_b32"):
            self.cls = "valu"; self.wr = self.regs(ops); self.rd = self.regs(ops)
        elif op.startswith("v_cmp"):
            self.cls = "valu"; self.wr = self.regs(ops[:1]); self.rd = self.regs(ops[1:])
        elif op in ("v_readfirstlane_b32", "v_readlane_b32"):
            self.cls = "valu"; self.wr = self.regs(ops[:1]); self.rd = self.regs(ops[1:])
        elif op.startswith("v_"):
            self.cls = "valu"; self.wr = self.regs(ops[:1]); self.rd = self.regs(ops[1:])
            if op.startswith("v_fmac") or op.startswith("v_dot2c"):
                self.rd |= self.wr
            if op == "v_cndmask_b32" and len(ops) == 3:
                self.rd |= VCC.units()
        elif op.startswith("ds_read") or op.startswith("ds_bpermute") or op.startswith("ds_swizzle") or "_rtn_" in op:
            self.cls = "ldsrd"; self.wr = self.regs(ops[:1]); self.rd = self.regs(ops[1:])
        elif op.startswith("ds_write") or op.startswith("ds_add"):
            self.cls = "ldswr"; self.rd = self.regs(ops)
        elif op.startswith("buffer_load") and "lds" in self.mods.split():
            self.cls = "dma"; self.rd = self.regs(ops) | M0.units()
        elif op.startswith("buffer_load") or op.startswith("global_load"):
            self.cls = "vmld"; self.wr = self.regs(ops[:1]); self.rd = self.regs(ops[1:])
        elif op.startswith("buffer_store") or op.startswith("global_store"):
            self.cls = "vmst"; self.rd = self.regs(ops)
            self.wide = op.endswith("x4") or op.endswith("x3")
            self.data = self.regs(ops[:1]) if op.startswith("buffer") else self.regs(ops[1:2])
        elif op.startswith("buffer_atomic") or op.startswith("global_atomic"):
            self.cls = "vmst"; self.rd = self.regs(ops); self.wide = False; self.data = set()
            if "sc0" in self.mods.split():
                self.cls = "vmld"; self.wr = self.regs(ops[:1])
        elif op in ("buffer_wbl2", "buffer_inv"):
            self.cls = "vmst"; self.wide = False; self.data = set()
        elif op.startswith("s_load") or op.startswith("s_memtime") or op.startswith("s_memrealtime"):
            self.cls = "smem"; self.wr = self.regs(ops[:1]); self.rd = self.regs(ops[1:])
        elif op == "s_waitcnt":
            self.cls = "wait"
        elif op == "s_nop":
            self.cls = "nop"
        elif op in ("s_barrier", "s_endpgm", "s_setprio", "s_sleep"):
            self.cls = "salu"
        elif op.startswith("s_cbranch") or op == "s_branch":
            self.cls = "branch"
            if "vcc" in op: self.rd = VCC.units()
        elif op.startswith("s_cmp") or op.startswith("s_bitcmp"):
            self.cls = "salu"; self.rd = self.regs(ops)
        elif op.startswith("s_"):
            self.cls = "salu"; self.wr = self.regs(ops[:1]); self.rd = self.regs(ops[1:])
        else:
            raise ValueError("unknown op " + op)
    def text(self):
        if self.raw is not None:
            return self.raw
        t = self.op
        if self.ops:
            t += " " + ", ".join(fmt(o) for o in self.ops)
        if self.mods:
            t += " " + self.mods
        if self.comment:
            t += "    ; " + self.comment
        return "    " + t
    def waitvals(self):
        d = {}
        for m in re.finditer(r"(vmcnt|lgkmcnt)\((\d+)\)", self.mods):
            d[m.group(1)] = int(m.group(2))
        return d
    def states(self):
        if self.cls == "nop": return int(self.ops[0]) + 1
        if self.cls == "raw": return 0
        return 1

def fmt(o):
    if isinstance(o, Reg): return str(o)
    if isinstance(o, int):
        return str(o) if -16 <= o <= 64 else hex(o & 0xffffffff)
    return str(o)

def I(op, *ops, mods="", c=None): return Ins(op, ops, mods, comment=c)
def LABEL(name): return Ins("label", raw=f"{name}:")
def RAW(t): return Ins("raw", raw=t)
def WAIT(vm=None, lgkm=None):
    m = []
    if vm is not None: m.append(f"vmcnt({vm})")
    if lgkm is not None: m.append(f"lgkmcnt({lgkm})")
    return Ins("s_waitcnt", (), " ".join(m))

def auto_waits(paths):
    need = {}
    for seq in paths:
        for cname, cnt_classes, ld_class, cap in (("lgkmcnt", ("ldsrd", "ldswr"), "ldsrd", 15),
                                                   ("vmcnt", ("vmld", "vmst", "dma"), "vmld", 63)):
            issued = 0
            done = 0
            pend = {}
            for ins in seq:
                if ins.cls == "wait":
                    w = ins.waitvals()
                    if cname in w: done = max(done, issued - w[cname])
                    continue
                if ins.cls == "smem" and cname == "lgkmcnt":
                    continue
                dep = -1
                for u in (ins.rd | ins.wr):
                    if u in pend: dep = max(dep, pend[u])
                if dep >= done:
                    n = min(issued - 1 - dep, cap)
                    k = (id(ins), cname)
                    need[k] = min(need.get(k, 99), n)
                    done = max(done, issued - n)
                elif (id(ins), cname) in need:
                    done = max(done, issued - need[(id(ins), cname)])
                if ins.cls in cnt_classes and not getattr(ins, "nocount", False):
                    if ins.cls == ld_class:
                        for u in ins.wr: pend[u] = issued
                    issued += 1
    return need

def apply_waits(paths):
    objs = {}
    for seq in paths:
        for ins in seq: objs[id(ins)] = ins
    need = auto_waits(paths)
    for (i, cname), n in need.items():
        objs[i].pre_wait[cname] = n

MFMA_PASSES = {"v_mfma_f32_16x16x32_bf16": 4, "v_mfma_f32_16x16x16_bf16": 4, "v_mfma_f32_32x32x16_bf16": 8}

def hazard_need(p, c):
    n = 0
    vreg = lambda s: {u for u in s if u[0] in ("v", "a")}
    if p.cls == "mfma":
        ps = MFMA_PASSES[p.op]
        big = {4: 8, 8: 12}[ps]; ovl = {4: 6, 8: 10}[ps]; war = {4: 3, 8: 7}[ps]
        if c.cls == "mfma":
            if p.wr & c.rdAB: n = max(n, big)
            if p.wr & c.rdC:
                if not (p.wr == c.rdC and MFMA_PASSES[c.op] == ps): n = max(n, ovl)
            if (p.wr & c.wr) and not (p.wr & c.rdC): n = max(n, ovl)
        elif c.cls in ("valu", "ldsrd", "ldswr", "vmld", "vmst", "dma"):
            if p.wr & (c.rd | c.wr): n = max(n, big)
            if c.cls == "valu" and (p.rdC & c.wr): n = max(n, war)
    if p.cls == "valu":
        if c.cls == "mfma" and (vreg(p.wr) & c.rd): n = max(n, 2)
        if p.op in TRANS and c.cls == "valu" and c.op not in TRANS and (p.wr & c.rd): n = max(n, 1)
        if p.op in TRANS and c.cls == "valu" and (p.wr & c.rd): n = max(n, 1)
        if c.op.startswith("v_permlane") and (vreg(p.wr) & c.rd): n = max(n, 2)
        if c.op in ("v_readfirstlane_b32", "v_readlane_b32") and (vreg(p.wr) & c.rd): n = max(n, 1)
        sw = {u for u in p.wr if u[0] in ("s", "vcc")}
        if sw:
            if c.cls == "valu" and (sw & c.rd): n = max(n, 2)
            if c.cls in ("vmld", "vmst", "dma") and (sw & c.rd): n = max(n, 5)
            if c.cls == "salu" and (sw & c.rd): n = max(n, 1)
        if "dpp" in c.mods or "row_" in c.mods or "quad_perm" in c.mods:
            if vreg(p.wr) & c.rd: n = max(n, 2)
    if p.cls == "vmst" and getattr(p, "wide", False):
        if p.data & c.wr: n = max(n, 2)
    if p.cls == "salu" and ("m0", 0) in p.wr and c.cls == "dma": n = max(n, 1)
    if p.cls == "salu" and ("exec", 0) in p.wr and c.cls in ("mfma",): n = max(n, 1)
    return n

def apply_hazards(paths, window=24):
    changed = True
    while changed:
        changed = False
        for seq in paths:
            for j, c in enumerate(seq):
                if c.cls in ("raw", "wait", "nop"): continue
                dist = c.pre_nop + (1 if c.pre_wait else 0)
                for i in range(j - 1, max(-1, j - window), -1):
                    p = seq[i]
                    n = hazard_need(p, c)
                    if n > dist:
                        c.pre_nop += n - dist
                        dist = n
                        changed = True
                    dist += p.states() + p.pre_nop + (1 if p.pre_wait else 0)
                    if dist >= 20: break

def render(seq):
    out = []
    for ins in seq:
        if ins.pre_wait:
            out.append("    s_waitcnt " + " ".join(f"{k}({v})" for k, v in sorted(ins.pre_wait.items(), reverse=True)))
        n = ins.pre_nop
        while n > 0:
            k = min(n, 16)
            out.append(f"    s_nop {k-1}")
            n -= k
        out.append(ins.text())
    return "\n".join(out)

def interleave(mfmas, fillers, cap=2.0, start=0):
    out = []
    q = list(fillers)
    for g, m in enumerate(mfmas):
        out.append(m)
        room = cap
        while q and g >= start:
            ins, cost, early = q[0]
            if early > g or cost > room + 1e-9:
                break
            out.extend(ins if isinstance(ins, list) else [ins])
            room -= cost
            q.pop(0)
    for ins, cost, early in q:
        out.extend(ins if isinstance(ins, list) else [ins])
    return out
```

```python
from ir import *
import struct

def f32bits(x): return struct.unpack("<I", struct.pack("<f", x))[0]
CSCALE = (128 ** -0.5) * 1.4426950408889634
BLK = 1056
TILE = 16 * BLK
NSLOT = 7
WQ_BASE = NSLOT * TILE
WQ_CH = 8 * BLK
HML = WQ_BASE + 4 * WQ_CH
Q13X = HML + 2048
K1_LDS = 163840
OOB = 0x40000000
M0_DROP = 0x30000
MFMA = "v_mfma_f32_16x16x32_bf16"
MFMA16 = "v_mfma_f32_16x16x16_bf16"

sX, sWQ, sK, sV, sO = S(8, 4), S(12, 4), S(16, 4), S(20, 4), S(24, 4)
pIN = S(28, 8); pWS = S(36, 2)
sW, sB, sH = S(38), S(39), S(40)
sT0, sT1, sT2, sT3 = S(41), S(42), S(43), S(44)
sCNT, sXO, sKSL, sVSL, sKD, sVD = S(45), S(46), S(47), S(48), S(49), S(50)
sC2 = S(52, 2)
sHW, sM0, sSO, sTI, sLW = S(54), S(55), S(56), S(57), S(58)
sC2T = S(59)
sSTAMP = 64
sDBG = S(96, 4)

def sched(mfmas, fixed, flex, cap=2.0):
    out = []; q = list(flex)
    for g, m in enumerate(mfmas):
        out.append(m)
        room = cap
        for ins, cost in fixed.get(g, []):
            out.append(ins); room -= cost
        while q:
            ins, cost, early = q[0]
            if early > g or cost > room + 1e-9: break
            out.append(ins); room -= cost; q.pop(0)
    for ins, cost, early in q: out.append(ins)
    return out

def xlane_max(lst, x, t0, t1):
    a = lst.append
    a(I("v_mov_b32", t0, x)); a(I("v_mov_b32", t1, x))
    a(I("v_permlane32_swap_b32", t0, t1))
    a(I("v_max_f32", x, t0, t1))
    a(I("v_mov_b32", t0, x)); a(I("v_mov_b32", t1, x))
    a(I("v_permlane16_swap_b32", t0, t1))
    a(I("v_max_f32", x, t0, t1))

def gen_k1(name, stamps=False, kv_mods=""):
    L = lambda s: f"L_{name}_{s}"
    nst = [0]
    def STAMP(lst, i):
        if stamps:
            lst.append(I("s_memrealtime", S(sSTAMP + 2 * i, 2)))
            lst.append(WAIT(lgkm=0))
    def STAMP_OUT(lst, n, vt, vd):
        if not stamps: return
        a = lst.append
        a(I("s_lshl_b32", sT0, S(2), 3)); a(I("s_add_u32", sT0, sT0, sW)); a(I("s_lshl_b32", sT0, sT0, 6))
        a(I("v_mov_b32", vt, 0))
        for i in range(n):
            a(I("v_mov_b32", vd, S(sSTAMP + 2 * i)))
            a(I("buffer_store_dword", vd, vt, sDBG, sT0, mods=f"offen offset:{4*i}"))
            a(I("s_nop", 1))
        a(WAIT(vm=0))

    pre = []; e = pre.append
    vLane = V(1)
    e(I("s_cmp_ge_u32", S(2), 256))
    e(I("s_cbranch_scc1", L("end")))
    e(I("s_load_dwordx8", pIN, S(0, 2), 0))
    e(I("s_load_dwordx2", pWS, S(0, 2), 56))
    e(I("v_lshrrev_b32", V(2), 6, V(0)))
    e(I("v_and_b32", vLane, 63, V(0)))
    e(I("v_readfirstlane_b32", sW, V(2)))
    e(I("s_and_b32", sT0, S(2), 1)); e(I("s_lshl_b32", sT0, sT0, 2))
    e(I("s_bfe_u32", sT1, S(2), (2 << 16) | 3)); e(I("s_add_u32", sB, sT0, sT1))
    e(I("s_bfe_u32", sT0, S(2), (2 << 16) | 1)); e(I("s_lshl_b32", sT0, sT0, 3))
    e(I("s_lshr_b32", sT1, S(2), 5)); e(I("s_add_u32", sH, sT0, sT1))
    e(I("s_mov_b32", sC2[0], f32bits(CSCALE))); e(I("s_mov_b32", sC2[1], f32bits(CSCALE)))
    e(I("s_mov_b32", sC2T, 2 * TILE))
    e(WAIT(lgkm=0))
    STAMP(pre, 0)
    e(I("s_mul_i32", sT0, sB, 212992))
    e(I("s_add_u32", sX[0], pIN[0], sT0)); e(I("s_addc_u32", sX[1], pIN[1], 0))
    e(I("s_mov_b32", sX[2], 212992)); e(I("s_mov_b32", sX[3], 0x20000))
    e(I("s_lshl_b32", sT0, sH, 8))
    e(I("s_add_u32", sWQ[0], pIN[6], sT0)); e(I("s_addc_u32", sWQ[1], pIN[7], 0))
    e(I("s_sub_u32", sWQ[2], 4194304, sT0)); e(I("s_mov_b32", sWQ[3], 0x20000))
    e(I("s_lshl_b32", sT0, sB, 5)); e(I("s_add_u32", sT0, sT0, sH)); e(I("s_lshl_b32", sT0, sT0, 17))
    e(I("s_add_u32", sK[0], pIN[2], sT0)); e(I("s_addc_u32", sK[1], pIN[3], 0))
    e(I("s_mov_b32", sK[2], 131072)); e(I("s_mov_b32", sK[3], 0x20000))
    e(I("s_add_u32", sV[0], pIN[4], sT0)); e(I("s_addc_u32", sV[1], pIN[5], 0))
    e(I("s_mov_b32", sV[2], 131072)); e(I("s_mov_b32", sV[3], 0x20000))
    e(I("s_mul_i32", sT0, sB, 13 * 131072)); e(I("s_lshl_b32", sT1, sH, 12)); e(I("s_add_u32", sT0, sT0, sT1))
    e(I("s_add_u32", sO[0], pWS[0], sT0)); e(I("s_addc_u32", sO[1], pWS[1], 0))
    e(I("s_sub_u32", sO[2], 13 * 131072, sT1)); e(I("s_mov_b32", sO[3], 0x20000))
    if stamps:
        e(I("s_add_u32", sDBG[0], pWS[0], 0x4000000)); e(I("s_addc_u32", sDBG[1], pWS[1], 0))
        e(I("s_mov_b32", sDBG[2], 0x100000)); e(I("s_mov_b32", sDBG[3], 0x20000))
    vKl, vVl = V(2), V(3)
    t0, t1 = V(5), V(6)
    e(I("v_and_b32", t0, 7, vLane)); e(I("v_mul_u32_u24", vKl, BLK, t0))
    e(I("v_bfe_u32", t0, vLane, 3, 1)); e(I("v_lshl_add_u32", vKl, t0, 8, vKl))
    e(I("v_lshrrev_b32", t0, 4, vLane)); e(I("v_lshl_add_u32", vKl, t0, 4, vKl))
    e(I("v_bfe_u32", t0, vLane, 2, 3)); e(I("v_mul_u32_u24", vVl, BLK, t0))
    e(I("v_lshrrev_b32", t0, 5, vLane)); e(I("v_lshl_add_u32", vVl, t0, 8, vVl))
    e(I("v_and_b32", t0, 3, vLane)); e(I("v_lshl_add_u32", vVl, t0, 3, vVl))
    vWQ = V(4)
    e(I("v_lshrrev_b32", t0, 5, vLane)); e(I("v_lshl_add_u32", vWQ, t0, 8, vVl))
    e(I("v_add_u32", vWQ, WQ_BASE, vWQ))
    e(I("s_cmp_ge_u32", sW, 4))
    e(I("s_cbranch_scc1", L("helper")))

    vK, vV, vOr = V(2), V(3), V(4)
    vT0, vT1, vT2 = V(5), V(6), V(7)
    NEGM = [V(8 + 4 * t, 4) for t in range(3)]
    SB = [[[V(20 + ((e_ * 2 + sb) * 3 + t) * 4, 4) for t in range(3)] for sb in range(2)] for e_ in range(2)]
    vT3, vT4 = V(68), V(69)
    O = [[V(72 + (t * 8 + T) * 4, 4) for T in range(8)] for t in range(3)]
    Q = [[A((t * 4 + kk) * 4, 4) for kk in range(4)] for t in range(3)]
    LA_ = [A(48 + 4 * t, 4) for t in range(3)]
    ONES = A(60, 4)
    POOL = [A(64 + 4 * i, 4) for i in range(6)]
    XB = [[(V(20 + (sbuf * 3 + t) * 4, 4) if sbuf < 4 else A(((sbuf - 4) * 3 + t) * 4, 4)) for t in range(3)] for sbuf in range(8)]
    WQF = [A(48 + 4 * T, 4) for T in range(8)]
    vXo = [V(8), V(9), V(10)]
    cq = []; e = cq.append
    e(I("v_and_b32", vT0, 15, vLane)); e(I("v_lshlrev_b32", vT0, 10, vT0))
    e(I("v_lshrrev_b32", vT1, 4, vLane)); e(I("v_lshl_add_u32", vT0, vT1, 4, vT0))
    e(I("s_mul_i32", sT0, sW, 48 * 1024))
    e(I("v_add_u32", vXo[0], sT0, vT0))
    e(I("v_add_u32", vXo[1], 16384, vXo[0])); e(I("v_add_u32", vXo[2], 32768, vXo[0]))
    def xloads(G8, soff):
        r = []
        for h_ in range(2):
            for t in range(3):
                r.append(I("buffer_load_dwordx4", XB[(2 * G8 + h_) & 7][t], vXo[t], sX, soff, mods=f"offen offset:{64*h_}"))
        return r
    for G in range(3):
        e(I("s_mov_b32", sXO, G * 128))
        cq.extend(xloads(G, sXO))
    for t in range(3):
        for T in range(8):
            for r in range(4): e(I("v_mov_b32", O[t][T][r], 0))
    e(I("s_mov_b32", sCNT, 3))
    e(I("s_barrier"))
    LAQ = 4
    def wqreads(s, T):
        return [I("ds_read_b64_tr_b16", WQF[T].sub(2 * hh, 2), vWQ, mods=f"offset:{(s & 3) * WQ_CH + hh * 256 + T * 32}") for hh in range(2)]
    for T in range(LAQ): cq.extend(wqreads(0, T))
    e(LABEL(L("cq_loop")))
    cqb = []
    mf = []; fixed = {}
    for s in range(8):
        for T in range(8):
            g0 = len(mf)
            for t in range(3):
                mf.append(I(MFMA, O[t][T], WQF[T], XB[s][t], O[t][T]))
            f = s * 8 + T + LAQ
            s2, T2 = f >> 3, f & 7
            items = []
            if T2 == 0: items.append((I("s_barrier"), 0))
            rr = wqreads(s2, T2)
            fixed.setdefault(g0, []).extend(items + [(rr[0], 1)])
            fixed.setdefault(g0 + 1, []).append((rr[1], 1))
            if (s & 1) == 0 and T == 0:
                sal = [I("s_lshl_b32", sXO, sCNT, 7), I("s_cmp_lt_u32", sCNT, 8), I("s_cselect_b32", sXO, sXO, OOB),
                       I("s_add_u32", sCNT, sCNT, 1)]
                fixed.setdefault(g0 + 2, []).extend([(x, 0) for x in sal])
                xl = xloads((s + 6) // 2, sXO)
                for i, x in enumerate(xl):
                    fixed.setdefault(g0 + 3 + 3 * i + 2, []).append((x, 1))
    cqb = sched(mf, fixed, [])
    cqb.append(I("s_cmp_lt_u32", sCNT, 11))
    cqb.append(I("s_cbranch_scc1", L("cq_loop")))
    cv = []; e = cv.append
    STAMP(cv, 1)
    for t in range(3):
        for kk in range(4):
            X, Y = O[t][2 * kk], O[t][2 * kk + 1]
            for R in (X, Y):
                e(I("v_pk_mul_f32", R.sub(0, 2), R.sub(0, 2), sC2)); e(I("v_pk_mul_f32", R.sub(2, 2), R.sub(2, 2), sC2))
            e(I("v_cvt_pk_bf16_f32", X[0], X[0], X[1])); e(I("v_cvt_pk_bf16_f32", X[1], X[2], X[3]))
            e(I("v_cvt_pk_bf16_f32", Y[0], Y[0], Y[1])); e(I("v_cvt_pk_bf16_f32", Y[1], Y[2], Y[3]))
    for t in range(3):
        for kk in range(4):
            X, Y = O[t][2 * kk], O[t][2 * kk + 1]
            e(I("v_permlane32_swap_b32", X[0], Y[0])); e(I("v_permlane32_swap_b32", X[1], Y[1]))
    for t in range(3):
        for kk in range(4):
            X, Y = O[t][2 * kk], O[t][2 * kk + 1]
            e(I("v_permlane16_swap_b32", X[0], Y[0])); e(I("v_permlane16_swap_b32", X[1], Y[1]))
    e(WAIT(vm=0, lgkm=0))
    for t in range(3):
        for kk in range(4):
            X, Y = O[t][2 * kk], O[t][2 * kk + 1]
            for j, src in enumerate((X[0], X[1], Y[0], Y[1])):
                e(I("v_accvgpr_write_b32", Q[t][kk][j], src))
    for t in range(3):
        for T in range(8):
            for r in range(4): e(I("v_mov_b32", O[t][T][r], 0))
        for r in range(4): e(I("v_accvgpr_write_b32", LA_[t][r], 0))
    e(I("v_mov_b32", vT0, 0x3F803F80))
    for r in range(4): e(I("v_accvgpr_write_b32", ONES[r], vT0))
    e(I("v_add_u32", vV, TILE, vV))
    e(I("s_mov_b32", sKSL, 0)); e(I("s_mov_b32", sVSL, 1)); e(I("s_mov_b32", sKD, 0))
    e(I("s_mov_b32", sCNT, 0))
    e(I("s_barrier"))
    STAMP(cv, 2)
    def kread(buf, addr, uh, sb, kk):
        return I("ds_read_b128", buf, addr, mods=f"offset:{uh * 8 * BLK + sb * 512 + kk * 64}")
    def vreads(buf, uh, T):
        return [I("ds_read_b64_tr_b16", buf.sub(2 * hh, 2), vV, mods=f"offset:{uh * 8 * BLK + hh * 512 + T * 32}") for hh in range(2)]
    def qk_simple(lst, addr, uh, D, C):
        for sb in range(2):
            for kk in range(4): lst.append(kread(POOL[kk], addr, uh, sb, kk))
            for kk in range(4):
                for t in range(3):
                    c = D[sb][t] if kk else (0 if C is None else C[t])
                    lst.append(I(MFMA, D[sb][t], POOL[kk], Q[t][kk], c))
    def rowmax(lst, D, t, dst):
        a = lst.append
        x, y = D[0][t], D[1][t]
        a(I("v_max3_f32", dst, x[0], x[1], x[2])); a(I("v_max3_f32", dst, dst, x[3], y[0]))
        a(I("v_max3_f32", dst, dst, y[1], y[2])); a(I("v_max_f32", dst, dst, y[3]))
        xlane_max(lst, dst, vT1, vT2)
    def exps(D, t, sb): return [I("v_exp_f32", D[sb][t][r], D[sb][t][r]) for r in range(4)]
    def cvts(D, t):
        x, y = D[0][t], D[1][t]
        return [I("v_cvt_pk_bf16_f32", x[0], x[0], x[1]), I("v_cvt_pk_bf16_f32", x[1], x[2], x[3]),
                I("v_cvt_pk_bf16_f32", x[2], y[0], y[1]), I("v_cvt_pk_bf16_f32", x[3], y[2], y[3])]
    qk_simple(cv, vK, 0, SB[0], None)
    for t in range(3):
        rowmax(cv, SB[0], t, vT0)
        e(I("v_sub_f32", NEGM[t][0], "0xc0e00000", vT0))
        for r in range(1, 4): e(I("v_mov_b32", NEGM[t][r], NEGM[t][0]))
        for sb in range(2):
            for r in range(4): e(I("v_add_f32", SB[0][sb][t][r], SB[0][sb][t][r], NEGM[t][0]))
    BUFSEQ = list(range(6)) * 2 + list(range(5)) * 4
    assert len(BUFSEQ) == 32
    LAF = 4
    def frag_reads(f):
        f &= 31
        buf = POOL[BUFSEQ[f]]
        blk, i = f >> 3, f & 7
        if blk == 0: return [kread(buf, vK, 1, i >> 2, i & 3)]
        if blk == 1: return vreads(buf, 0, i)
        if blk == 2: return [kread(buf, vK, 0, i >> 2, i & 3)]
        return vreads(buf, 1, i)
    NEXP_B = 16
    for t in range(2):
        cv.extend(exps(SB[0], t, 0))
    for t in range(2):
        cv.extend(exps(SB[0], t, 1))
    for f in range(LAF): cv.extend(frag_reads(f))
    e(LABEL(L("c_loop")))
    body = []
    def blockA(par, fbase):
        D = SB[1 - par]; Pn = SB[par]
        mf = []; fixed = {}
        for i in range(8):
            f = fbase + i; sb, kk = i >> 2, i & 3
            g0 = len(mf)
            for t in range(3):
                mf.append(I(MFMA, D[sb][t], POOL[BUFSEQ[f]], Q[t][kk], NEGM[t] if kk == 0 else D[sb][t]))
            for j, r in enumerate(frag_reads(f + LAF)): fixed.setdefault(g0 + j, []).append((r, 1))
        flex = []
        for x in exps(Pn, 2, 0): flex.append((x, 2, 0))
        for x in cvts(Pn, 0): flex.append((x, 1, 0))
        for x in exps(Pn, 2, 1): flex.append((x, 2, 0))
        for x in cvts(Pn, 1): flex.append((x, 1, 0))
        p = [Pn[0][t][r] for t in range(3) for r in range(4)]
        flex.append((I("v_or3_b32", vOr, p[0], p[1], p[2]), 1, 0))
        flex.append((I("v_or3_b32", vOr, vOr, p[3], p[4]), 1, 0))
        flex.append((I("v_or3_b32", vOr, vOr, p[5], p[6]), 1, 0))
        for x in cvts(Pn, 2): flex.append((x, 1, 0))
        flex.append((I("v_or3_b32", vOr, vOr, p[7], p[8]), 1, 0))
        flex.append((I("v_or3_b32", vOr, vOr, p[9], p[10]), 1, 0))
        flex.append((I("v_or_b32", vOr, vOr, p[11]), 1, 0))
        flex.append((I("v_and_b32", vOr, 0x40004000, vOr), 1, 0))
        flex.append((I("v_cmp_ne_u32", VCC, 0, vOr), 1, 0))
        out = sched(mf, fixed, flex)
        out.append(I("s_cbranch_vccnz", L(f"c_rare{par}")))
        out.append(LABEL(L(f"c_ret{par}")))
        return out
    def blockB(par, fbase, extra):
        Pn = SB[par]; Dn = SB[1 - par]
        mf = []; fixed = {}
        for t in range(3):
            mf.append(I(MFMA, LA_[t], ONES, Pn[0][t], LA_[t]))
        for i in range(8):
            f = fbase + i
            g0 = len(mf)
            for t in range(3):
                mf.append(I(MFMA, O[t][i], POOL[BUFSEQ[f]], Pn[0][t], O[t][i]))
            for j, r in enumerate(frag_reads(f + LAF)): fixed.setdefault(g0 + j, []).append((r, 1))
        for g, items in extra.items(): fixed.setdefault(g, []).extend(items)
        flex = []
        for t in range(2):
            for x in exps(Dn, t, 0): flex.append((x, 2, 0))
        for t in range(2):
            for x in exps(Dn, t, 1): flex.append((x, 2, 4))
        return sched(mf, fixed, flex)
    def slot_adv(sSL, sD):
        return [I("s_add_u32", sSL, sSL, 2), I("s_cmp_ge_u32", sSL, NSLOT),
                I("s_cselect_b32", sD, (2 - NSLOT) * TILE, sC2T), I("s_cselect_b32", sT0, NSLOT, 0),
                I("s_sub_u32", sSL, sSL, sT0)]
    body += blockA(0, 0)
    ka = slot_adv(sKSL, sKD)
    body += blockB(0, 8, {0: [(x, 0) for x in ka], 2: [(I("v_add_u32", vK, sKD, vK), 1)]})
    body += blockA(1, 16)
    va = slot_adv(sVSL, sVD)
    body += blockB(1, 24, {16: [(x, 0) for x in va], 20: [(I("v_add_u32", vV, sVD, vV), 1)]})
    body.append(I("s_add_u32", sCNT, sCNT, 1))
    body.append(I("s_cmp_lt_u32", sCNT, 8))
    body.append(I("s_barrier"))
    body.append(I("s_cbranch_scc1", L("c_loop")))
    ce = []; e = ce.append
    STAMP(ce, 3)
    e(I("v_lshlrev_b32", vT3, 4, vLane))
    e(I("s_mul_i32", sT1, sW, 3 * 131072))
    for t in range(3):
        e(I("v_accvgpr_read_b32", vT0, LA_[t][0]))
        e(I("v_rcp_f32", vT0, vT0))
        e(I("v_mov_b32", vT1, vT0))
        for kk in range(4):
            X, Y = O[t][2 * kk], O[t][2 * kk + 1]
            for R in (X, Y):
                for r in range(4): e(I("v_mul_f32", R[r], R[r], vT0))
            e(I("v_cvt_pk_bf16_f32", X[0], X[0], X[1])); e(I("v_cvt_pk_bf16_f32", X[1], X[2], X[3]))
            e(I("v_cvt_pk_bf16_f32", X[2], Y[0], Y[1])); e(I("v_cvt_pk_bf16_f32", X[3], Y[2], Y[3]))
            e(I("buffer_store_dwordx4", X, vT3, sO, sT1, mods=f"offen offset:{kk*1024}"))
        e(I("s_add_u32", sT1, sT1, 131072))
    if stamps: e(WAIT(vm=0))
    STAMP(ce, 4)
    STAMP_OUT(ce, 5, vT0, vT1)
    e(I("s_endpgm"))
    rare = []
    for par in range(2):
        r_ = []; e = r_.append
        e(LABEL(L(f"c_rare{par}")))
        e(WAIT(lgkm=0)); e(I("s_nop", 15))
        if par == 0:
            aN, uhN, aN1, uhN1 = vK, 0, vK, 1
        else:
            e(I("v_subrev_u32", vT3, sKD, vK))
            aN, uhN, aN1, uhN1 = vT3, 1, vK, 0
        Dn, Dn1 = SB[par], SB[1 - par]
        qk_simple(r_, aN, uhN, Dn, None)
        for t in range(3):
            rowmax(r_, Dn, t, vT0)
            e(I("v_add_f32", vT0, "0x40e00000", vT0))
            e(I("v_max_f32_e64", vT0, vT0, "-" + str(NEGM[t][0])))
            e(I("v_sub_f32_e64", vT1, "-" + str(NEGM[t][0]), vT0))
            e(I("v_exp_f32", vT1, vT1))
            for r in range(4): e(I("v_sub_f32", NEGM[t][r], 0, vT0))
            for T in range(8):
                for r in range(4): e(I("v_mul_f32", O[t][T][r], O[t][T][r], vT1))
            for r in range(4):
                e(I("v_accvgpr_read_b32", vT2, LA_[t][r])); e(I("v_mul_f32", vT2, vT2, vT1)); e(I("v_accvgpr_write_b32", LA_[t][r], vT2))
            for sb in range(2):
                for r in range(4): e(I("v_add_f32", Dn[sb][t][r], Dn[sb][t][r], NEGM[t][0]))
            r_.extend(exps(Dn, t, 0)); r_.extend(exps(Dn, t, 1)); r_.extend(cvts(Dn, t))
        qk_simple(r_, aN1, uhN1, Dn1, NEGM)
        fb = 8 if par == 0 else 24
        for f in range(fb, fb + LAF): r_.extend(frag_reads(f))
        e(WAIT(lgkm=0)); e(I("s_nop", 15))
        e(I("s_branch", L(f"c_ret{par}")))
        rare.append(r_)

    hK, hV = V(2), V(3)
    hT0, hT1, hT2, hT3 = V(5), V(6), V(7), V(17)
    hNEG = V(8, 4); hS = V(12, 4); hL = V(20, 4)
    hO = [V(24 + 4 * T, 4) for T in range(8)]
    hQ = [V(56 + 4 * kk, 4) for kk in range(4)]
    hKF = [V(72 + 4 * kk, 4) for kk in range(4)]
    hVF = [V(88 + 2 * T, 2) for T in range(8)]
    hONES = V(104, 2)
    hKVo = V(106)
    hWo = [V(108 + m) for m in range(4)]
    hXo = V(112)
    hQA = [V(116 + 4 * i, 4) for i in range(4)]
    hWF = [V(132 + 4 * i, 4) for i in range(4)]
    hXB = [V(148 + 4 * i, 4) for i in range(4)]
    hp = []; e = hp.append
    e(LABEL(L("helper")))
    e(I("s_sub_u32", sHW, sW, 4))
    e(I("s_and_b32", sLW, sHW, 1))
    for T in range(8):
        for r in range(4): e(I("v_mov_b32", hO[T][r], 0))
    for r in range(4):
        e(I("v_mov_b32", hL[r], 0)); e(I("v_mov_b32", hNEG[r], "0x7f000000"))
    e(I("v_mov_b32", hONES[0], 0x3F803F80)); e(I("v_mov_b32", hONES[1], 0x3F803F80))
    e(I("v_and_b32", hT0, 15, vLane)); e(I("v_lshlrev_b32", hT0, 4, hT0))
    e(I("v_lshrrev_b32", hT1, 4, vLane)); e(I("v_lshl_add_u32", hKVo, hT1, 11, hT0))
    e(I("s_lshr_b32", sT0, sHW, 1)); e(I("s_mul_i32", sT0, sT0, 8 * BLK)); e(I("s_lshl_b32", sT1, sLW, 9)); e(I("s_add_u32", sT0, sT0, sT1))
    e(I("v_add_u32", hK, sT0, hK))
    e(I("s_add_u32", sT0, sT0, TILE))
    e(I("v_add_u32", hV, sT0, hV))
    e(I("s_cmp_ge_u32", sHW, 2))
    e(I("s_cbranch_scc1", L("h23")))
    h01 = []; e = h01.append
    e(I("v_bfe_u32", hT1, vLane, 4, 1)); e(I("v_lshl_add_u32", hT0, hT1, 15, hT0))
    e(I("v_lshrrev_b32", hT1, 5, vLane)); e(I("v_lshl_add_u32", hT0, hT1, 17, hT0))
    e(I("s_lshl_b32", sT0, sLW, 16))
    e(I("v_add_u32", hWo[0], sT0, hT0))
    for m in range(1, 4): e(I("v_add_u32", hWo[m], m * (8192 - BLK), hWo[0]))
    e(I("v_and_b32", hT0, 15, vLane)); e(I("v_lshlrev_b32", hT0, 10, hT0))
    e(I("v_lshrrev_b32", hT1, 4, vLane)); e(I("v_lshl_add_u32", hT0, hT1, 4, hT0))
    e(I("v_add_u32", hXo, 192 * 1024, hT0))
    for i in range(4):
        for r in range(4): e(I("v_mov_b32", hQA[i][r], 0))
    e(I("s_lshl_b32", sT0, sLW, 7))
    e(I("v_add_u32", V(4), sT0, V(4)))
    e(I("s_mul_i32", sM0, sLW, 4 * BLK)); e(I("s_add_u32", sM0, sM0, WQ_BASE))
    def wq_issue(lst, st):
        a = lst.append
        a(I("s_lshl_b32", sSO, sCNT, 18)); a(I("s_lshl_b32", sXO, sCNT, 6))
        a(I("s_add_u32", sT0, sM0, st * WQ_CH))
        a(I("s_cmp_lt_u32", sCNT, 16))
        a(I("s_cselect_b32", sSO, sSO, OOB)); a(I("s_cselect_b32", sXO, sXO, OOB)); a(I("s_cselect_b32", M0, sT0, M0_DROP))
        a(I("s_add_u32", sCNT, sCNT, 1))
        a(I("buffer_load_dwordx4", hXB[st], hXo, sX, sXO, mods="offen"))
        for m in range(4):
            a(I("buffer_load_dwordx4", hWo[m], sWQ, sSO, mods=f"offen offset:{m*BLK} lds"))
    e(I("s_mov_b32", sCNT, 0))
    wq_issue(h01, 0); wq_issue(h01, 1)
    e(LABEL(L("h01_loop")))
    h01b = []; e = h01b.append
    for st in range(4):
        e(WAIT(vm=5)); e(I("s_barrier"))
        wq_issue(h01b, (st + 2) & 3)
        for i in range(4):
            for hh in range(2):
                e(I("ds_read_b64_tr_b16", hWF[i].sub(2 * hh, 2), V(4), mods=f"offset:{st * WQ_CH + hh * 256 + i * 32}"))
        for i in range(4):
            e(I(MFMA, hQA[i], hWF[i], hXB[st], hQA[i]))
    e(I("s_cmp_lt_u32", sCNT, 18))
    e(I("s_cbranch_scc1", L("h01_loop")))
    h01c = []; e = h01c.append
    e(I("s_barrier"))
    for j in range(2):
        X, Y = hQA[2 * j], hQA[2 * j + 1]
        for R in (X, Y):
            e(I("v_pk_mul_f32", R.sub(0, 2), R.sub(0, 2), sC2)); e(I("v_pk_mul_f32", R.sub(2, 2), R.sub(2, 2), sC2))
        e(I("v_cvt_pk_bf16_f32", X[0], X[0], X[1])); e(I("v_cvt_pk_bf16_f32", X[1], X[2], X[3]))
        e(I("v_cvt_pk_bf16_f32", X[2], Y[0], Y[1])); e(I("v_cvt_pk_bf16_f32", X[3], Y[2], Y[3]))
        e(I("v_permlane32_swap_b32", X[0], X[2])); e(I("v_permlane32_swap_b32", X[1], X[3]))
        e(I("v_permlane16_swap_b32", X[0], X[2])); e(I("v_permlane16_swap_b32", X[1], X[3]))
    e(I("v_lshlrev_b32", hT0, 4, vLane))
    e(I("s_lshl_b32", sT0, sLW, 11)); e(I("s_add_u32", sT0, sT0, Q13X))
    e(I("v_add_u32", hT0, sT0, hT0))
    for j in range(2):
        e(I("ds_write_b128", hT0, hQA[2 * j], mods=f"offset:{j*1024}"))
    e(WAIT(vm=0, lgkm=0))
    e(I("s_branch", L("h_attn")))
    def kv_issue(lst, srd, valid_lt=None):
        a = lst.append
        for m in range(8):
            a(I("s_add_u32", M0, sM0, m * BLK))
            a(I("s_add_u32", sT0, sSO, m * 256))
            a(I("buffer_load_dwordx4", hKVo, srd, sT0, mods=f"offen {kv_mods} lds".replace("  ", " ")))
    h23 = []; e = h23.append
    e(LABEL(L("h23")))
    e(I("s_mul_i32", sT3, sLW, 8 * BLK)); e(I("s_lshl_b32", sT2, sLW, 13))
    def tile_static(lst, i):
        lst.append(I("s_add_u32", sM0, sT3, (i % NSLOT) * TILE))
        lst.append(I("s_add_u32", sSO, sT2, (i >> 1) * 16384))
        kv_issue(lst, sV if i & 1 else sK)
    for i in range(4): tile_static(h23, i)
    for i in range(4, 7):
        e(I("s_barrier"))
        tile_static(h23, i)
    e(I("s_mov_b32", sCNT, 3))
    e(LABEL(L("h23_loop")))
    e(I("s_barrier"))
    e(I("s_add_u32", sCNT, sCNT, 1)); e(I("s_cmp_lt_u32", sCNT, 17)); e(I("s_cbranch_scc1", L("h23_loop")))
    e(WAIT(vm=32))
    ha = []; e = ha.append
    e(LABEL(L("h_attn")))
    e(I("s_barrier"))
    STAMP(ha, 2)
    e(I("v_lshlrev_b32", hT0, 4, vLane)); e(I("v_add_u32", hT0, Q13X, hT0))
    for kk in range(4): e(I("ds_read_b128", hQ[kk], hT0, mods=f"offset:{kk*1024}"))
    e(I("s_mov_b32", sCNT, 0)); e(I("s_mov_b32", sKSL, 0)); e(I("s_mov_b32", sTI, 5))
    e(LABEL(L("h_loop")))
    hb = []; e = hb.append
    for kk in range(4): e(I("ds_read_b128", hKF[kk], hK, mods=f"offset:{kk*64}"))
    for T in range(8): e(I("ds_read_b64_tr_b16", hVF[T], hV, mods=f"offset:{T*32}"))
    e(I("s_cmp_lt_u32", sHW, 2)); e(I("s_cbranch_scc1", L("h_noload")))
    e(I("s_cmp_eq_u32", sCNT, 0)); e(I("s_cbranch_scc1", L("h_noload")))
    hl = []; a = hl.append
    a(I("s_mul_i32", sM0, sTI, TILE)); a(I("s_add_u32", sM0, sM0, sT3))
    a(I("s_add_u32", sSO, sCNT, 2)); a(I("s_cmp_lt_u32", sSO, 8))
    a(I("s_cselect_b32", sM0, sM0, M0_DROP)); a(I("s_cselect_b32", sT1, 0, OOB))
    a(I("s_lshl_b32", sSO, sSO, 14)); a(I("s_add_u32", sSO, sSO, sT2)); a(I("s_or_b32", sSO, sSO, sT1))
    kv_issue(hl, sV)
    a(I("s_add_u32", sT1, sTI, 1)); a(I("s_cmp_ge_u32", sT1, NSLOT)); a(I("s_cselect_b32", sT1, 0, sT1))
    a(I("s_mul_i32", sM0, sT1, TILE)); a(I("s_add_u32", sM0, sM0, sT3))
    a(I("s_add_u32", sSO, sCNT, 3)); a(I("s_cmp_lt_u32", sSO, 8))
    a(I("s_cselect_b32", sM0, sM0, M0_DROP)); a(I("s_cselect_b32", sT1, 0, OOB))
    a(I("s_lshl_b32", sSO, sSO, 14)); a(I("s_add_u32", sSO, sSO, sT2)); a(I("s_or_b32", sSO, sSO, sT1))
    kv_issue(hl, sK)
    hb2 = []; e = hb2.append
    e(LABEL(L("h_noload")))
    for kk in range(4):
        e(I(MFMA, hS, hKF[kk], hQ[kk], hNEG if kk == 0 else hS))
    e(I("s_add_u32", sKSL, sKSL, 2)); e(I("s_cmp_ge_u32", sKSL, NSLOT))
    e(I("s_cselect_b32", sKD, (2 - NSLOT) * TILE, sC2T)); e(I("s_cselect_b32", sT0, NSLOT, 0)); e(I("s_sub_u32", sKSL, sKSL, sT0))
    e(I("s_add_u32", sT0, sKSL, 1)); e(I("s_cmp_ge_u32", sT0, NSLOT)); e(I("s_cselect_b32", sT0, 0, sT0))
    e(I("s_cmp_lt_u32", sT0, 2)); e(I("s_cselect_b32", sVD, (2 - NSLOT) * TILE, sC2T))
    e(I("s_add_u32", sTI, sTI, 2)); e(I("s_cmp_ge_u32", sTI, NSLOT)); e(I("s_cselect_b32", sT0, NSLOT, 0)); e(I("s_sub_u32", sTI, sTI, sT0))
    for r in range(4): e(I("v_exp_f32", hS[r], hS[r]))
    e(I("v_cvt_pk_bf16_f32", hS[0], hS[0], hS[1])); e(I("v_cvt_pk_bf16_f32", hS[1], hS[2], hS[3]))
    e(I("v_or_b32", hT0, hS[0], hS[1])); e(I("v_and_b32", hT0, 0x40004000, hT0))
    e(I("v_cmp_ne_u32", VCC, 0, hT0))
    e(I("s_cbranch_vccnz", L("h_rare")))
    e(LABEL(L("h_ret")))
    e(I(MFMA16, hL, hONES, hS.sub(0, 2), hL))
    for T in range(8): e(I(MFMA16, hO[T], hVF[T], hS.sub(0, 2), hO[T]))
    e(I("v_add_u32", hK, sKD, hK)); e(I("v_add_u32", hV, sVD, hV))
    e(I("s_add_u32", sCNT, sCNT, 1)); e(I("s_cmp_lt_u32", sCNT, 8))
    e(I("s_cbranch_scc0", L("h_fin")))
    e(WAIT(vm=16))
    e(I("s_barrier"))
    e(I("s_branch", L("h_loop")))
    hf = []; e = hf.append
    e(LABEL(L("h_fin")))
    STAMP(hf, 3)
    e(I("v_lshlrev_b32", hT0, 4, vLane))
    e(I("s_lshl_b32", sT0, sHW, 13)); e(I("s_add_u32", sT0, sT0, WQ_BASE))
    e(I("v_add_u32", hT1, sT0, hT0))
    for T in range(8): e(I("ds_write_b128", hT1, hO[T], mods=f"offset:{T*1024}"))
    e(I("v_lshlrev_b32", hT2, 3, vLane))
    e(I("s_lshl_b32", sT0, sHW, 9)); e(I("s_add_u32", sT0, sT0, HML))
    e(I("v_add_u32", hT1, sT0, hT2))
    e(I("v_mov_b32", hNEG[1], hL[0]))
    e(I("ds_write_b64", hT1, hNEG.sub(0, 2)))
    e(WAIT(lgkm=0))
    e(I("s_barrier"))
    ML = [V(56 + 2 * s, 2) for s in range(4)]
    PO = [[V(72 + (s * 2 + x) * 4, 4) for x in range(2)] for s in range(4)]
    e(I("v_add_u32", hT2, HML, hT2))
    for s in range(4): e(I("ds_read_b64", ML[s], hT2, mods=f"offset:{s*512}"))
    e(I("s_lshl_b32", sT0, sHW, 11)); e(I("s_add_u32", sT0, sT0, WQ_BASE))
    e(I("v_add_u32", hT1, sT0, hT0))
    for s in range(4):
        for x in range(2): e(I("ds_read_b128", PO[s][x], hT1, mods=f"offset:{s*8192 + x*1024}"))
    e(I("v_min_f32", hT2, ML[0][0], ML[1][0])); e(I("v_min3_f32", hT2, hT2, ML[2][0], ML[3][0]))
    for s in range(4):
        e(I("v_sub_f32", ML[s][0], hT2, ML[s][0])); e(I("v_exp_f32", ML[s][0], ML[s][0]))
    e(I("v_mul_f32", hT3, ML[0][0], ML[0][1]))
    for s in range(1, 4): e(I("v_fmac_f32", hT3, ML[s][0], ML[s][1]))
    e(I("v_rcp_f32", hT3, hT3))
    for s in range(4): e(I("v_mul_f32", ML[s][0], ML[s][0], hT3))
    for x in range(2):
        for r in range(4):
            e(I("v_mul_f32", PO[0][x][r], PO[0][x][r], ML[0][0]))
            for s in range(1, 4): e(I("v_fmac_f32", PO[0][x][r], PO[s][x][r], ML[s][0]))
    X, Y = PO[0][0], PO[0][1]
    e(I("v_cvt_pk_bf16_f32", X[0], X[0], X[1])); e(I("v_cvt_pk_bf16_f32", X[1], X[2], X[3]))
    e(I("v_cvt_pk_bf16_f32", X[2], Y[0], Y[1])); e(I("v_cvt_pk_bf16_f32", X[3], Y[2], Y[3]))
    e(I("s_lshl_b32", sT0, sHW, 10)); e(I("s_add_u32", sT0, sT0, 12 * 131072))
    e(I("buffer_store_dwordx4", X, hT0, sO, sT0, mods="offen"))
    if stamps: e(WAIT(vm=0))
    STAMP(hf, 4)
    STAMP_OUT(hf, 5, hT1, hT2)
    e(LABEL(L("end")))
    e(I("s_endpgm"))
    hr = []; e = hr.append
    e(LABEL(L("h_rare")))
    e(I("s_nop", 15))
    for kk in range(4):
        e(I(MFMA, hS, hKF[kk], hQ[kk], 0 if kk == 0 else hS))
    e(I("v_max3_f32", hT0, hS[0], hS[1], hS[2])); e(I("v_max_f32", hT0, hT0, hS[3]))
    xlane_max(hr, hT0, hT1, hT2)
    e(I("v_add_f32", hT0, "0x40e00000", hT0))
    e(I("v_max_f32_e64", hT0, hT0, "-" + str(hNEG[0])))
    e(I("v_sub_f32_e64", hT1, "-" + str(hNEG[0]), hT0))
    e(I("v_exp_f32", hT1, hT1))
    for r in range(4): e(I("v_sub_f32", hNEG[r], 0, hT0))
    for T in range(8):
        for r in range(4): e(I("v_mul_f32", hO[T][r], hO[T][r], hT1))
    for r in range(4): e(I("v_mul_f32", hL[r], hL[r], hT1))
    for r in range(4): e(I("v_add_f32", hS[r], hS[r], hNEG[0]))
    for r in range(4): e(I("v_exp_f32", hS[r], hS[r]))
    e(I("v_cvt_pk_bf16_f32", hS[0], hS[0], hS[1])); e(I("v_cvt_pk_bf16_f32", hS[1], hS[2], hS[3]))
    e(I("s_nop", 3))
    e(I("s_branch", L("h_ret")))

    paths = [pre + cq + cqb + cqb + cv + body + body + ce,
             rare[0], rare[1],
             pre + hp + h01 + h01b + h01b + h01c + ha + hb + hb2 + hb + hb2 + hf,
             pre + hp + h23 + ha + hb + hb2 + hb + hl + hb2 + hb + hl + hb2 + hf,
             hb + hb2[:0] + hr]
    apply_waits(paths)
    apply_hazards(paths)
    order = [pre, cq, cqb, cv, body, ce, rare[0], rare[1], hp, h01, h01b, h01c, h23, ha, hb, hl, hb2, hf, hr]
    txt = "\n".join(render(x) for x in order)
    return txt, dict(vgpr=256, sgpr=100, accum=168)
```

```python
from ir import *

K2_LDS = 135168
def gen_k2(name):
    pre, body, post = [], [], []
    e = pre.append
    sWO, sO, sOUT = S(8, 4), S(12, 4), S(16, 4)
    sB, sRG, sNG, sQT0, sNQ, sW = S(20), S(21), S(22), S(23), S(24), S(25)
    sT0, sT1, sT2 = S(26), S(27), S(28)
    sKS, sM0B, sSO_O, sSO_W, sM0V = S(29), S(30), S(31), S(32), S(33)
    pWO, pOUT, pWS = S(34, 2), S(36, 2), S(38, 2)
    vLane, vT0, vT1, vT2 = V(1), V(2), V(3), V(4)
    vOffO = [V(8 + t) for t in range(4)]
    vOffW = [V(12 + b) for b in range(4)]
    vRd = V(16)
    ACC = [[V(32 + (qt * 4 + T) * 4, 4) for T in range(4)] for qt in range(4)]
    OF = [[V(96 + (st * 4 + qt) * 4, 4) for qt in range(4)] for st in range(4)]
    WF = [V(160 + T * 4, 4) for T in range(4)]
    NV = 176

    e(I("s_cmp_ge_u32", S(2), 256))
    e(I("s_cbranch_scc1", f"L_{name}_end"))
    e(I("s_load_dwordx2", pWO, S(0, 2), 32))
    e(I("s_load_dwordx2", pOUT, S(0, 2), 40))
    e(I("s_load_dwordx2", pWS, S(0, 2), 56))
    e(I("v_lshrrev_b32", vT0, 6, V(0)))
    e(I("v_and_b32", vLane, 63, V(0)))
    e(I("v_readfirstlane_b32", sW, vT0))
    e(I("s_and_b32", sB, S(2), 7))
    e(I("s_lshr_b32", sT0, S(2), 3))
    e(I("s_lshr_b32", sRG, sT0, 3))
    e(I("s_and_b32", sNG, sT0, 7))
    e(I("s_mul_i32", sQT0, sRG, 3))
    e(I("s_add_u32", sQT0, sQT0, 1))
    e(I("s_cmp_eq_u32", sRG, 0))
    e(I("s_cselect_b32", sQT0, 0, sQT0))
    e(I("s_cselect_b32", sNQ, 4, 3))
    for qt in range(4):
        for T in range(4):
            for r in range(4):
                e(I("v_mov_b32", ACC[qt][T][r], 0))
    e(I("v_lshlrev_b32", vOffO[0], 4, vLane))
    for t in range(1, 4):
        e(I("v_add_u32", vOffO[t], t * 131072, vOffO[0]))
    e(I("v_and_b32", vT0, 7, vLane))
    e(I("v_lshlrev_b32", vT0, 4, vT0))
    e(I("v_bfe_u32", vT1, vLane, 3, 1))
    e(I("v_lshl_add_u32", vT0, vT1, 10, vT0))
    e(I("v_lshrrev_b32", vT1, 4, vLane))
    e(I("v_lshl_add_u32", vOffW[0], vT1, 13, vT0))
    for b in range(1, 4):
        e(I("v_add_u32", vOffW[b], b * 992, vOffW[0]))
    e(I("v_and_b32", vT0, 3, vLane))
    e(I("v_lshlrev_b32", vT0, 3, vT0))
    e(I("v_bfe_u32", vT1, vLane, 3, 2))
    e(I("v_mul_u32_u24", vT1, 1056, vT1))
    e(I("v_add_u32", vT0, vT0, vT1))
    e(I("v_bfe_u32", vT1, vLane, 2, 1))
    e(I("v_lshl_add_u32", vT0, vT1, 7, vT0))
    e(I("v_bfe_u32", vT1, vLane, 5, 1))
    e(I("v_lshl_add_u32", vT0, vT1, 8, vT0))
    e(I("s_mul_i32", sM0B, sW, 16896))
    e(I("v_add_u32", vRd, sM0B, vT0))
    e(WAIT(lgkm=0))
    e(I("s_mul_i32", sT0, sB, 13))
    e(I("s_add_u32", sT0, sT0, sQT0))
    e(I("s_lshl_b32", sT0, sT0, 17))
    e(I("s_lshl_b32", sT1, sW, 14))
    e(I("s_add_u32", sT0, sT0, sT1))
    e(I("s_add_u32", sO[0], pWS[0], sT0))
    e(I("s_addc_u32", sO[1], pWS[1], 0))
    e(I("s_lshl_b32", sT2, sNQ, 17))
    e(I("s_sub_u32", sO[2], sT2, sT1))
    e(I("s_mov_b32", sO[3], 0x20000))
    e(I("s_lshl_b32", sT0, sW, 19))
    e(I("s_lshl_b32", sT1, sNG, 7))
    e(I("s_add_u32", sT0, sT0, sT1))
    e(I("s_add_u32", sWO[0], pWO[0], sT0))
    e(I("s_addc_u32", sWO[1], pWO[1], 0))
    e(I("s_sub_u32", sWO[2], 4194304, sT0))
    e(I("s_mov_b32", sWO[3], 0x20000))
    e(I("s_mul_i32", sT0, sB, 212992))
    e(I("s_lshl_b32", sT1, sQT0, 14))
    e(I("s_add_u32", sT0, sT0, sT1))
    e(I("s_lshl_b32", sT1, sNG, 7))
    e(I("s_add_u32", sT0, sT0, sT1))
    e(I("s_add_u32", sOUT[0], pOUT[0], sT0))
    e(I("s_addc_u32", sOUT[1], pOUT[1], 0))
    e(I("s_sub_u32", sOUT[2], 1703936, sT0))
    e(I("s_mov_b32", sOUT[3], 0x20000))

    def issue(lst, st):
        a = lst.append
        a(I("s_lshl_b32", sSO_O, sKS, 10))
        a(I("s_lshl_b32", sSO_W, sKS, 15))
        a(I("s_add_u32", sM0V, sM0B, st * 4224))
        a(I("s_cmp_lt_u32", sKS, 16))
        a(I("s_cselect_b32", sSO_O, sSO_O, 0x40000000))
        a(I("s_cselect_b32", sSO_W, sSO_W, 0x40000000))
        a(I("s_cselect_b32", M0, sM0V, 0x30000))
        a(I("s_add_u32", sKS, sKS, 1))
        for b in range(4):
            a(I("buffer_load_dwordx4", vOffW[b], sWO, sSO_W, mods=f"offen offset:{b*1056} lds"))
        for t in range(4):
            a(I("buffer_load_dwordx4", OF[st][t], vOffO[t], sO, sSO_O, mods="offen"))
    e(I("s_mov_b32", sKS, 0))
    for st in range(3):
        issue(pre, st)
    e(I("s_mov_b32", sT2, 0))
    e(LABEL(f"L_{name}_loop"))
    b_ = body.append
    for st in range(4):
        b_(WAIT(vm=16))
        for T in range(4):
            for hh in range(2):
                b_(I("ds_read_b64_tr_b16", WF[T].sub(2 * hh, 2), vRd, mods=f"offset:{st*4224 + hh*512 + T*32}"))
        issue(body, (st + 3) & 3)
        for T in range(4):
            for qt in range(4):
                b_(I("v_mfma_f32_16x16x32_bf16", ACC[qt][T], WF[T], OF[st][qt], ACC[qt][T]))
    b_(I("s_add_u32", sT2, sT2, 1))
    b_(I("s_cmp_lt_u32", sT2, 4))
    b_(I("s_cbranch_scc1", f"L_{name}_loop"))
    p = post.append
    p(WAIT(vm=0, lgkm=0))
    p(I("s_barrier"))
    p(I("s_lshl_b32", sT0, sW, 14))
    p(I("v_lshlrev_b32", vT0, 4, vLane))
    p(I("v_add_u32", vT1, sT0, vT0))
    for qt in range(4):
        for T in range(4):
            p(I("ds_write_b128", vT1, ACC[qt][T], mods=f"offset:{(qt*4+T)*1024}"))
    p(I("s_lshl_b32", sT0, sW, 11))
    p(I("v_add_u32", vT1, sT0, vT0))
    p(I("v_add_u32", vT2, 65536, vT1))
    p(WAIT(lgkm=0))
    p(I("s_barrier"))
    RB = [[V(96 + (s * 2 + x) * 4, 4) for x in range(2)] for s in range(8)]
    for s in range(8):
        for x in range(2):
            p(I("ds_read_b128", RB[s][x], vT1 if s < 4 else vT2, mods=f"offset:{(s&3)*16384 + x*1024}"))
    p(I("s_lshr_b32", sT0, sW, 1))
    p(I("s_cmp_ge_u32", sT0, sNQ))
    p(I("s_cbranch_scc1", f"L_{name}_end"))
    for s in range(1, 8):
        for x in range(2):
            for r in range(4):
                p(I("v_add_f32", RB[0][x][r], RB[0][x][r], RB[s][x][r]))
    for x in range(2):
        p(I("v_cvt_pk_bf16_f32", V(20 + 2 * x), RB[0][x][0], RB[0][x][1]))
        p(I("v_cvt_pk_bf16_f32", V(21 + 2 * x), RB[0][x][2], RB[0][x][3]))
    p(I("v_and_b32", vT0, 15, vLane))
    p(I("v_lshlrev_b32", vT0, 10, vT0))
    p(I("v_lshrrev_b32", vT1, 4, vLane))
    p(I("v_lshl_add_u32", vT0, vT1, 3, vT0))
    p(I("s_lshl_b32", sT0, sT0, 14))
    p(I("s_and_b32", sT1, sW, 1))
    p(I("s_lshl_b32", sT1, sT1, 6))
    p(I("s_add_u32", sT0, sT0, sT1))
    for x in range(2):
        p(I("buffer_store_dwordx2", V(20 + 2 * x, 2), vT0, sOUT, sT0, mods=f"offen offset:{x*32}"))
    p(LABEL(f"L_{name}_end"))
    p(I("s_endpgm"))
    paths = [pre + body + body + post]
    apply_waits(paths)
    apply_hazards(paths)
    txt = render(pre) + "\n" + render(body) + "\n" + render(post)
    desc = dict(vgpr=NV, sgpr=48, accum=NV)
    return txt, desc

def kernel_wrap(name, txt, desc):
    return f""".text
.globl {name}
.p2align 8
.type {name},@function
{name}:
{txt}
"""
def kernel_desc(name, desc):
    return f""".amdhsa_kernel {name}
  .amdhsa_next_free_vgpr {desc['vgpr']}
  .amdhsa_next_free_sgpr {desc['sgpr']}
  .amdhsa_accum_offset {desc['accum']}
  .amdhsa_group_segment_fixed_size 0
  .amdhsa_kernarg_size 64
  .amdhsa_user_sgpr_count 2
  .amdhsa_user_sgpr_kernarg_segment_ptr 1
  .amdhsa_system_sgpr_workgroup_id_x 1
.end_amdhsa_kernel
"""
if __name__ == "__main__":
    n = "oproj_kernel"
    txt, desc = gen_k2(n)
    print(f"; @launch kernel={n} grid=(256,1,1) block=(512,1,1) lds={K2_LDS}")
    print('.amdgcn_target "amdgcn-amd-amdhsa--gfx950"')
    print(kernel_wrap(n, txt, desc))
    print('.section .rodata,"a"\n.p2align 6')
    print(kernel_desc(n, desc))
```

```python
import sys
from k1 import gen_k1, K1_LDS
from k2 import gen_k2, K2_LDS, kernel_wrap, kernel_desc
args = sys.argv[1:]
stamps = "--stamps" in args
only1 = "--k1" in args
kvm = "nt" if "--nt" in args else ""
hdr = open("standalone__mha_block_cached__near_ridge.s.ref").read().split("; Override")[0]
n1, n2 = "attn_kernel", "oproj_kernel"
t1, d1 = gen_k1(n1, stamps=stamps, kv_mods=kvm)
t2, d2 = gen_k2(n2)
out = [hdr.rstrip()]
out.append(f"; @launch kernel={n1} grid=(256,1,1) block=(512,1,1) lds={K1_LDS}")
if not only1:
    out.append(f"; @launch kernel={n2} grid=(256,1,1) block=(512,1,1) lds={K2_LDS}")
out.append('.amdgcn_target "amdgcn-amd-amdhsa--gfx950"')
out.append(kernel_wrap(n1, t1, d1))
out.append(kernel_wrap(n2, t2, d2))
out.append('.section .rodata,"a"\n.p2align 6')
out.append(kernel_desc(n1, d1))
out.append(".p2align 6")
out.append(kernel_desc(n2, d2))
print("\n".join(out))
```

```python
from ir import *
import struct

def f32bits(x): return struct.unpack("<I", struct.pack("<f", x))[0]
CSCALE = (128 ** -0.5) * 1.4426950408889634
BLK = 1056
TILE = 16 * BLK
NSLOT = 9
XB0 = 2 * TILE
XBSZ = 26 * BLK
WQ_BASE = XB0 + 2 * XBSZ
WQ_CH = 8 * BLK
NWQ = 8
SY = WQ_BASE + NWQ * WQ_CH
Q13X = SY + 256
HML = Q13X + 4096
HX = 7 * TILE
K1_LDS = 163840
OOB = 0x40000000
MFMA = "v_mfma_f32_16x16x32_bf16"
F_RDYF, F_RDYKV, F_DONEF, F_DONEKV, F_HFIN = 0, 8, 16, 32, 64

sX, sWQ, sK, sV, sO = S(8, 4), S(12, 4), S(16, 4), S(20, 4), S(24, 4)
pIN = S(28, 8); pWS = S(36, 2)
sW, sB, sH = S(38), S(39), S(40)
sT0, sT1, sT2, sT3 = S(41), S(42), S(43), S(44)
sCNT, sNEED, sKSL, sVSL, sKD, sVD = S(45), S(46), S(47), S(48), S(49), S(50)
sNEED2 = S(51)
sC2 = S(52, 2)
sHW, sM0, sSO, sTI, sLW = S(54), S(55), S(56), S(57), S(58)
sC2T, sROT, sDN, sBUD = S(59), S(60), S(61), S(62)
sSTAMP = 64
sDBG = S(96, 4)

def sched(mfmas, fixed, flex, cap=2.0):
    out = []; qs = [list(q) for q in flex]
    placed = set()
    def ready(item, g):
        ins, cost, early = item[:3]
        if early > g: return False
        if len(item) > 3 and any(id(d) not in placed for d in item[3]): return False
        return True
    for g, m in enumerate(mfmas):
        out.append(m)
        room = cap
        for ins, cost in fixed.get(g, []):
            out.append(ins); room -= cost; placed.add(id(ins))
        progress = True
        while progress:
            progress = False
            for q in qs:
                if q and ready(q[0], g) and q[0][1] <= room + 1e-9:
                    it = q.pop(0); out.append(it[0]); room -= it[1]; placed.add(id(it[0])); progress = True
                    break
    while any(qs):
        for q in qs:
            if q and ready(q[0], 10 ** 6):
                it = q.pop(0); out.append(it[0]); placed.add(id(it[0])); break
        else:
            raise RuntimeError("unschedulable")
    return out

def xlane_max(lst, x, t0, t1):
    a = lst.append
    a(I("v_mov_b32", t0, x)); a(I("v_mov_b32", t1, x))
    a(I("v_permlane32_swap_b32", t0, t1))
    a(I("v_max_f32", x, t0, t1))
    a(I("v_mov_b32", t0, x)); a(I("v_mov_b32", t1, x))
    a(I("v_permlane16_swap_b32", t0, t1))
    a(I("v_max_f32", x, t0, t1))

def gen_k1(name, stamps=False, kv_mods="", exp=(), f_mods="", o_mods="", kvwin=16, kvres=22):
    L = lambda s: f"L_{name}_{s}"
    spins = []
    def STAMP(lst, i):
        if stamps:
            lst.append(I("s_memrealtime", S(sSTAMP + 2 * i, 2)))
            lst.append(I("s_memtime", S(sSTAMP + 16 + 2 * i, 2)))
            lst.append(WAIT(lgkm=0))
    def STAMP_OUT(lst, n, vt, vd):
        if not stamps: return
        a = lst.append
        a(I("s_lshl_b32", sT0, S(2), 3)); a(I("s_add_u32", sT0, sT0, sW)); a(I("s_lshl_b32", sT0, sT0, 6))
        a(I("v_mov_b32", vt, 0))
        for i in range(n):
            a(I("v_mov_b32", vd, S(sSTAMP + 2 * i)))
            a(I("buffer_store_dword", vd, vt, sDBG, sT0, mods=f"offen offset:{4*i}"))
            a(I("s_nop", 1))
            a(I("v_mov_b32", vd, S(sSTAMP + 16 + 2 * i)))
            a(I("buffer_store_dword", vd, vt, sDBG, sT0, mods=f"offen offset:{32+4*i}"))
            a(I("s_nop", 1))
        a(WAIT(vm=0))
    vSY = V(0)
    vLane = V(1)
    def mods(*m): return " ".join(x for x in m if x)

    def check2(site, vF, off, need):
        early = I("ds_read_b64", vF, vSY, mods=f"offset:{off}")
        chk = [I("v_min_u32", vF[0], vF[0], vF[1]), I("v_cmp_gt_u32", VCC, need, vF[0]),
               I("s_cbranch_vccnz", L("spin_" + site)), LABEL(L("ret_" + site))]
        if "nosync" in exp: chk = chk[:2]
        sp = [LABEL(L("spin_" + site)), I("ds_read_b64", vF, vSY, mods=f"offset:{off}"), WAIT(lgkm=0),
              I("v_min_u32", vF[0], vF[0], vF[1]), I("v_cmp_gt_u32", VCC, need, vF[0]),
              I("s_cbranch_vccz", L("ret_" + site)), I("s_sleep", 1), I("s_sub_u32", sBUD, sBUD, 1),
              I("s_cbranch_scc0", L("spin_" + site)), I("s_endpgm")]
        if "nosync" not in exp: spins.append(sp)
        return early, chk
    def poll(lst, site, regs, off, nwords, need, sleep=True):
        if "nosync" in exp: return
        a = lst.append
        a(LABEL(L("poll_" + site)))
        a(I("ds_read_b128" if nwords >= 4 else "ds_read_b64", regs.sub(0, 4 if nwords >= 4 else 2), vSY, mods=f"offset:{off}"))
        if nwords == 6: a(I("ds_read_b64", regs.sub(4, 2), vSY, mods=f"offset:{off+16}"))
        a(WAIT(lgkm=0))
        if nwords == 2: a(I("v_min_u32", regs[0], regs[0], regs[1]))
        else:
            a(I("v_min3_u32", regs[0], regs[0], regs[1], regs[2]))
            if nwords == 4: a(I("v_min_u32", regs[0], regs[0], regs[3]))
            else:
                a(I("v_min3_u32", regs[0], regs[0], regs[3], regs[4])); a(I("v_min_u32", regs[0], regs[0], regs[5]))
        a(I("v_cmp_gt_u32", VCC, need, regs[0]))
        a(I("s_cbranch_vccz", L("pok_" + site)))
        if sleep: a(I("s_sleep", 1))
        a(I("s_sub_u32", sBUD, sBUD, 1)); a(I("s_cbranch_scc0", L("poll_" + site))); a(I("s_endpgm"))
        a(LABEL(L("pok_" + site)))

    pre = []; e = pre.append
    e(I("s_cmp_ge_u32", S(2), 256))
    e(I("s_cbranch_scc1", L("end")))
    e(I("s_load_dwordx8", pIN, S(0, 2), 0))
    e(I("s_load_dwordx2", pWS, S(0, 2), 56))
    e(I("v_lshrrev_b32", V(2), 6, V(0)))
    e(I("v_and_b32", vLane, 63, V(0)))
    e(I("v_readfirstlane_b32", sW, V(2)))
    e(I("s_and_b32", sT0, S(2), 1)); e(I("s_lshl_b32", sT0, sT0, 2))
    e(I("s_bfe_u32", sT1, S(2), (2 << 16) | 3)); e(I("s_add_u32", sB, sT0, sT1))
    e(I("s_bfe_u32", sT0, S(2), (2 << 16) | 1)); e(I("s_lshl_b32", sT0, sT0, 3))
    e(I("s_lshr_b32", sT1, S(2), 5)); e(I("s_add_u32", sH, sT0, sT1))
    e(I("s_mov_b32", sC2[0], f32bits(CSCALE))); e(I("s_mov_b32", sC2[1], f32bits(CSCALE)))
    e(I("s_mov_b32", sC2T, 2 * TILE)); e(I("s_mov_b32", sBUD, 400000))
    e(I("s_bfe_u32", sROT, S(2), (3 << 16) | 3))
    e(I("v_lshlrev_b32", V(3), 2, vLane)); e(I("v_add_u32", V(3), SY, V(3))); e(I("v_mov_b32", V(4), 0))
    e(I("ds_write_b32", V(3), V(4)))
    e(I("v_mov_b32", vSY, SY))
    e(WAIT(lgkm=0))
    STAMP(pre, 0)
    e(I("s_mul_i32", sT0, sB, 212992))
    e(I("s_add_u32", sX[0], pIN[0], sT0)); e(I("s_addc_u32", sX[1], pIN[1], 0))
    e(I("s_mov_b32", sX[2], 212992)); e(I("s_mov_b32", sX[3], 0x20000))
    e(I("s_lshl_b32", sT0, sH, 8))
    e(I("s_add_u32", sWQ[0], pIN[6], sT0)); e(I("s_addc_u32", sWQ[1], pIN[7], 0))
    e(I("s_sub_u32", sWQ[2], 4194304, sT0)); e(I("s_mov_b32", sWQ[3], 0x20000))
    e(I("s_lshl_b32", sT0, sB, 5)); e(I("s_add_u32", sT0, sT0, sH)); e(I("s_lshl_b32", sT0, sT0, 17))
    e(I("s_add_u32", sK[0], pIN[2], sT0)); e(I("s_addc_u32", sK[1], pIN[3], 0))
    e(I("s_mov_b32", sK[2], 131072)); e(I("s_mov_b32", sK[3], 0x20000))
    e(I("s_add_u32", sV[0], pIN[4], sT0)); e(I("s_addc_u32", sV[1], pIN[5], 0))
    e(I("s_mov_b32", sV[2], 131072)); e(I("s_mov_b32", sV[3], 0x20000))
    e(I("s_mul_i32", sT0, sB, 13 * 131072)); e(I("s_lshl_b32", sT1, sH, 12)); e(I("s_add_u32", sT0, sT0, sT1))
    e(I("s_add_u32", sO[0], pWS[0], sT0)); e(I("s_addc_u32", sO[1], pWS[1], 0))
    e(I("s_sub_u32", sO[2], 13 * 131072, sT1)); e(I("s_mov_b32", sO[3], 0x20000))
    if stamps:
        e(I("s_add_u32", sDBG[0], pWS[0], 0x4000000)); e(I("s_addc_u32", sDBG[1], pWS[1], 0))
        e(I("s_mov_b32", sDBG[2], 0x100000)); e(I("s_mov_b32", sDBG[3], 0x20000))
    e(I("s_cmp_ge_u32", sW, 4))
    e(I("s_cbranch_scc1", L("helper")))

    def lane_kv(lst, vKl, vVl, t0):
        a = lst.append
        a(I("v_and_b32", t0, 7, vLane)); a(I("v_mul_u32_u24", vKl, BLK, t0))
        a(I("v_bfe_u32", t0, vLane, 3, 1)); a(I("v_lshl_add_u32", vKl, t0, 8, vKl))
        a(I("v_lshrrev_b32", t0, 4, vLane)); a(I("v_lshl_add_u32", vKl, t0, 4, vKl))
        a(I("v_bfe_u32", t0, vLane, 2, 3)); a(I("v_mul_u32_u24", vVl, BLK, t0))
        a(I("v_lshrrev_b32", t0, 5, vLane)); a(I("v_lshl_add_u32", vVl, t0, 8, vVl))
        a(I("v_and_b32", t0, 3, vLane)); a(I("v_lshl_add_u32", vVl, t0, 3, vVl))

    vK, vV, vOr = V(2), V(3), V(4)
    vT0, vT1, vT2 = V(5), V(6), V(7)
    NEGM = [V(8 + 4 * t, 4) for t in range(3)]
    SB = [[[V(20 + ((e_ * 2 + sb) * 3 + t) * 4, 4) for t in range(3)] for sb in range(2)] for e_ in range(2)]
    vT3, vSYd, vF = V(68), V(69), V(70, 2)
    O = [[V(72 + (t * 8 + T) * 4, 4) for T in range(8)] for t in range(3)]
    Q = [[V(168 + (t * 4 + kk) * 4, 4) for kk in range(4)] for t in range(3)]
    LA_ = [A(4 * t, 4) for t in range(3)]
    ONES = A(12, 4)
    POOL = [A(16 + 4 * i, 4) for i in range(6)]
    XR = [[[V((20 if st == 0 else 168) + (h_ * 4 + t) * 4, 4) for t in range(4)] for h_ in range(2)] for st in range(2)]
    Q13A = [V(52, 4), V(56, 4)]
    W13 = [V(60, 4), V(64, 4)]
    WQF = [A(4 * T, 4) for T in range(8)]
    vXa = [V(8), V(9), V(10), V(11)]
    vWQ, vW13 = V(4), V(12)
    cq = []; e = cq.append
    lane_kv(cq, vK, vV, vT0)
    e(I("v_lshrrev_b32", vT0, 5, vLane)); e(I("v_lshl_add_u32", vWQ, vT0, 8, vV))
    e(I("v_add_u32", vWQ, WQ_BASE, vWQ))
    e(I("s_lshl_b32", sT0, sW, 6)); e(I("v_add_u32", vW13, sT0, vWQ))
    e(I("v_and_b32", vT0, 3, vLane)); e(I("v_mul_u32_u24", vT0, BLK, vT0))
    e(I("v_bfe_u32", vT1, vLane, 2, 2)); e(I("v_lshl_add_u32", vT0, vT1, 7, vT0))
    e(I("v_lshrrev_b32", vT1, 4, vLane)); e(I("v_lshl_add_u32", vT0, vT1, 4, vT0))
    for t in range(3):
        e(I("s_mul_i32", sT0, sW, 3)); e(I("s_add_u32", sT0, sT0, t))
        e(I("s_lshr_b32", sT1, sT0, 1)); e(I("s_mul_i32", sT1, sT1, 4 * BLK))
        e(I("s_and_b32", sT0, sT0, 1)); e(I("s_lshl_b32", sT0, sT0, 9))
        e(I("s_add_u32", sT0, sT0, sT1)); e(I("s_add_u32", sT0, sT0, XB0))
        e(I("v_add_u32", vXa[t], sT0, vT0))
    e(I("v_and_b32", vT0, 1, vLane)); e(I("v_mul_u32_u24", vT0, BLK, vT0))
    e(I("v_bfe_u32", vT2, vLane, 1, 3)); e(I("v_lshl_add_u32", vT0, vT2, 7, vT0))
    e(I("v_lshl_add_u32", vT0, vT1, 4, vT0))
    e(I("v_add_u32", vXa[3], XB0 + 24 * BLK, vT0))
    e(I("s_lshl_b32", sT0, sW, 2)); e(I("s_add_u32", sT0, sT0, SY)); e(I("v_mov_b32", vSYd, sT0))
    for t in range(3):
        for T in range(8):
            for r in range(4): e(I("v_mov_b32", O[t][T][r], 0))
    for R in Q13A:
        for r in range(4): e(I("v_mov_b32", R[r], 0))
    e(I("s_barrier"))
    def xreads(c, st):
        return [I("ds_read_b128", XR[st][h_][t], vXa[t], mods=f"offset:{(c & 1) * XBSZ + h_ * 64}") for h_ in range(2) for t in range(4)]
    def wqreads(s, T):
        return [I("ds_read_b64_tr_b16", WQF[T].sub(2 * hh, 2), vWQ, mods=f"offset:{(s & 7) * WQ_CH + hh * 256 + T * 32}") for hh in range(2)]
    def w13reads(s):
        return [I("ds_read_b64_tr_b16", W13[x].sub(2 * hh, 2), vW13, mods=f"offset:{(s & 7) * WQ_CH + hh * 256 + x * 32}")
                for x in range(2) for hh in range(2)]
    def done_write(off):
        return [I("v_mov_b32", vF[0], sDN), I("ds_write_b32", vSYd, vF[0], mods=f"offset:{off}")]
    poll(cq, "cq0", vF, F_RDYF, 2, 2)
    cq.extend(xreads(0, 0))
    LAQ = 4
    for T in range(LAQ): cq.extend(wqreads(0, T))
    e(I("s_mov_b32", sDN, 1)); cq.extend(done_write(F_DONEF))
    e(I("s_mov_b32", sNEED, 4))
    e(I("s_mov_b32", sCNT, 0))
    STAMP(cq, 1)
    e(LABEL(L("cq_loop")))
    mf = []; fixed = {}
    def fx(g, ins, cost=1): fixed.setdefault(g, []).append((ins, cost))
    for s in range(8):
        st = (s >> 1) & 1; h_ = s & 1
        base = len(mf)
        early, chk = check2(f"cq{s}", vF, F_RDYF, sNEED)
        fx(base + 2, early)
        for i, r in enumerate(w13reads(s)): fx(base + 3 * i + 2 + (3 if i == 0 else 0), r)
        for T in range(8):
            g0 = len(mf)
            for t in range(3):
                mf.append(I(MFMA, O[t][T], WQF[T], XR[st][h_][t], O[t][T]))
            if T in (5, 6):
                mf.append(I(MFMA, Q13A[T - 5], W13[T - 5], XR[st][h_][3], Q13A[T - 5]))
            f = s * 8 + T + LAQ
            s2, T2 = f >> 3, f & 7
            if T2 == 0:
                fx(g0 - 1, I("s_add_u32", sDN, sDN, 1), 0)
                for x in chk: fx(g0, x, 0.5 if x.cls == "valu" else 0)
                fx(g0, I("s_add_u32", sNEED, sNEED, 1 if (s & 1) == 0 else 2), 0)
                fx(g0, I("s_min_u32", sNEED, sNEED, 24), 0)
            rr = wqreads(s2, T2)
            fx(g0 + (1 if T2 == 0 else 0), rr[0]); fx(g0 + (2 if T2 == 0 else 1), rr[1])
            if T2 == 0:
                for x in done_write(F_DONEF): fx(g0, x, 0.5)
            if h_ == 1 and T < 4:
                xr = xreads((s >> 1) + 1, 1 - st)
                fx(g0 + 2, xr[2 * T]); fx(g0 + 2, xr[2 * T + 1])
    cqb = sched(mf, fixed, [])
    cqb.append(I("s_add_u32", sCNT, sCNT, 1))
    cqb.append(I("s_cmp_lt_u32", sCNT, 2))
    cqb.append(I("s_cbranch_scc1", L("cq_loop")))
    cv = []; e = cv.append
    e(I("s_mov_b32", sDN, 100)); cv.extend(done_write(F_DONEF))
    STAMP(cv, 2)
    allp = [(Q13A[0], Q13A[1], Q13A[0])] + [(O[t][2 * kk], O[t][2 * kk + 1], Q[t][kk]) for kk in range(4) for t in range(3)]
    for X, Y, Z in allp:
        for R in (X, Y):
            e(I("v_pk_mul_f32", R.sub(0, 2), R.sub(0, 2), sC2)); e(I("v_pk_mul_f32", R.sub(2, 2), R.sub(2, 2), sC2))
        e(I("v_cvt_pk_bf16_f32", Z[0], X[0], X[1])); e(I("v_cvt_pk_bf16_f32", Z[1], X[2], X[3]))
        e(I("v_cvt_pk_bf16_f32", Z[2], Y[0], Y[1])); e(I("v_cvt_pk_bf16_f32", Z[3], Y[2], Y[3]))
    for X, Y, Z in allp:
        e(I("v_permlane32_swap_b32", Z[0], Z[2])); e(I("v_permlane32_swap_b32", Z[1], Z[3]))
    for X, Y, Z in allp:
        e(I("v_permlane16_swap_b32", Z[0], Z[2])); e(I("v_permlane16_swap_b32", Z[1], Z[3]))
    e(I("v_lshlrev_b32", vT0, 4, vLane))
    e(I("s_lshl_b32", sT0, sW, 10)); e(I("s_add_u32", sT0, sT0, Q13X))
    e(I("v_add_u32", vT0, sT0, vT0))
    e(I("ds_write_b128", vT0, Q13A[0]))
    e(I("s_mov_b32", sDN, 101)); cv.extend(done_write(F_DONEF))
    zero = []
    for t in range(3):
        for T in range(8):
            for r in range(4): zero.append(I("v_mov_b32", O[t][T][r], 0))
    zero.append(I("v_mov_b32", vT3, 0x3F803F80))
    for t in range(3):
        for r in range(4): zero.append(I("v_accvgpr_write_b32", LA_[t][r], 0))
    for r in range(4): zero.append(I("v_accvgpr_write_b32", ONES[r], vT3))
    e(I("v_add_u32", vV, TILE, vV))
    e(I("s_mov_b32", sKSL, 0)); e(I("s_mov_b32", sVSL, 1)); e(I("s_mov_b32", sKD, 0))
    e(I("s_mov_b32", sCNT, 0)); e(I("s_mov_b32", sDN, 0))
    e(I("s_mov_b32", sNEED, 2)); e(I("s_mov_b32", sNEED2, 3))
    poll(cv, "k0", vF, F_RDYKV, 2, 1)
    STAMP(cv, 3)
    def kread(buf, addr, uh, sb, kk):
        return I("ds_read_b128", buf, addr, mods=f"offset:{uh * 8 * BLK + sb * 512 + kk * 64}")
    def vreads(buf, uh, T):
        return [I("ds_read_b64_tr_b16", buf.sub(2 * hh, 2), vV, mods=f"offset:{uh * 8 * BLK + hh * 512 + T * 32}") for hh in range(2)]
    def qk_simple(lst, addr, uh, D, C):
        for sb in range(2):
            for kk in range(4): lst.append(kread(POOL[kk], addr, uh, sb, kk))
            for kk in range(4):
                for t in range(3):
                    c = D[sb][t] if kk else (0 if C is None else C[t])
                    lst.append(I(MFMA, D[sb][t], POOL[kk], Q[t][kk], c))
    def rowmax(lst, D, t, dst):
        a = lst.append
        x, y = D[0][t], D[1][t]
        a(I("v_max3_f32", dst, x[0], x[1], x[2])); a(I("v_max3_f32", dst, dst, x[3], y[0]))
        a(I("v_max3_f32", dst, dst, y[1], y[2])); a(I("v_max_f32", dst, dst, y[3]))
        xlane_max(lst, dst, vT1, vT2)
    def exps(D, t, sb): return [I("v_exp_f32", D[sb][t][r], D[sb][t][r]) for r in range(4)]
    def cvts(D, t):
        x, y = D[0][t], D[1][t]
        return [I("v_cvt_pk_bf16_f32", x[0], x[0], x[1]), I("v_cvt_pk_bf16_f32", x[1], x[2], x[3]),
                I("v_cvt_pk_bf16_f32", x[2], y[0], y[1]), I("v_cvt_pk_bf16_f32", x[3], y[2], y[3])]
    P8 = POOL + [Reg("a", 0, 4), Reg("a", 4, 4)]
    for i in range(8): e(kread(P8[i], vK, 0, i >> 2, i & 3))
    zq = list(zero)
    for i in range(8):
        for t in range(3):
            e(I(MFMA, SB[0][i >> 2][t], P8[i], Q[t][i & 3], SB[0][i >> 2][t] if i & 3 else 0))
            for _ in range(3):
                if zq and zq[0].op == "v_mov_b32": e(zq.pop(0))
    cv.extend(zq)
    for t in range(3):
        rowmax(cv, SB[0], t, vT0)
        e(I("v_sub_f32", NEGM[t][0], "0xc0e00000", vT0))
        for r in range(1, 4): e(I("v_mov_b32", NEGM[t][r], NEGM[t][0]))
        for sb in range(2):
            for r in range(4): e(I("v_add_f32", SB[0][sb][t][r], SB[0][sb][t][r], NEGM[t][0]))
    BUFSEQ = list(range(6)) * 2 + list(range(5)) * 4
    LAF = 4
    def frag_reads(f):
        f &= 31
        buf = POOL[BUFSEQ[f]]
        blk, i = f >> 3, f & 7
        if blk == 0: return [kread(buf, vK, 1, i >> 2, i & 3)]
        if blk == 1: return vreads(buf, 0, i)
        if blk == 2: return [kread(buf, vK, 0, i >> 2, i & 3)]
        return vreads(buf, 1, i)
    NB = 18
    def exp_order(D):
        o = []
        for t in range(3): o += [(x, t) for x in exps(D, t, 0)]
        for t in range(3): o += [(x, t) for x in exps(D, t, 1)]
        return o
    eo0 = exp_order(SB[0])
    for x, t in eo0[:NB]: e(x)
    STAMP(cv, 4)
    for f in range(LAF): cv.extend(frag_reads(f))
    e(LABEL(L("c_loop")))
    body = []
    def blockA(par, fbase, extra):
        D = SB[1 - par]; Pn = SB[par]
        mf = []; fixed = {}
        for i in range(8):
            f = fbase + i; sb, kk = i >> 2, i & 3
            g0 = len(mf)
            for t in range(3):
                mf.append(I(MFMA, D[sb][t], POOL[BUFSEQ[f]], Q[t][kk], NEGM[t] if kk == 0 else D[sb][t]))
            for g, items in extra.items():
                if g == g0: fixed.setdefault(g, []).extend(items)
            for j, r in enumerate(frag_reads(f + LAF)): fixed.setdefault(g0 + j, []).append((r, 1))
        for g, items in extra.items():
            if g % 3: fixed.setdefault(g, []).extend(items)
        eo = exp_order(Pn)[NB:]
        qe = [(x, 2, 0) for x, t in eo]
        dep = {t: [x for x, tt in eo if tt == t] for t in range(3)}
        qs = []
        p = [Pn[0][t][r] for t in range(3) for r in range(4)]
        for t in range(3):
            for x in cvts(Pn, t): qs.append((x, 1, 0, dep[t]))
            if t == 0:
                qs.append((I("v_or3_b32", vOr, p[0], p[1], p[2]), 1, 0))
            elif t == 1:
                qs.append((I("v_or3_b32", vOr, vOr, p[3], p[4]), 1, 0))
                qs.append((I("v_or3_b32", vOr, vOr, p[5], p[6]), 1, 0))
            else:
                qs.append((I("v_or3_b32", vOr, vOr, p[7], p[8]), 1, 0))
                qs.append((I("v_or3_b32", vOr, vOr, p[9], p[10]), 1, 0))
                qs.append((I("v_or_b32", vOr, vOr, p[11]), 1, 0))
        qs.append((I("v_and_b32", vOr, 0x40004000, vOr), 1, 0))
        qs.append((I("v_cmp_ne_u32", VCC, 0, vOr), 1, 23))
        out = sched(mf, fixed, [qe, qs])
        if "norare" not in exp: out.append(I("s_cbranch_vccnz", L(f"c_rare{par}")))
        out.append(LABEL(L(f"c_ret{par}")))
        return out
    def blockB(par, fbase, extra):
        Pn = SB[par]; Dn = SB[1 - par]
        mf = []; fixed = {}
        for t in range(3):
            mf.append(I(MFMA, LA_[t], ONES, Pn[0][t], LA_[t]))
        for g, items in extra.items():
            if g < 3 or g % 3: fixed.setdefault(g, []).extend(items)
        for i in range(8):
            f = fbase + i
            g0 = len(mf)
            for t in range(3):
                mf.append(I(MFMA, O[t][i], POOL[BUFSEQ[f]], Pn[0][t], O[t][i]))
            for g, items in extra.items():
                if g == g0: fixed.setdefault(g, []).extend(items)
            for j, r in enumerate(frag_reads(f + LAF)): fixed.setdefault(g0 + j, []).append((r, 1))
        qe = [(x, 2, 0 if k < 12 else 4) for k, (x, t) in enumerate(exp_order(Dn)[:NB])]
        return sched(mf, fixed, [qe])
    def slot_adv(sSL, sD):
        return [I("s_add_u32", sSL, sSL, 2), I("s_cmp_ge_u32", sSL, NSLOT),
                I("s_cselect_b32", sD, (2 - NSLOT) * TILE, sC2T), I("s_cselect_b32", sT0, NSLOT, 0),
                I("s_sub_u32", sSL, sSL, sT0)]
    c1 = lambda lst: [(x, 0.5 if x.cls == "valu" else (1 if x.cls.startswith("lds") else 0)) for x in lst]
    eV, cV = check2("cv", vF, F_RDYKV, sNEED)
    eK, cK = check2("ck", vF, F_RDYKV, sNEED2)
    body += blockA(0, 0, {4: c1([eV]), 12: c1(cV)})
    body += blockB(0, 8, {0: c1(slot_adv(sKSL, sKD)), 2: c1([I("v_add_u32", vK, sKD, vK)]), 5: c1([eK]), 15: c1(cK)})
    body += blockA(1, 16, {})
    nx = [I("s_add_u32", sNEED, sNEED, 2), I("s_add_u32", sNEED2, sNEED2, 2), I("s_min_u32", sNEED2, sNEED2, 16),
          I("s_add_u32", sDN, sDN, 2)]
    body += blockB(1, 24, {16: c1(slot_adv(sVSL, sVD) + nx), 17: c1(done_write(F_DONEKV)), 20: c1([I("v_add_u32", vV, sVD, vV)])})
    def filt(lst):
        o = []
        for x in lst:
            if "noexp" in exp and x.op == "v_exp_f32": continue
            if "nolds" in exp and x.cls == "ldsrd": continue
            if "notr" in exp and x.op == "ds_read_b64_tr_b16": continue
            if "nob128" in exp and x.op == "ds_read_b128": continue
            if "nowr" in exp and x.cls == "ldswr": continue
            if "novalu" in exp and x.cls == "valu" and x.op != "v_add_u32": continue
            if "nomfma" in exp and x.cls == "mfma": continue
            o.append(x)
        return o
    body = filt(body); cqb = filt(cqb)
    body.append(I("s_add_u32", sCNT, sCNT, 1))
    body.append(I("s_cmp_lt_u32", sCNT, 8))
    body.append(I("s_cbranch_scc1", L("c_loop")))
    ce = []; e = ce.append
    STAMP(ce, 5)
    e(I("v_lshlrev_b32", vT3, 4, vLane))
    e(I("s_mul_i32", sT1, sW, 3 * 131072))
    vR = V(8, 2)
    for t in range(3):
        e(I("v_accvgpr_read_b32", vR[0], LA_[t][0]))
        e(I("v_rcp_f32", vR[0], vR[0]))
        e(I("v_mov_b32", vR[1], vR[0]))
        for kk in range(4):
            X, Y = O[t][2 * kk], O[t][2 * kk + 1]
            for R in (X, Y):
                e(I("v_pk_mul_f32", R.sub(0, 2), R.sub(0, 2), vR)); e(I("v_pk_mul_f32", R.sub(2, 2), R.sub(2, 2), vR))
            e(I("v_cvt_pk_bf16_f32", X[0], X[0], X[1])); e(I("v_cvt_pk_bf16_f32", X[1], X[2], X[3]))
            e(I("v_cvt_pk_bf16_f32", X[2], Y[0], Y[1])); e(I("v_cvt_pk_bf16_f32", X[3], Y[2], Y[3]))
            e(I("buffer_store_dwordx4", X, vT3, sO, sT1, mods=mods(f"offen offset:{kk*1024}", o_mods)))
        e(I("s_add_u32", sT1, sT1, 131072))
    if stamps: e(WAIT(vm=0))
    STAMP(ce, 6)
    STAMP_OUT(ce, 7, vT0, vT1)
    e(I("s_endpgm"))
    rare = []
    for par in range(2):
        r_ = []; e = r_.append
        e(LABEL(L(f"c_rare{par}")))
        e(WAIT(lgkm=0)); e(I("s_nop", 15))
        if par == 0:
            aN, uhN, aN1, uhN1 = vK, 0, vK, 1
        else:
            e(I("v_subrev_u32", vT3, sKD, vK))
            aN, uhN, aN1, uhN1 = vT3, 1, vK, 0
        Dn, Dn1 = SB[par], SB[1 - par]
        qk_simple(r_, aN, uhN, Dn, None)
        for t in range(3):
            rowmax(r_, Dn, t, vT0)
            e(I("v_add_f32", vT0, "0x40e00000", vT0))
            e(I("v_max_f32_e64", vT0, vT0, "-" + str(NEGM[t][0])))
            e(I("v_sub_f32_e64", vT1, "-" + str(NEGM[t][0]), vT0))
            e(I("v_exp_f32", vT1, vT1))
            for r in range(4): e(I("v_sub_f32", NEGM[t][r], 0, vT0))
            for T in range(8):
                for r in range(4): e(I("v_mul_f32", O[t][T][r], O[t][T][r], vT1))
            for r in range(4):
                e(I("v_accvgpr_read_b32", vT2, LA_[t][r])); e(I("v_mul_f32", vT2, vT2, vT1)); e(I("v_accvgpr_write_b32", LA_[t][r], vT2))
            for sb in range(2):
                for r in range(4): e(I("v_add_f32", Dn[sb][t][r], Dn[sb][t][r], NEGM[t][0]))
            r_.extend(exps(Dn, t, 0)); r_.extend(exps(Dn, t, 1)); r_.extend(cvts(Dn, t))
        qk_simple(r_, aN1, uhN1, Dn1, NEGM)
        fb = 8 if par == 0 else 24
        for f in range(fb, fb + LAF): r_.extend(frag_reads(f))
        e(WAIT(lgkm=0)); e(I("s_nop", 15))
        e(I("s_branch", L(f"c_ret{par}")))
        rare.append(r_)

    hT0, hT1, hT2, hT3 = V(5), V(6), V(7), V(4)
    hP = V(8, 8)
    hSYw = V(16); hVal = V(17)
    hp = []; e = hp.append
    e(LABEL(L("helper")))
    if "noload" in exp: e(I("s_endpgm"))
    e(I("s_sub_u32", sHW, sW, 4))
    e(I("s_and_b32", sLW, sHW, 1))
    e(I("s_cmp_ge_u32", sHW, 2))
    e(I("s_cbranch_scc1", L("h23")))
    h01 = []; e = h01.append
    hXo, hXo2, hWo = V(20), V(21), [V(22 + m) for m in range(4)]
    e(I("v_and_b32", hT0, 7, vLane)); e(I("v_lshlrev_b32", hT0, 4, hT0)); e(I("v_lshrrev_b32", hT1, 3, vLane))
    e(I("v_lshl_add_u32", hXo, hT1, 12, hT0)); e(I("v_lshl_add_u32", hXo2, hT1, 11, hT0))
    e(I("s_lshl_b32", sT0, sLW, 10)); e(I("s_add_u32", sT0, sT0, 192 * 1024)); e(I("v_add_u32", hXo2, sT0, hXo2))
    e(I("s_mul_i32", sT0, sLW, 96 * 1024)); e(I("v_add_u32", hXo, sT0, hXo))
    e(I("v_and_b32", hT0, 15, vLane)); e(I("v_lshlrev_b32", hT0, 4, hT0))
    e(I("v_bfe_u32", hT1, vLane, 4, 1)); e(I("v_lshl_add_u32", hT0, hT1, 15, hT0))
    e(I("v_lshrrev_b32", hT1, 5, vLane)); e(I("v_lshl_add_u32", hT0, hT1, 17, hT0))
    e(I("s_lshl_b32", sT0, sLW, 16))
    e(I("v_add_u32", hWo[0], sT0, hT0))
    for m in range(1, 4): e(I("v_add_u32", hWo[m], m * (8192 - BLK), hWo[0]))
    e(I("s_mul_i32", sT3, sLW, 12 * BLK)); e(I("s_add_u32", sT3, sT3, XB0))
    e(I("s_mul_i32", sT2, sLW, BLK)); e(I("s_add_u32", sT2, sT2, XB0 + 24 * BLK))
    e(I("s_mul_i32", sM0, sLW, 4 * BLK)); e(I("s_add_u32", sM0, sM0, WQ_BASE))
    e(I("s_lshl_b32", sT0, sLW, 2)); e(I("s_add_u32", sT0, sT0, SY + F_RDYF)); e(I("v_mov_b32", hSYw, sT0))
    def x_issue(lst, buf):
        a = lst.append
        a(I("s_add_u32", sSO, sTI, sROT)); a(I("s_and_b32", sSO, sSO, 7)); a(I("s_lshl_b32", sSO, sSO, 7))
        if "nox" in exp: a(I("s_mov_b32", sSO, OOB))
        for n in range(12):
            a(I("s_add_u32", M0, sT3, buf * XBSZ + n * BLK))
            a(I("s_add_u32", sT0, sSO, ((n >> 2) * 32 + (n & 3)) * 1024))
            a(I("buffer_load_dwordx4", hXo, sX, sT0, mods=mods("offen", f_mods, "lds")))
        a(I("s_add_u32", M0, sT2, buf * XBSZ))
        a(I("s_nop", 0))
        a(I("buffer_load_dwordx4", hXo2, sX, sSO, mods=mods("offen", f_mods, "lds")))
    def w_issue(lst, slot, odd):
        a = lst.append
        a(I("s_add_u32", sSO, sTI, sROT)); a(I("s_and_b32", sSO, sSO, 7)); a(I("s_lshl_b32", sSO, sSO, 19))
        if odd: a(I("s_add_u32", sSO, sSO, 1 << 18))
        if "nowq" in exp: a(I("s_mov_b32", sSO, OOB))
        a(I("s_add_u32", M0, sM0, slot * WQ_CH))
        a(I("s_nop", 0))
        for m in range(4):
            a(I("buffer_load_dwordx4", hWo[m], sWQ, sSO, mods=mods(f"offen offset:{m*BLK}", f_mods, "lds")))
    def publish(lst, vmn, val=None):
        a = lst.append
        if vmn is not None: a(WAIT(vm=vmn))
        if val is None:
            a(I("s_add_u32", sDN, sDN, 1)); a(I("v_mov_b32", hVal, sDN))
        else:
            a(I("v_mov_b32", hVal, val))
        a(I("ds_write_b32", hSYw, hVal))
    def poll_pub(lst, site, need, allval):
        if "nosync" in exp: return
        a = lst.append
        a(I("ds_read_b128", hP.sub(0, 4), vSY, mods=f"offset:{F_DONEF}")); a(WAIT(lgkm=0))
        a(I("v_min3_u32", hP[0], hP[0], hP[1], hP[2])); a(I("v_min_u32", hP[0], hP[0], hP[3]))
        a(I("v_cmp_gt_u32", VCC, need, hP[0]))
        a(I("s_cbranch_vccz", L("pok_" + site)))
        a(WAIT(vm=4)); a(I("v_add_u32", hVal, -1, allval)); a(I("ds_write_b32", hSYw, hVal))
        a(WAIT(vm=0)); a(I("v_mov_b32", hVal, allval)); a(I("ds_write_b32", hSYw, hVal))
        poll(lst, site, hP, F_DONEF, 4, need, sleep=False)
    hIss = V(18)
    def pub_lag(lst, vmn):
        a = lst.append
        a(WAIT(vm=vmn))
        a(I("v_add_u32", hIss, 1, hIss))
        a(I("v_add_u32", hT3, -2, hIss)); a(I("v_max_i32", hVal, hVal, hT3))
        a(I("ds_write_b32", hSYw, hVal))
    e(I("s_mov_b32", sTI, 0)); e(I("v_mov_b32", hIss, 2)); e(I("v_mov_b32", hVal, 0))
    x_issue(h01, 0); w_issue(h01, 0, 0)
    e(I("s_barrier"))
    w_issue(h01, 1, 1); pub_lag(h01, 8)
    e(I("s_mov_b32", sTI, 1))
    x_issue(h01, 1); pub_lag(h01, 17)
    w_issue(h01, 2, 0); pub_lag(h01, 17)
    w_issue(h01, 3, 1); pub_lag(h01, 8)
    h01b = []; e = h01b.append
    for c in range(2, 8):
        e(I("s_mov_b32", sTI, c))
        poll_pub(h01b, f"hx{c}", 2 * c - 3, hIss)
        x_issue(h01b, c & 1); pub_lag(h01b, 17)
        w_issue(h01b, (2 * c) & 7, 0); pub_lag(h01b, 17)
        w_issue(h01b, (2 * c + 1) & 7, 1); pub_lag(h01b, 8)
    h01c = []; e = h01c.append
    STAMP(h01c, 1)
    publish(h01c, 4, 23); publish(h01c, 0, 24)
    hK, hV = V(2), V(3)
    hNEG = V(20, 4); hS = [V(24, 4), V(28, 4)]; hL = V(32, 4)
    hO = [V(36 + 4 * T, 4) for T in range(8)]
    hQ = [V(68 + 4 * kk, 4) for kk in range(4)]
    hKF = [[V(84 + (sb * 4 + kk) * 4, 4) for kk in range(4)] for sb in range(2)]
    hVF = [V(116 + 4 * T, 4) for T in range(8)]
    hONES = V(148, 4)
    lane_kv(h01c, hK, hV, hT0)
    e(I("s_mul_i32", sT0, sLW, 8 * BLK)); e(I("v_add_u32", hK, sT0, hK))
    e(I("s_add_u32", sT0, sT0, TILE)); e(I("v_add_u32", hV, sT0, hV))
    for T in range(8):
        for r in range(4): e(I("v_mov_b32", hO[T][r], 0))
    for r in range(4):
        e(I("v_mov_b32", hL[r], 0)); e(I("v_mov_b32", hNEG[r], "0x7f000000")); e(I("v_mov_b32", hONES[r], 0x3F803F80))
    e(I("s_lshl_b32", sT0, sLW, 2)); e(I("s_add_u32", sT0, sT0, SY + F_DONEKV + 16)); e(I("v_mov_b32", hSYw, sT0))
    poll(h01c, "hq13", hP, F_DONEF, 4, 101)
    STAMP(h01c, 3)
    e(I("v_lshlrev_b32", hT0, 4, vLane)); e(I("v_add_u32", hT0, Q13X, hT0))
    for kk in range(4): e(I("ds_read_b128", hQ[kk], hT0, mods=f"offset:{kk*1024}"))
    e(I("s_mov_b32", sNEED, 2)); e(I("s_mov_b32", sKSL, 0))
    if "noH" in exp: e(I("s_endpgm"))
    e(LABEL(L("h_loop")))
    hb = []; e = hb.append
    poll(hb, "hkv", hP, F_RDYKV, 2, sNEED)
    for sb in range(2):
        for kk in range(4): e(I("ds_read_b128", hKF[sb][kk], hK, mods=f"offset:{sb*512 + kk*64}"))
    for T in range(8):
        for hh in range(2): e(I("ds_read_b64_tr_b16", hVF[T].sub(2 * hh, 2), hV, mods=f"offset:{hh*512 + T*32}"))
    e(I("v_mov_b32", hVal, sNEED)); e(I("ds_write_b32", hSYw, hVal))
    for sb in range(2):
        for kk in range(4):
            e(I(MFMA, hS[sb], hKF[sb][kk], hQ[kk], hNEG if kk == 0 else hS[sb]))
    e(I("s_add_u32", sKSL, sKSL, 2)); e(I("s_cmp_ge_u32", sKSL, NSLOT))
    e(I("s_cselect_b32", sKD, (2 - NSLOT) * TILE, sC2T)); e(I("s_cselect_b32", sT0, NSLOT, 0)); e(I("s_sub_u32", sKSL, sKSL, sT0))
    e(I("s_add_u32", sT0, sKSL, 1)); e(I("s_cmp_ge_u32", sT0, NSLOT)); e(I("s_cselect_b32", sT0, 0, sT0))
    e(I("s_cmp_lt_u32", sT0, 2)); e(I("s_cselect_b32", sVD, (2 - NSLOT) * TILE, sC2T))
    def hsoft(lst):
        a = lst.append
        for sb in range(2):
            for r in range(4): a(I("v_exp_f32", hS[sb][r], hS[sb][r]))
        x, y = hS
        a(I("v_cvt_pk_bf16_f32", x[0], x[0], x[1])); a(I("v_cvt_pk_bf16_f32", x[1], x[2], x[3]))
        a(I("v_cvt_pk_bf16_f32", x[2], y[0], y[1])); a(I("v_cvt_pk_bf16_f32", x[3], y[2], y[3]))
    hsoft(hb)
    e(I("v_or3_b32", hT0, hS[0][0], hS[0][1], hS[0][2])); e(I("v_or_b32", hT0, hT0, hS[0][3]))
    e(I("v_and_b32", hT0, 0x40004000, hT0))
    e(I("v_cmp_ne_u32", VCC, 0, hT0))
    if "norare" not in exp: e(I("s_cbranch_vccnz", L("h_rare")))
    e(LABEL(L("h_ret")))
    e(I(MFMA, hL, hONES, hS[0], hL))
    for T in range(8): e(I(MFMA, hO[T], hVF[T], hS[0], hO[T]))
    e(I("v_add_u32", hK, sKD, hK)); e(I("v_add_u32", hV, sVD, hV))
    e(I("s_add_u32", sNEED, sNEED, 2)); e(I("s_cmp_le_u32", sNEED, 16))
    e(I("s_cbranch_scc1", L("h_loop")))
    hf = []; e = hf.append
    STAMP(hf, 5)
    e(I("v_lshlrev_b32", hT0, 4, vLane))
    e(I("s_lshl_b32", sT0, sLW, 13)); e(I("s_add_u32", sT0, sT0, HX))
    e(I("v_add_u32", hT1, sT0, hT0))
    for T in range(8): e(I("ds_write_b128", hT1, hO[T], mods=f"offset:{T*1024}"))
    e(I("v_lshlrev_b32", hT2, 3, vLane))
    e(I("s_lshl_b32", sT0, sLW, 9)); e(I("s_add_u32", sT0, sT0, HML))
    e(I("v_add_u32", hT1, sT0, hT2))
    e(I("v_mov_b32", hNEG[1], hL[0]))
    e(I("ds_write_b64", hT1, hNEG.sub(0, 2)))
    e(I("s_lshl_b32", sT0, sLW, 2)); e(I("s_add_u32", sT0, sT0, SY + F_HFIN)); e(I("v_mov_b32", hSYw, sT0))
    e(I("v_mov_b32", hVal, 1)); e(I("ds_write_b32", hSYw, hVal))
    poll(hf, "hfin", hP, F_HFIN, 2, 1)
    ML = [V(68 + 2 * s, 2) for s in range(2)]
    PO = [[V(84 + (s * 4 + x) * 4, 4) for x in range(4)] for s in range(2)]
    e(I("v_add_u32", hT2, HML, hT2))
    for s in range(2): e(I("ds_read_b64", ML[s], hT2, mods=f"offset:{s*512}"))
    e(I("s_lshl_b32", sT0, sLW, 12)); e(I("s_add_u32", sT0, sT0, HX))
    e(I("v_add_u32", hT1, sT0, hT0))
    for s in range(2):
        for x in range(4): e(I("ds_read_b128", PO[s][x], hT1, mods=f"offset:{s*8192 + x*1024}"))
    e(I("v_min_f32", hT2, ML[0][0], ML[1][0]))
    for s in range(2):
        e(I("v_sub_f32", ML[s][0], hT2, ML[s][0])); e(I("v_exp_f32", ML[s][0], ML[s][0]))
    e(I("v_mul_f32", hT3, ML[0][0], ML[0][1])); e(I("v_fmac_f32", hT3, ML[1][0], ML[1][1]))
    e(I("v_rcp_f32", hT3, hT3))
    for s in range(2): e(I("v_mul_f32", ML[s][0], ML[s][0], hT3))
    for x in range(4):
        for r in range(4):
            e(I("v_mul_f32", PO[0][x][r], PO[0][x][r], ML[0][0]))
            e(I("v_fmac_f32", PO[0][x][r], PO[1][x][r], ML[1][0]))
    e(I("s_lshl_b32", sT0, sLW, 11)); e(I("s_add_u32", sT0, sT0, 12 * 131072))
    for j in range(2):
        X, Y = PO[0][2 * j], PO[0][2 * j + 1]
        e(I("v_cvt_pk_bf16_f32", X[0], X[0], X[1])); e(I("v_cvt_pk_bf16_f32", X[1], X[2], X[3]))
        e(I("v_cvt_pk_bf16_f32", X[2], Y[0], Y[1])); e(I("v_cvt_pk_bf16_f32", X[3], Y[2], Y[3]))
        e(I("buffer_store_dwordx4", X, hT0, sO, sT0, mods=mods(f"offen offset:{j*1024}", o_mods)))
    if stamps: e(WAIT(vm=0))
    STAMP(hf, 6)
    STAMP_OUT(hf, 7, hT1, hT2)
    e(I("s_endpgm"))
    hr = []; e = hr.append
    e(LABEL(L("h_rare")))
    e(I("s_nop", 15))
    for sb in range(2):
        for kk in range(4):
            e(I(MFMA, hS[sb], hKF[sb][kk], hQ[kk], 0 if kk == 0 else hS[sb]))
    x, y = hS
    e(I("v_max3_f32", hT0, x[0], x[1], x[2])); e(I("v_max3_f32", hT0, hT0, x[3], y[0]))
    e(I("v_max3_f32", hT0, hT0, y[1], y[2])); e(I("v_max_f32", hT0, hT0, y[3]))
    xlane_max(hr, hT0, hT1, hT2)
    e(I("v_add_f32", hT0, "0x40e00000", hT0))
    e(I("v_max_f32_e64", hT0, hT0, "-" + str(hNEG[0])))
    e(I("v_sub_f32_e64", hT1, "-" + str(hNEG[0]), hT0))
    e(I("v_exp_f32", hT1, hT1))
    for r in range(4): e(I("v_sub_f32", hNEG[r], 0, hT0))
    for T in range(8):
        for r in range(4): e(I("v_mul_f32", hO[T][r], hO[T][r], hT1))
    for r in range(4): e(I("v_mul_f32", hL[r], hL[r], hT1))
    for sb in range(2):
        for r in range(4): e(I("v_add_f32", hS[sb][r], hS[sb][r], hNEG[0]))
    hsoft(hr)
    e(I("s_nop", 3))
    e(I("s_branch", L("h_ret")))
    h23 = []; e = h23.append
    hG, hD, hDst = V(20), V(21), V(22)
    RB = [V(24 + 32 * b, 32) for b in range(6)] + [A(0, 32)]
    NRB = 7
    e(LABEL(L("h23")))
    e(I("v_lshlrev_b32", hG, 4, vLane)); e(I("s_lshl_b32", sT0, sLW, 13)); e(I("v_add_u32", hG, sT0, hG))
    e(I("v_and_b32", hT0, 15, vLane)); e(I("v_lshlrev_b32", hT0, 4, hT0))
    e(I("v_lshrrev_b32", hT1, 4, vLane)); e(I("v_mul_u32_u24", hT1, BLK, hT1)); e(I("v_add_u32", hD, hT0, hT1))
    e(I("s_mul_i32", sT0, sLW, 8 * BLK)); e(I("v_add_u32", hD, sT0, hD))
    e(I("s_lshl_b32", sT0, sLW, 2)); e(I("s_add_u32", sT0, sT0, SY + F_RDYKV)); e(I("v_mov_b32", hSYw, sT0))
    def Lq(i):
        if i >= 16: return
        if i >= 2: e(WAIT(vm=kvwin))
        for hf_ in range(2):
            e(I("s_mov_b32", sSO, (i >> 1) * 16384 + hf_ * 4096 + (OOB if "nokv" in exp else 0)))
            for m in range(4):
                e(I("buffer_load_dwordx4", RB[i % NRB].sub((hf_ * 4 + m) * 4, 4), hG, sV if i & 1 else sK, sSO,
                    mods=mods(f"offen offset:{m*1024}", kv_mods)))
    def Wr(i):
        if i == 2: poll(h23, "fwq", hP, F_DONEF, 4, 100)
        if i >= 9: poll(h23, f"fwk{i}", hP, F_DONEKV, 6, i - 8)
        e(I("v_add_u32", hDst, (i % NSLOT) * TILE, hD))
        for m in range(8):
            e(I("ds_write_b128", hDst, RB[i % NRB].sub(m * 4, 4), mods=f"offset:{(m & 1) * 4 * BLK + (m >> 1) * 256}"))
        e(I("v_mov_b32", hVal, i + 1)); e(I("ds_write_b32", hSYw, hVal))
    Lq(0); Lq(1)
    e(I("s_barrier"))
    Wr(0); Wr(1)
    STAMP(h23, 1)
    poll(h23, "kvres", hP, F_RDYF, 2, kvres)
    STAMP(h23, 2)
    for i in range(2, 9): Lq(i)
    STAMP(h23, 3)
    for i in range(2, 16):
        Wr(i); Lq(i + 7)
    STAMP(h23, 6)
    STAMP_OUT(h23, 7, hT1, hT2)
    e(LABEL(L("end")))
    e(I("s_endpgm"))

    paths = [pre + cq + cqb + cqb + cv + body + body + ce,
             rare[0], rare[1],
             pre + hp + h01 + h01b + h01c + hb + hb + hf,
             pre + hp + h23,
             hb + hr] + spins
    apply_waits(paths)
    apply_hazards(paths)
    order = [pre, cq, cqb, cv, body, ce, hp, h01, h01b, h01c, hb, hf, h23, hr, rare[0], rare[1]] + spins
    txt = "\n".join(render(x) for x in order)
    return txt, dict(vgpr=256, sgpr=100, accum=216)
```

```python
import sys
from k1 import gen_k1, K1_LDS
from k2 import gen_k2, K2_LDS, kernel_wrap, kernel_desc
args = sys.argv[1:]
stamps = "--stamps" in args
only1 = "--k1" in args
kvm = "nt" if "--nt" in args else ""
hdr = open("standalone__mha_block_cached__near_ridge.s.ref").read().split("; Override")[0]
n1, n2 = "attn_kernel", "oproj_kernel"
exp = [a[2:] for a in args if a.startswith("-x")]
kw = {}
for a in args:
    if a.startswith("-k"):
        k, v = a[2:].split("="); kw[k] = int(v) if v.lstrip("-").isdigit() else v
t1, d1 = gen_k1(n1, stamps=stamps, kv_mods=kvm, exp=exp, **kw)
t2, d2 = gen_k2(n2, dbg=("dbg" in exp))
out = [hdr.rstrip()]
out.append(f"; @launch kernel={n1} grid=(256,1,1) block=(512,1,1) lds={K1_LDS}")
if not only1:
    out.append(f"; @launch kernel={n2} grid=(256,1,1) block=(512,1,1) lds={K2_LDS}")
out.append('.amdgcn_target "amdgcn-amd-amdhsa--gfx950"')
out.append(kernel_wrap(n1, t1, d1))
out.append(kernel_wrap(n2, t2, d2))
out.append('.section .rodata,"a"\n.p2align 6')
out.append(kernel_desc(n1, d1))
out.append(".p2align 6")
out.append(kernel_desc(n2, d2))
print("\n".join(out))
```

```python
from ir import *
import struct

def f32bits(x): return struct.unpack("<I", struct.pack("<f", x))[0]
CSCALE = (128 ** -0.5) * 1.4426950408889634
BLK = 1056
TILE = 16 * BLK
NSLOT = 9
XB0 = 2 * TILE
XBSZ = 26 * BLK
WQ_BASE = XB0 + 2 * XBSZ
WQ_CH = 8 * BLK
NWQ = 8
SY = WQ_BASE + NWQ * WQ_CH
Q13X = SY + 256
HML = Q13X + 4096
HX = 7 * TILE
K1_LDS = 163840
OOB = 0x40000000
MFMA = "v_mfma_f32_16x16x32_bf16"
F_RDYF, F_RDYKV, F_DONEF, F_DONEKV, F_HFIN = 0, 8, 16, 32, 64

sX, sWQ, sK, sV, sO = S(8, 4), S(12, 4), S(16, 4), S(20, 4), S(24, 4)
pIN = S(28, 8); pWS = S(36, 2)
sW, sB, sH = S(38), S(39), S(40)
sT0, sT1, sT2, sT3 = S(41), S(42), S(43), S(44)
sCNT, sNEED, sKSL, sVSL, sKD, sVD = S(45), S(46), S(47), S(48), S(49), S(50)
sNEED2 = S(51)
sC2 = S(52, 2)
sHW, sM0, sSO, sTI, sLW = S(54), S(55), S(56), S(57), S(58)
sC2T, sROT, sDN, sBUD = S(59), S(60), S(61), S(62)
sSTAMP = 64
sDBG = S(96, 4)

def sched(mfmas, fixed, flex, cap=2.0):
    out = []; qs = [list(q) for q in flex]
    placed = set()
    def ready(item, g):
        ins, cost, early = item[:3]
        if early > g: return False
        if len(item) > 3 and any(id(d) not in placed for d in item[3]): return False
        return True
    for g, m in enumerate(mfmas):
        out.append(m)
        room = cap
        for ins, cost in fixed.get(g, []):
            out.append(ins); room -= cost; placed.add(id(ins))
        progress = True
        while progress:
            progress = False
            for q in qs:
                if q and ready(q[0], g) and q[0][1] <= room + 1e-9:
                    it = q.pop(0); out.append(it[0]); room -= it[1]; placed.add(id(it[0])); progress = True
                    break
    while any(qs):
        for q in qs:
            if q and ready(q[0], 10 ** 6):
                it = q.pop(0); out.append(it[0]); placed.add(id(it[0])); break
        else:
            raise RuntimeError("unschedulable")
    return out

def xlane_max(lst, x, t0, t1):
    a = lst.append
    a(I("v_mov_b32", t0, x)); a(I("v_mov_b32", t1, x))
    a(I("v_permlane32_swap_b32", t0, t1))
    a(I("v_max_f32", x, t0, t1))
    a(I("v_mov_b32", t0, x)); a(I("v_mov_b32", t1, x))
    a(I("v_permlane16_swap_b32", t0, t1))
    a(I("v_max_f32", x, t0, t1))

def gen_k1(name, stamps=False, kv_mods="", exp=(), f_mods="", o_mods="", kvwin=16, kvres=22):
    L = lambda s: f"L_{name}_{s}"
    spins = []
    ce = []
    def STAMP(lst, i):
        if stamps:
            lst.append(I("s_memrealtime", S(sSTAMP + 2 * i, 2)))
            lst.append(I("s_memtime", S(sSTAMP + 16 + 2 * i, 2)))
            lst.append(WAIT(lgkm=0))
    def STAMP_OUT(lst, n, vt, vd):
        if not stamps: return
        a = lst.append
        if "dbg" in exp:
            a(I("s_and_b32", sT0, S(2), 0x1d)); a(I("s_or_b32", sT0, sT0, sW)); a(I("s_cmp_lg_u32", sT0, 0)); a(I("s_cbranch_scc1", L("end")))
            a(I("v_mov_b32", vt, 0))
            a(I("s_not_b32", sT0, S(sSTAMP))); a(I("v_mov_b32", vd, sT0))
            a(I("s_mov_b64", EXEC, 1))
            a(I("buffer_atomic_umax", vd, vt, sDBG, 0, mods="offen"))
            a(I("s_nop", 1)); a(I("v_mov_b32", vd, S(sSTAMP + 2 * (n - 1))))
            a(I("buffer_atomic_umax", vd, vt, sDBG, 0, mods="offen offset:4"))
            if lst is ce:
                for i in range(1, n):
                    a(I("s_sub_u32", sT0, S(sSTAMP + 2 * i), S(sSTAMP + 2 * (i - 1)))); a(I("s_nop", 1)); a(I("v_mov_b32", vd, sT0))
                    a(I("buffer_atomic_umax", vd, vt, sDBG, 0, mods=f"offen offset:{4 + 4*i}"))
                a(I("s_sub_u32", sT0, S(sSTAMP + 16 + 2 * (n - 1)), S(sSTAMP + 16))); a(I("s_nop", 1)); a(I("v_mov_b32", vd, sT0))
                a(I("buffer_atomic_umax", vd, vt, sDBG, 0, mods=f"offen offset:{4 + 4*n}"))
            a(WAIT(vm=0))
            return
        a(I("s_lshl_b32", sT0, S(2), 3)); a(I("s_add_u32", sT0, sT0, sW)); a(I("s_lshl_b32", sT0, sT0, 6))
        a(I("v_mov_b32", vt, 0))
        for i in range(n):
            a(I("v_mov_b32", vd, S(sSTAMP + 2 * i)))
            a(I("buffer_store_dword", vd, vt, sDBG, sT0, mods=f"offen offset:{4*i}"))
            a(I("s_nop", 1))
            a(I("v_mov_b32", vd, S(sSTAMP + 16 + 2 * i)))
            a(I("buffer_store_dword", vd, vt, sDBG, sT0, mods=f"offen offset:{32+4*i}"))
            a(I("s_nop", 1))
        a(WAIT(vm=0))
    vSY = V(0)
    vLane = V(1)
    def mods(*m): return " ".join(x for x in m if x)

    def check2(site, vF, off, need):
        early = I("ds_read_b64", vF, vSY, mods=f"offset:{off}")
        chk = [I("v_min_u32", vF[0], vF[0], vF[1]), I("v_cmp_gt_u32", VCC, need, vF[0]),
               I("s_cbranch_vccnz", L("spin_" + site)), LABEL(L("ret_" + site))]
        if "nosync" in exp: chk = chk[:2]
        sp = [LABEL(L("spin_" + site)), I("ds_read_b64", vF, vSY, mods=f"offset:{off}"), WAIT(lgkm=0),
              I("v_min_u32", vF[0], vF[0], vF[1]), I("v_cmp_gt_u32", VCC, need, vF[0]),
              I("s_cbranch_vccz", L("ret_" + site)), I("s_sleep", 1), I("s_sub_u32", sBUD, sBUD, 1),
              I("s_cbranch_scc0", L("spin_" + site)), I("s_endpgm")]
        if "nosync" not in exp: spins.append(sp)
        return early, chk
    def poll(lst, site, regs, off, nwords, need, sleep=True):
        if "nosync" in exp: return
        a = lst.append
        a(LABEL(L("poll_" + site)))
        a(I("ds_read_b128" if nwords >= 4 else "ds_read_b64", regs.sub(0, 4 if nwords >= 4 else 2), vSY, mods=f"offset:{off}"))
        if nwords == 6: a(I("ds_read_b64", regs.sub(4, 2), vSY, mods=f"offset:{off+16}"))
        a(WAIT(lgkm=0))
        if nwords == 2: a(I("v_min_u32", regs[0], regs[0], regs[1]))
        else:
            a(I("v_min3_u32", regs[0], regs[0], regs[1], regs[2]))
            if nwords == 4: a(I("v_min_u32", regs[0], regs[0], regs[3]))
            else:
                a(I("v_min3_u32", regs[0], regs[0], regs[3], regs[4])); a(I("v_min_u32", regs[0], regs[0], regs[5]))
        a(I("v_cmp_gt_u32", VCC, need, regs[0]))
        a(I("s_cbranch_vccz", L("pok_" + site)))
        if sleep: a(I("s_sleep", 1))
        a(I("s_sub_u32", sBUD, sBUD, 1)); a(I("s_cbranch_scc0", L("poll_" + site))); a(I("s_endpgm"))
        a(LABEL(L("pok_" + site)))

    pre = []; e = pre.append
    e(I("s_cmp_ge_u32", S(2), 256))
    e(I("s_cbranch_scc1", L("end")))
    e(I("s_load_dwordx8", pIN, S(0, 2), 0))
    e(I("s_load_dwordx2", pWS, S(0, 2), 56))
    e(I("v_lshrrev_b32", V(2), 6, V(0)))
    e(I("v_and_b32", vLane, 63, V(0)))
    e(I("v_readfirstlane_b32", sW, V(2)))
    e(I("s_and_b32", sT0, S(2), 1)); e(I("s_lshl_b32", sT0, sT0, 2))
    e(I("s_bfe_u32", sT1, S(2), (2 << 16) | 3)); e(I("s_add_u32", sB, sT0, sT1))
    e(I("s_bfe_u32", sT0, S(2), (2 << 16) | 1)); e(I("s_lshl_b32", sT0, sT0, 3))
    e(I("s_lshr_b32", sT1, S(2), 5)); e(I("s_add_u32", sH, sT0, sT1))
    e(I("s_mov_b32", sC2[0], f32bits(CSCALE))); e(I("s_mov_b32", sC2[1], f32bits(CSCALE)))
    e(I("s_mov_b32", sC2T, 2 * TILE)); e(I("s_mov_b32", sBUD, 400000))
    e(I("s_bfe_u32", sROT, S(2), (3 << 16) | 3))
    e(I("v_lshlrev_b32", V(3), 2, vLane)); e(I("v_add_u32", V(3), SY, V(3))); e(I("v_mov_b32", V(4), 0))
    e(I("ds_write_b32", V(3), V(4)))
    e(I("v_mov_b32", vSY, SY))
    e(WAIT(lgkm=0))
    STAMP(pre, 0)
    e(I("s_mul_i32", sT0, sB, 212992))
    e(I("s_add_u32", sX[0], pIN[0], sT0)); e(I("s_addc_u32", sX[1], pIN[1], 0))
    e(I("s_mov_b32", sX[2], 212992)); e(I("s_mov_b32", sX[3], 0x20000))
    e(I("s_lshl_b32", sT0, sH, 8))
    e(I("s_add_u32", sWQ[0], pIN[6], sT0)); e(I("s_addc_u32", sWQ[1], pIN[7], 0))
    e(I("s_sub_u32", sWQ[2], 4194304, sT0)); e(I("s_mov_b32", sWQ[3], 0x20000))
    e(I("s_lshl_b32", sT0, sB, 5)); e(I("s_add_u32", sT0, sT0, sH)); e(I("s_lshl_b32", sT0, sT0, 17))
    e(I("s_add_u32", sK[0], pIN[2], sT0)); e(I("s_addc_u32", sK[1], pIN[3], 0))
    e(I("s_mov_b32", sK[2], 131072)); e(I("s_mov_b32", sK[3], 0x20000))
    e(I("s_add_u32", sV[0], pIN[4], sT0)); e(I("s_addc_u32", sV[1], pIN[5], 0))
    e(I("s_mov_b32", sV[2], 131072)); e(I("s_mov_b32", sV[3], 0x20000))
    e(I("s_mul_i32", sT0, sB, 13 * 131072)); e(I("s_lshl_b32", sT1, sH, 12)); e(I("s_add_u32", sT0, sT0, sT1))
    e(I("s_add_u32", sO[0], pWS[0], sT0)); e(I("s_addc_u32", sO[1], pWS[1], 0))
    e(I("s_sub_u32", sO[2], 13 * 131072, sT1)); e(I("s_mov_b32", sO[3], 0x20000))
    if stamps and "dbg" in exp:
        e(I("s_load_dwordx2", S(94, 2), S(0, 2), 48)); e(WAIT(lgkm=0))
        e(I("s_add_u32", sDBG[0], S(94), 512 if "dbg2" in exp else 0)); e(I("s_addc_u32", sDBG[1], S(95), 0))
        e(I("s_mov_b32", sDBG[2], 256)); e(I("s_mov_b32", sDBG[3], 0x20000))
    elif stamps:
        e(I("s_add_u32", sDBG[0], pWS[0], 0x4000000)); e(I("s_addc_u32", sDBG[1], pWS[1], 0))
        e(I("s_mov_b32", sDBG[2], 0x100000)); e(I("s_mov_b32", sDBG[3], 0x20000))
    e(I("s_cmp_ge_u32", sW, 4))
    e(I("s_cbranch_scc1", L("helper")))

    def lane_kv(lst, vKl, vVl, t0):
        a = lst.append
        a(I("v_and_b32", t0, 7, vLane)); a(I("v_mul_u32_u24", vKl, BLK, t0))
        a(I("v_bfe_u32", t0, vLane, 3, 1)); a(I("v_lshl_add_u32", vKl, t0, 8, vKl))
        a(I("v_lshrrev_b32", t0, 4, vLane)); a(I("v_lshl_add_u32", vKl, t0, 4, vKl))
        a(I("v_bfe_u32", t0, vLane, 2, 3)); a(I("v_mul_u32_u24", vVl, BLK, t0))
        a(I("v_lshrrev_b32", t0, 5, vLane)); a(I("v_lshl_add_u32", vVl, t0, 8, vVl))
        a(I("v_and_b32", t0, 3, vLane)); a(I("v_lshl_add_u32", vVl, t0, 3, vVl))

    vK, vV, vOr = V(2), V(3), V(4)
    vT0, vT1, vT2 = V(5), V(6), V(7)
    NEGM = [V(8 + 4 * t, 4) for t in range(3)]
    SB = [[[V(20 + ((e_ * 2 + sb) * 3 + t) * 4, 4) for t in range(3)] for sb in range(2)] for e_ in range(2)]
    vT3, vSYd, vF = V(68), V(69), V(70, 2)
    O = [[V(72 + (t * 8 + T) * 4, 4) for T in range(8)] for t in range(3)]
    Q = [[V(168 + (t * 4 + kk) * 4, 4) for kk in range(4)] for t in range(3)]
    LA_ = [A(4 * t, 4) for t in range(3)]
    ONES = A(12, 4)
    POOL = [A(16 + 4 * i, 4) for i in range(6)]
    XR = [[[V((20 if st == 0 else 168) + (h_ * 4 + t) * 4, 4) for t in range(4)] for h_ in range(2)] for st in range(2)]
    Q13A = [V(52, 4), V(56, 4)]
    W13 = [V(60, 4), V(64, 4)]
    WQF = [A(4 * T, 4) for T in range(8)]
    vXa = [V(8), V(9), V(10), V(11)]
    vWQ, vW13 = V(4), V(12)
    cq = []; e = cq.append
    lane_kv(cq, vK, vV, vT0)
    e(I("v_lshrrev_b32", vT0, 5, vLane)); e(I("v_lshl_add_u32", vWQ, vT0, 8, vV))
    e(I("v_add_u32", vWQ, WQ_BASE, vWQ))
    e(I("s_lshl_b32", sT0, sW, 6)); e(I("v_add_u32", vW13, sT0, vWQ))
    e(I("v_and_b32", vT0, 3, vLane)); e(I("v_mul_u32_u24", vT0, BLK, vT0))
    e(I("v_bfe_u32", vT1, vLane, 2, 2)); e(I("v_lshl_add_u32", vT0, vT1, 7, vT0))
    e(I("v_lshrrev_b32", vT1, 4, vLane)); e(I("v_lshl_add_u32", vT0, vT1, 4, vT0))
    for t in range(3):
        e(I("s_mul_i32", sT0, sW, 3)); e(I("s_add_u32", sT0, sT0, t))
        e(I("s_lshr_b32", sT1, sT0, 1)); e(I("s_mul_i32", sT1, sT1, 4 * BLK))
        e(I("s_and_b32", sT0, sT0, 1)); e(I("s_lshl_b32", sT0, sT0, 9))
        e(I("s_add_u32", sT0, sT0, sT1)); e(I("s_add_u32", sT0, sT0, XB0))
        e(I("v_add_u32", vXa[t], sT0, vT0))
    e(I("v_and_b32", vT0, 1, vLane)); e(I("v_mul_u32_u24", vT0, BLK, vT0))
    e(I("v_bfe_u32", vT2, vLane, 1, 3)); e(I("v_lshl_add_u32", vT0, vT2, 7, vT0))
    e(I("v_lshl_add_u32", vT0, vT1, 4, vT0))
    e(I("v_add_u32", vXa[3], XB0 + 24 * BLK, vT0))
    e(I("s_lshl_b32", sT0, sW, 2)); e(I("s_add_u32", sT0, sT0, SY)); e(I("v_mov_b32", vSYd, sT0))
    for t in range(3):
        for T in range(8):
            for r in range(4): e(I("v_mov_b32", O[t][T][r], 0))
    for R in Q13A:
        for r in range(4): e(I("v_mov_b32", R[r], 0))
    e(I("s_barrier"))
    def xreads(c, st):
        return [I("ds_read_b128", XR[st][h_][t], vXa[t], mods=f"offset:{(c & 1) * XBSZ + h_ * 64}") for h_ in range(2) for t in range(4)]
    def wqreads(s, T):
        return [I("ds_read_b64_tr_b16", WQF[T].sub(2 * hh, 2), vWQ, mods=f"offset:{(s & 7) * WQ_CH + hh * 256 + T * 32}") for hh in range(2)]
    def w13reads(s):
        return [I("ds_read_b64_tr_b16", W13[x].sub(2 * hh, 2), vW13, mods=f"offset:{(s & 7) * WQ_CH + hh * 256 + x * 32}")
                for x in range(2) for hh in range(2)]
    def done_write(off):
        return [I("v_mov_b32", vF[0], sDN), I("ds_write_b32", vSYd, vF[0], mods=f"offset:{off}")]
    poll(cq, "cq0", vF, F_RDYF, 2, 2)
    cq.extend(xreads(0, 0))
    LAQ = 4
    for T in range(LAQ): cq.extend(wqreads(0, T))
    e(I("s_mov_b32", sDN, 1)); cq.extend(done_write(F_DONEF))
    e(I("s_mov_b32", sNEED, 4))
    e(I("s_mov_b32", sCNT, 0))
    STAMP(cq, 1)
    e(LABEL(L("cq_loop")))
    mf = []; fixed = {}
    def fx(g, ins, cost=1): fixed.setdefault(g, []).append((ins, cost))
    for s in range(8):
        st = (s >> 1) & 1; h_ = s & 1
        base = len(mf)
        early, chk = check2(f"cq{s}", vF, F_RDYF, sNEED)
        fx(base + 2, early)
        for i, r in enumerate(w13reads(s)): fx(base + 3 * i + 2 + (3 if i == 0 else 0), r)
        for T in range(8):
            g0 = len(mf)
            for t in range(3):
                mf.append(I(MFMA, O[t][T], WQF[T], XR[st][h_][t], O[t][T]))
            if T in (5, 6):
                mf.append(I(MFMA, Q13A[T - 5], W13[T - 5], XR[st][h_][3], Q13A[T - 5]))
            f = s * 8 + T + LAQ
            s2, T2 = f >> 3, f & 7
            if T2 == 0:
                fx(g0 - 1, I("s_add_u32", sDN, sDN, 1), 0)
                for x in chk: fx(g0, x, 0.5 if x.cls == "valu" else 0)
                fx(g0, I("s_add_u32", sNEED, sNEED, 1 if (s & 1) == 0 else 2), 0)
                fx(g0, I("s_min_u32", sNEED, sNEED, 24), 0)
            rr = wqreads(s2, T2)
            fx(g0 + (1 if T2 == 0 else 0), rr[0]); fx(g0 + (2 if T2 == 0 else 1), rr[1])
            if T2 == 0:
                for x in done_write(F_DONEF): fx(g0, x, 0.5)
            if h_ == 1 and T < 4:
                xr = xreads((s >> 1) + 1, 1 - st)
                fx(g0 + 2, xr[2 * T]); fx(g0 + 2, xr[2 * T + 1])
    cqb = sched(mf, fixed, [])
    cqb.append(I("s_add_u32", sCNT, sCNT, 1))
    cqb.append(I("s_cmp_lt_u32", sCNT, 2))
    cqb.append(I("s_cbranch_scc1", L("cq_loop")))
    cv = []; e = cv.append
    e(I("s_mov_b32", sDN, 100)); cv.extend(done_write(F_DONEF))
    STAMP(cv, 2)
    allp = [(Q13A[0], Q13A[1], Q13A[0])] + [(O[t][2 * kk], O[t][2 * kk + 1], Q[t][kk]) for kk in range(4) for t in range(3)]
    for X, Y, Z in allp:
        for R in (X, Y):
            e(I("v_pk_mul_f32", R.sub(0, 2), R.sub(0, 2), sC2)); e(I("v_pk_mul_f32", R.sub(2, 2), R.sub(2, 2), sC2))
        e(I("v_cvt_pk_bf16_f32", Z[0], X[0], X[1])); e(I("v_cvt_pk_bf16_f32", Z[1], X[2], X[3]))
        e(I("v_cvt_pk_bf16_f32", Z[2], Y[0], Y[1])); e(I("v_cvt_pk_bf16_f32", Z[3], Y[2], Y[3]))
    for X, Y, Z in allp:
        e(I("v_permlane32_swap_b32", Z[0], Z[2])); e(I("v_permlane32_swap_b32", Z[1], Z[3]))
    for X, Y, Z in allp:
        e(I("v_permlane16_swap_b32", Z[0], Z[2])); e(I("v_permlane16_swap_b32", Z[1], Z[3]))
    e(I("v_lshlrev_b32", vT0, 4, vLane))
    e(I("s_lshl_b32", sT0, sW, 10)); e(I("s_add_u32", sT0, sT0, Q13X))
    e(I("v_add_u32", vT0, sT0, vT0))
    e(I("ds_write_b128", vT0, Q13A[0]))
    e(I("s_mov_b32", sDN, 101)); cv.extend(done_write(F_DONEF))
    zero = []
    for t in range(3):
        for T in range(8):
            for r in range(4): zero.append(I("v_mov_b32", O[t][T][r], 0))
    zero.append(I("v_mov_b32", vT3, 0x3F803F80))
    for t in range(3):
        for r in range(4): zero.append(I("v_accvgpr_write_b32", LA_[t][r], 0))
    for r in range(4): zero.append(I("v_accvgpr_write_b32", ONES[r], vT3))
    e(I("v_add_u32", vV, TILE, vV))
    e(I("s_mov_b32", sKSL, 0)); e(I("s_mov_b32", sVSL, 1)); e(I("s_mov_b32", sKD, 0))
    e(I("s_mov_b32", sCNT, 0)); e(I("s_mov_b32", sDN, 0))
    e(I("s_mov_b32", sNEED, 2)); e(I("s_mov_b32", sNEED2, 3))
    poll(cv, "k0", vF, F_RDYKV, 2, 1)
    STAMP(cv, 3)
    def kread(buf, addr, uh, sb, kk):
        return I("ds_read_b128", buf, addr, mods=f"offset:{uh * 8 * BLK + sb * 512 + kk * 64}")
    def vreads(buf, uh, T):
        return [I("ds_read_b64_tr_b16", buf.sub(2 * hh, 2), vV, mods=f"offset:{uh * 8 * BLK + hh * 512 + T * 32}") for hh in range(2)]
    def qk_simple(lst, addr, uh, D, C):
        for sb in range(2):
            for kk in range(4): lst.append(kread(POOL[kk], addr, uh, sb, kk))
            for kk in range(4):
                for t in range(3):
                    c = D[sb][t] if kk else (0 if C is None else C[t])
                    lst.append(I(MFMA, D[sb][t], POOL[kk], Q[t][kk], c))
    def rowmax(lst, D, t, dst):
        a = lst.append
        x, y = D[0][t], D[1][t]
        a(I("v_max3_f32", dst, x[0], x[1], x[2])); a(I("v_max3_f32", dst, dst, x[3], y[0]))
        a(I("v_max3_f32", dst, dst, y[1], y[2])); a(I("v_max_f32", dst, dst, y[3]))
        xlane_max(lst, dst, vT1, vT2)
    def exps(D, t, sb): return [I("v_exp_f32", D[sb][t][r], D[sb][t][r]) for r in range(4)]
    def cvts(D, t):
        x, y = D[0][t], D[1][t]
        return [I("v_cvt_pk_bf16_f32", x[0], x[0], x[1]), I("v_cvt_pk_bf16_f32", x[1], x[2], x[3]),
                I("v_cvt_pk_bf16_f32", x[2], y[0], y[1]), I("v_cvt_pk_bf16_f32", x[3], y[2], y[3])]
    P8 = POOL + [Reg("a", 0, 4), Reg("a", 4, 4)]
    for i in range(8): e(kread(P8[i], vK, 0, i >> 2, i & 3))
    zq = list(zero)
    for i in range(8):
        for t in range(3):
            e(I(MFMA, SB[0][i >> 2][t], P8[i], Q[t][i & 3], SB[0][i >> 2][t] if i & 3 else 0))
            for _ in range(3):
                if zq and zq[0].op == "v_mov_b32": e(zq.pop(0))
    cv.extend(zq)
    for t in range(3):
        rowmax(cv, SB[0], t, vT0)
        e(I("v_sub_f32", NEGM[t][0], "0xc0e00000", vT0))
        for r in range(1, 4): e(I("v_mov_b32", NEGM[t][r], NEGM[t][0]))
        for sb in range(2):
            for r in range(4): e(I("v_add_f32", SB[0][sb][t][r], SB[0][sb][t][r], NEGM[t][0]))
    BUFSEQ = list(range(6)) * 2 + list(range(5)) * 4
    LAF = 4
    def frag_reads(f):
        f &= 31
        buf = POOL[BUFSEQ[f]]
        blk, i = f >> 3, f & 7
        if blk == 0: return [kread(buf, vK, 1, i >> 2, i & 3)]
        if blk == 1: return vreads(buf, 0, i)
        if blk == 2: return [kread(buf, vK, 0, i >> 2, i & 3)]
        return vreads(buf, 1, i)
    NB = 18
    def exp_order(D):
        o = []
        for t in range(3): o += [(x, t) for x in exps(D, t, 0)]
        for t in range(3): o += [(x, t) for x in exps(D, t, 1)]
        return o
    eo0 = exp_order(SB[0])
    for x, t in eo0[:NB]: e(x)
    STAMP(cv, 4)
    for f in range(LAF): cv.extend(frag_reads(f))
    e(LABEL(L("c_loop")))
    body = []
    def blockA(par, fbase, extra):
        D = SB[1 - par]; Pn = SB[par]
        mf = []; fixed = {}
        for i in range(8):
            f = fbase + i; sb, kk = i >> 2, i & 3
            g0 = len(mf)
            for t in range(3):
                mf.append(I(MFMA, D[sb][t], POOL[BUFSEQ[f]], Q[t][kk], NEGM[t] if kk == 0 else D[sb][t]))
            for g, items in extra.items():
                if g == g0: fixed.setdefault(g, []).extend(items)
            for j, r in enumerate(frag_reads(f + LAF)): fixed.setdefault(g0 + j, []).append((r, 1))
        for g, items in extra.items():
            if g % 3: fixed.setdefault(g, []).extend(items)
        eo = exp_order(Pn)[NB:]
        qe = [(x, 2, 0) for x, t in eo]
        dep = {t: [x for x, tt in eo if tt == t] for t in range(3)}
        qs = []
        p = [Pn[0][t][r] for t in range(3) for r in range(4)]
        for t in range(3):
            for x in cvts(Pn, t): qs.append((x, 1, 0, dep[t]))
            if t == 0:
                qs.append((I("v_or3_b32", vOr, p[0], p[1], p[2]), 1, 0))
            elif t == 1:
                qs.append((I("v_or3_b32", vOr, vOr, p[3], p[4]), 1, 0))
                qs.append((I("v_or3_b32", vOr, vOr, p[5], p[6]), 1, 0))
            else:
                qs.append((I("v_or3_b32", vOr, vOr, p[7], p[8]), 1, 0))
                qs.append((I("v_or3_b32", vOr, vOr, p[9], p[10]), 1, 0))
                qs.append((I("v_or_b32", vOr, vOr, p[11]), 1, 0))
        qs.append((I("v_and_b32", vOr, 0x40004000, vOr), 1, 0))
        qs.append((I("v_cmp_ne_u32", VCC, 0, vOr), 1, 23))
        out = sched(mf, fixed, [qe, qs])
        if "norare" not in exp: out.append(I("s_cbranch_vccnz", L(f"c_rare{par}")))
        out.append(LABEL(L(f"c_ret{par}")))
        return out
    def blockB(par, fbase, extra):
        Pn = SB[par]; Dn = SB[1 - par]
        mf = []; fixed = {}
        for t in range(3):
            mf.append(I(MFMA, LA_[t], ONES, Pn[0][t], LA_[t]))
        for g, items in extra.items():
            if g < 3 or g % 3: fixed.setdefault(g, []).extend(items)
        for i in range(8):
            f = fbase + i
            g0 = len(mf)
            for t in range(3):
                mf.append(I(MFMA, O[t][i], POOL[BUFSEQ[f]], Pn[0][t], O[t][i]))
            for g, items in extra.items():
                if g == g0: fixed.setdefault(g, []).extend(items)
            for j, r in enumerate(frag_reads(f + LAF)): fixed.setdefault(g0 + j, []).append((r, 1))
        qe = [(x, 2, 0 if k < 12 else 4) for k, (x, t) in enumerate(exp_order(Dn)[:NB])]
        return sched(mf, fixed, [qe])
    def slot_adv(sSL, sD):
        return [I("s_add_u32", sSL, sSL, 2), I("s_cmp_ge_u32", sSL, NSLOT),
                I("s_cselect_b32", sD, (2 - NSLOT) * TILE, sC2T), I("s_cselect_b32", sT0, NSLOT, 0),
                I("s_sub_u32", sSL, sSL, sT0)]
    c1 = lambda lst: [(x, 0.5 if x.cls == "valu" else (1 if x.cls.startswith("lds") else 0)) for x in lst]
    eV, cV = check2("cv", vF, F_RDYKV, sNEED)
    eK, cK = check2("ck", vF, F_RDYKV, sNEED2)
    body += blockA(0, 0, {4: c1([eV]), 12: c1(cV)})
    body += blockB(0, 8, {0: c1(slot_adv(sKSL, sKD)), 2: c1([I("v_add_u32", vK, sKD, vK)]), 5: c1([eK]), 15: c1(cK)})
    body += blockA(1, 16, {})
    nx = [I("s_add_u32", sNEED, sNEED, 2), I("s_add_u32", sNEED2, sNEED2, 2), I("s_min_u32", sNEED2, sNEED2, 16),
          I("s_add_u32", sDN, sDN, 2)]
    body += blockB(1, 24, {16: c1(slot_adv(sVSL, sVD) + nx), 17: c1(done_write(F_DONEKV)), 20: c1([I("v_add_u32", vV, sVD, vV)])})
    def filt(lst):
        o = []
        for x in lst:
            if "noexp" in exp and x.op == "v_exp_f32": continue
            if "nolds" in exp and x.cls == "ldsrd": continue
            if "notr" in exp and x.op == "ds_read_b64_tr_b16": continue
            if "nob128" in exp and x.op == "ds_read_b128": continue
            if "nowr" in exp and x.cls == "ldswr": continue
            if "novalu" in exp and x.cls == "valu" and x.op != "v_add_u32": continue
            if "nomfma" in exp and x.cls == "mfma": continue
            o.append(x)
        return o
    body = filt(body); cqb = filt(cqb)
    body.append(I("s_add_u32", sCNT, sCNT, 1))
    body.append(I("s_cmp_lt_u32", sCNT, 8))
    body.append(I("s_cbranch_scc1", L("c_loop")))
    e = ce.append
    STAMP(ce, 5)
    e(I("v_lshlrev_b32", vT3, 4, vLane))
    e(I("s_mul_i32", sT1, sW, 3 * 131072))
    vR = V(8, 2)
    for t in range(3):
        e(I("v_accvgpr_read_b32", vR[0], LA_[t][0]))
        e(I("v_rcp_f32", vR[0], vR[0]))
        e(I("v_mov_b32", vR[1], vR[0]))
        for kk in range(4):
            X, Y = O[t][2 * kk], O[t][2 * kk + 1]
            for R in (X, Y):
                e(I("v_pk_mul_f32", R.sub(0, 2), R.sub(0, 2), vR)); e(I("v_pk_mul_f32", R.sub(2, 2), R.sub(2, 2), vR))
            e(I("v_cvt_pk_bf16_f32", X[0], X[0], X[1])); e(I("v_cvt_pk_bf16_f32", X[1], X[2], X[3]))
            e(I("v_cvt_pk_bf16_f32", X[2], Y[0], Y[1])); e(I("v_cvt_pk_bf16_f32", X[3], Y[2], Y[3]))
            e(I("buffer_store_dwordx4", X, vT3, sO, sT1, mods=mods(f"offen offset:{kk*1024}", o_mods)))
        e(I("s_add_u32", sT1, sT1, 131072))
    if stamps: e(WAIT(vm=0))
    STAMP(ce, 6)
    STAMP_OUT(ce, 7, vT0, vT1)
    e(I("s_endpgm"))
    rare = []
    for par in range(2):
        r_ = []; e = r_.append
        e(LABEL(L(f"c_rare{par}")))
        e(WAIT(lgkm=0)); e(I("s_nop", 15))
        if par == 0:
            aN, uhN, aN1, uhN1 = vK, 0, vK, 1
        else:
            e(I("v_subrev_u32", vT3, sKD, vK))
            aN, uhN, aN1, uhN1 = vT3, 1, vK, 0
        Dn, Dn1 = SB[par], SB[1 - par]
        qk_simple(r_, aN, uhN, Dn, None)
        for t in range(3):
            rowmax(r_, Dn, t, vT0)
            e(I("v_add_f32", vT0, "0x40e00000", vT0))
            e(I("v_max_f32_e64", vT0, vT0, "-" + str(NEGM[t][0])))
            e(I("v_sub_f32_e64", vT1, "-" + str(NEGM[t][0]), vT0))
            e(I("v_exp_f32", vT1, vT1))
            for r in range(4): e(I("v_sub_f32", NEGM[t][r], 0, vT0))
            for T in range(8):
                for r in range(4): e(I("v_mul_f32", O[t][T][r], O[t][T][r], vT1))
            for r in range(4):
                e(I("v_accvgpr_read_b32", vT2, LA_[t][r])); e(I("v_mul_f32", vT2, vT2, vT1)); e(I("v_accvgpr_write_b32", LA_[t][r], vT2))
            for sb in range(2):
                for r in range(4): e(I("v_add_f32", Dn[sb][t][r], Dn[sb][t][r], NEGM[t][0]))
            r_.extend(exps(Dn, t, 0)); r_.extend(exps(Dn, t, 1)); r_.extend(cvts(Dn, t))
        qk_simple(r_, aN1, uhN1, Dn1, NEGM)
        fb = 8 if par == 0 else 24
        for f in range(fb, fb + LAF): r_.extend(frag_reads(f))
        e(WAIT(lgkm=0)); e(I("s_nop", 15))
        e(I("s_branch", L(f"c_ret{par}")))
        rare.append(r_)

    hT0, hT1, hT2, hT3 = V(5), V(6), V(7), V(4)
    hP = V(8, 8)
    hSYw = V(16); hVal = V(17)
    hp = []; e = hp.append
    e(LABEL(L("helper")))
    if "noload" in exp: e(I("s_endpgm"))
    e(I("s_sub_u32", sHW, sW, 4))
    e(I("s_and_b32", sLW, sHW, 1))
    e(I("s_cmp_ge_u32", sHW, 2))
    e(I("s_cbranch_scc1", L("h23")))
    h01 = []; e = h01.append
    hXo, hXo2, hWo = V(20), V(21), [V(22 + m) for m in range(4)]
    e(I("v_and_b32", hT0, 7, vLane)); e(I("v_lshlrev_b32", hT0, 4, hT0)); e(I("v_lshrrev_b32", hT1, 3, vLane))
    e(I("v_lshl_add_u32", hXo, hT1, 12, hT0)); e(I("v_lshl_add_u32", hXo2, hT1, 11, hT0))
    e(I("s_lshl_b32", sT0, sLW, 10)); e(I("s_add_u32", sT0, sT0, 192 * 1024)); e(I("v_add_u32", hXo2, sT0, hXo2))
    e(I("s_mul_i32", sT0, sLW, 96 * 1024)); e(I("v_add_u32", hXo, sT0, hXo))
    e(I("v_and_b32", hT0, 15, vLane)); e(I("v_lshlrev_b32", hT0, 4, hT0))
    e(I("v_bfe_u32", hT1, vLane, 4, 1)); e(I("v_lshl_add_u32", hT0, hT1, 15, hT0))
    e(I("v_lshrrev_b32", hT1, 5, vLane)); e(I("v_lshl_add_u32", hT0, hT1, 17, hT0))
    e(I("s_lshl_b32", sT0, sLW, 16))
    e(I("v_add_u32", hWo[0], sT0, hT0))
    for m in range(1, 4): e(I("v_add_u32", hWo[m], m * (8192 - BLK), hWo[0]))
    e(I("s_mul_i32", sT3, sLW, 12 * BLK)); e(I("s_add_u32", sT3, sT3, XB0))
    e(I("s_mul_i32", sT2, sLW, BLK)); e(I("s_add_u32", sT2, sT2, XB0 + 24 * BLK))
    e(I("s_mul_i32", sM0, sLW, 4 * BLK)); e(I("s_add_u32", sM0, sM0, WQ_BASE))
    e(I("s_lshl_b32", sT0, sLW, 2)); e(I("s_add_u32", sT0, sT0, SY + F_RDYF)); e(I("v_mov_b32", hSYw, sT0))
    def x_issue(lst, buf):
        a = lst.append
        a(I("s_add_u32", sSO, sTI, sROT)); a(I("s_and_b32", sSO, sSO, 7)); a(I("s_lshl_b32", sSO, sSO, 7))
        if "nox" in exp: a(I("s_mov_b32", sSO, OOB))
        for n in range(12):
            a(I("s_add_u32", M0, sT3, buf * XBSZ + n * BLK))
            a(I("s_add_u32", sT0, sSO, ((n >> 2) * 32 + (n & 3)) * 1024))
            a(I("buffer_load_dwordx4", hXo, sX, sT0, mods=mods("offen", f_mods, "lds")))
        a(I("s_add_u32", M0, sT2, buf * XBSZ))
        a(I("s_nop", 0))
        a(I("buffer_load_dwordx4", hXo2, sX, sSO, mods=mods("offen", f_mods, "lds")))
    def w_issue(lst, slot, odd):
        a = lst.append
        a(I("s_add_u32", sSO, sTI, sROT)); a(I("s_and_b32", sSO, sSO, 7)); a(I("s_lshl_b32", sSO, sSO, 19))
        if odd: a(I("s_add_u32", sSO, sSO, 1 << 18))
        if "nowq" in exp: a(I("s_mov_b32", sSO, OOB))
        a(I("s_add_u32", M0, sM0, slot * WQ_CH))
        a(I("s_nop", 0))
        for m in range(4):
            a(I("buffer_load_dwordx4", hWo[m], sWQ, sSO, mods=mods(f"offen offset:{m*BLK}", f_mods, "lds")))
    def publish(lst, vmn, val=None):
        a = lst.append
        if vmn is not None: a(WAIT(vm=vmn))
        if val is None:
            a(I("s_add_u32", sDN, sDN, 1)); a(I("v_mov_b32", hVal, sDN))
        else:
            a(I("v_mov_b32", hVal, val))
        a(I("ds_write_b32", hSYw, hVal))
    def poll_pub(lst, site, need, allval):
        if "nosync" in exp: return
        a = lst.append
        a(I("ds_read_b128", hP.sub(0, 4), vSY, mods=f"offset:{F_DONEF}")); a(WAIT(lgkm=0))
        a(I("v_min3_u32", hP[0], hP[0], hP[1], hP[2])); a(I("v_min_u32", hP[0], hP[0], hP[3]))
        a(I("v_cmp_gt_u32", VCC, need, hP[0]))
        a(I("s_cbranch_vccz", L("pok_" + site)))
        a(WAIT(vm=4)); a(I("v_add_u32", hVal, -1, allval)); a(I("ds_write_b32", hSYw, hVal))
        a(WAIT(vm=0)); a(I("v_mov_b32", hVal, allval)); a(I("ds_write_b32", hSYw, hVal))
        poll(lst, site, hP, F_DONEF, 4, need, sleep=False)
    hIss = V(18)
    def pub_lag(lst, vmn):
        a = lst.append
        a(WAIT(vm=vmn))
        a(I("v_add_u32", hIss, 1, hIss))
        a(I("v_add_u32", hT3, -2, hIss)); a(I("v_max_i32", hVal, hVal, hT3))
        a(I("ds_write_b32", hSYw, hVal))
    e(I("s_mov_b32", sTI, 0)); e(I("v_mov_b32", hIss, 2)); e(I("v_mov_b32", hVal, 0))
    x_issue(h01, 0); w_issue(h01, 0, 0)
    e(I("s_barrier"))
    w_issue(h01, 1, 1); pub_lag(h01, 8)
    e(I("s_mov_b32", sTI, 1))
    x_issue(h01, 1); pub_lag(h01, 17)
    w_issue(h01, 2, 0); pub_lag(h01, 17)
    w_issue(h01, 3, 1); pub_lag(h01, 8)
    h01b = []; e = h01b.append
    for c in range(2, 8):
        e(I("s_mov_b32", sTI, c))
        poll_pub(h01b, f"hx{c}", 2 * c - 3, hIss)
        x_issue(h01b, c & 1); pub_lag(h01b, 17)
        w_issue(h01b, (2 * c) & 7, 0); pub_lag(h01b, 17)
        w_issue(h01b, (2 * c + 1) & 7, 1); pub_lag(h01b, 8)
    h01c = []; e = h01c.append
    STAMP(h01c, 1)
    publish(h01c, 4, 23); publish(h01c, 0, 24)
    hK, hV = V(2), V(3)
    hNEG = V(20, 4); hS = [V(24, 4), V(28, 4)]; hL = V(32, 4)
    hO = [V(36 + 4 * T, 4) for T in range(8)]
    hQ = [V(68 + 4 * kk, 4) for kk in range(4)]
    hKF = [[V(84 + (sb * 4 + kk) * 4, 4) for kk in range(4)] for sb in range(2)]
    hVF = [V(116 + 4 * T, 4) for T in range(8)]
    hONES = V(148, 4)
    lane_kv(h01c, hK, hV, hT0)
    e(I("s_mul_i32", sT0, sLW, 8 * BLK)); e(I("v_add_u32", hK, sT0, hK))
    e(I("s_add_u32", sT0, sT0, TILE)); e(I("v_add_u32", hV, sT0, hV))
    for T in range(8):
        for r in range(4): e(I("v_mov_b32", hO[T][r], 0))
    for r in range(4):
        e(I("v_mov_b32", hL[r], 0)); e(I("v_mov_b32", hNEG[r], "0x7f000000")); e(I("v_mov_b32", hONES[r], 0x3F803F80))
    e(I("s_lshl_b32", sT0, sLW, 2)); e(I("s_add_u32", sT0, sT0, SY + F_DONEKV + 16)); e(I("v_mov_b32", hSYw, sT0))
    poll(h01c, "hq13", hP, F_DONEF, 4, 101)
    STAMP(h01c, 3)
    e(I("v_lshlrev_b32", hT0, 4, vLane)); e(I("v_add_u32", hT0, Q13X, hT0))
    for kk in range(4): e(I("ds_read_b128", hQ[kk], hT0, mods=f"offset:{kk*1024}"))
    e(I("s_mov_b32", sNEED, 2)); e(I("s_mov_b32", sKSL, 0))
    if "noH" in exp: e(I("s_endpgm"))
    e(LABEL(L("h_loop")))
    hb = []; e = hb.append
    poll(hb, "hkv", hP, F_RDYKV, 2, sNEED)
    for sb in range(2):
        for kk in range(4): e(I("ds_read_b128", hKF[sb][kk], hK, mods=f"offset:{sb*512 + kk*64}"))
    for T in range(8):
        for hh in range(2): e(I("ds_read_b64_tr_b16", hVF[T].sub(2 * hh, 2), hV, mods=f"offset:{hh*512 + T*32}"))
    e(I("v_mov_b32", hVal, sNEED)); e(I("ds_write_b32", hSYw, hVal))
    for sb in range(2):
        for kk in range(4):
            e(I(MFMA, hS[sb], hKF[sb][kk], hQ[kk], hNEG if kk == 0 else hS[sb]))
    e(I("s_add_u32", sKSL, sKSL, 2)); e(I("s_cmp_ge_u32", sKSL, NSLOT))
    e(I("s_cselect_b32", sKD, (2 - NSLOT) * TILE, sC2T)); e(I("s_cselect_b32", sT0, NSLOT, 0)); e(I("s_sub_u32", sKSL, sKSL, sT0))
    e(I("s_add_u32", sT0, sKSL, 1)); e(I("s_cmp_ge_u32", sT0, NSLOT)); e(I("s_cselect_b32", sT0, 0, sT0))
    e(I("s_cmp_lt_u32", sT0, 2)); e(I("s_cselect_b32", sVD, (2 - NSLOT) * TILE, sC2T))
    def hsoft(lst):
        a = lst.append
        for sb in range(2):
            for r in range(4): a(I("v_exp_f32", hS[sb][r], hS[sb][r]))
        x, y = hS
        a(I("v_cvt_pk_bf16_f32", x[0], x[0], x[1])); a(I("v_cvt_pk_bf16_f32", x[1], x[2], x[3]))
        a(I("v_cvt_pk_bf16_f32", x[2], y[0], y[1])); a(I("v_cvt_pk_bf16_f32", x[3], y[2], y[3]))
    hsoft(hb)
    e(I("v_or3_b32", hT0, hS[0][0], hS[0][1], hS[0][2])); e(I("v_or_b32", hT0, hT0, hS[0][3]))
    e(I("v_and_b32", hT0, 0x40004000, hT0))
    e(I("v_cmp_ne_u32", VCC, 0, hT0))
    if "norare" not in exp: e(I("s_cbranch_vccnz", L("h_rare")))
    e(LABEL(L("h_ret")))
    e(I(MFMA, hL, hONES, hS[0], hL))
    for T in range(8): e(I(MFMA, hO[T], hVF[T], hS[0], hO[T]))
    e(I("v_add_u32", hK, sKD, hK)); e(I("v_add_u32", hV, sVD, hV))
    e(I("s_add_u32", sNEED, sNEED, 2)); e(I("s_cmp_le_u32", sNEED, 16))
    e(I("s_cbranch_scc1", L("h_loop")))
    hf = []; e = hf.append
    STAMP(hf, 5)
    e(I("v_lshlrev_b32", hT0, 4, vLane))
    e(I("s_lshl_b32", sT0, sLW, 13)); e(I("s_add_u32", sT0, sT0, HX))
    e(I("v_add_u32", hT1, sT0, hT0))
    for T in range(8): e(I("ds_write_b128", hT1, hO[T], mods=f"offset:{T*1024}"))
    e(I("v_lshlrev_b32", hT2, 3, vLane))
    e(I("s_lshl_b32", sT0, sLW, 9)); e(I("s_add_u32", sT0, sT0, HML))
    e(I("v_add_u32", hT1, sT0, hT2))
    e(I("v_mov_b32", hNEG[1], hL[0]))
    e(I("ds_write_b64", hT1, hNEG.sub(0, 2)))
    e(I("s_lshl_b32", sT0, sLW, 2)); e(I("s_add_u32", sT0, sT0, SY + F_HFIN)); e(I("v_mov_b32", hSYw, sT0))
    e(I("v_mov_b32", hVal, 1)); e(I("ds_write_b32", hSYw, hVal))
    poll(hf, "hfin", hP, F_HFIN, 2, 1)
    ML = [V(68 + 2 * s, 2) for s in range(2)]
    PO = [[V(84 + (s * 4 + x) * 4, 4) for x in range(4)] for s in range(2)]
    e(I("v_add_u32", hT2, HML, hT2))
    for s in range(2): e(I("ds_read_b64", ML[s], hT2, mods=f"offset:{s*512}"))
    e(I("s_lshl_b32", sT0, sLW, 12)); e(I("s_add_u32", sT0, sT0, HX))
    e(I("v_add_u32", hT1, sT0, hT0))
    for s in range(2):
        for x in range(4): e(I("ds_read_b128", PO[s][x], hT1, mods=f"offset:{s*8192 + x*1024}"))
    e(I("v_min_f32", hT2, ML[0][0], ML[1][0]))
    for s in range(2):
        e(I("v_sub_f32", ML[s][0], hT2, ML[s][0])); e(I("v_exp_f32", ML[s][0], ML[s][0]))
    e(I("v_mul_f32", hT3, ML[0][0], ML[0][1])); e(I("v_fmac_f32", hT3, ML[1][0], ML[1][1]))
    e(I("v_rcp_f32", hT3, hT3))
    for s in range(2): e(I("v_mul_f32", ML[s][0], ML[s][0], hT3))
    for x in range(4):
        for r in range(4):
            e(I("v_mul_f32", PO[0][x][r], PO[0][x][r], ML[0][0]))
            e(I("v_fmac_f32", PO[0][x][r], PO[1][x][r], ML[1][0]))
    e(I("s_lshl_b32", sT0, sLW, 11)); e(I("s_add_u32", sT0, sT0, 12 * 131072))
    for j in range(2):
        X, Y = PO[0][2 * j], PO[0][2 * j + 1]
        e(I("v_cvt_pk_bf16_f32", X[0], X[0], X[1])); e(I("v_cvt_pk_bf16_f32", X[1], X[2], X[3]))
        e(I("v_cvt_pk_bf16_f32", X[2], Y[0], Y[1])); e(I("v_cvt_pk_bf16_f32", X[3], Y[2], Y[3]))
        e(I("buffer_store_dwordx4", X, hT0, sO, sT0, mods=mods(f"offen offset:{j*1024}", o_mods)))
    if stamps: e(WAIT(vm=0))
    STAMP(hf, 6)
    STAMP_OUT(hf, 7, hT1, hT2)
    e(I("s_endpgm"))
    hr = []; e = hr.append
    e(LABEL(L("h_rare")))
    e(I("s_nop", 15))
    for sb in range(2):
        for kk in range(4):
            e(I(MFMA, hS[sb], hKF[sb][kk], hQ[kk], 0 if kk == 0 else hS[sb]))
    x, y = hS
    e(I("v_max3_f32", hT0, x[0], x[1], x[2])); e(I("v_max3_f32", hT0, hT0, x[3], y[0]))
    e(I("v_max3_f32", hT0, hT0, y[1], y[2])); e(I("v_max_f32", hT0, hT0, y[3]))
    xlane_max(hr, hT0, hT1, hT2)
    e(I("v_add_f32", hT0, "0x40e00000", hT0))
    e(I("v_max_f32_e64", hT0, hT0, "-" + str(hNEG[0])))
    e(I("v_sub_f32_e64", hT1, "-" + str(hNEG[0]), hT0))
    e(I("v_exp_f32", hT1, hT1))
    for r in range(4): e(I("v_sub_f32", hNEG[r], 0, hT0))
    for T in range(8):
        for r in range(4): e(I("v_mul_f32", hO[T][r], hO[T][r], hT1))
    for r in range(4): e(I("v_mul_f32", hL[r], hL[r], hT1))
    for sb in range(2):
        for r in range(4): e(I("v_add_f32", hS[sb][r], hS[sb][r], hNEG[0]))
    hsoft(hr)
    e(I("s_nop", 3))
    e(I("s_branch", L("h_ret")))
    h23 = []; e = h23.append
    hG, hD, hDst = V(20), V(21), V(22)
    RB = [V(24 + 32 * b, 32) for b in range(6)] + [A(0, 32)]
    NRB = 7
    e(LABEL(L("h23")))
    e(I("v_lshlrev_b32", hG, 4, vLane)); e(I("s_lshl_b32", sT0, sLW, 13)); e(I("v_add_u32", hG, sT0, hG))
    e(I("v_and_b32", hT0, 15, vLane)); e(I("v_lshlrev_b32", hT0, 4, hT0))
    e(I("v_lshrrev_b32", hT1, 4, vLane)); e(I("v_mul_u32_u24", hT1, BLK, hT1)); e(I("v_add_u32", hD, hT0, hT1))
    e(I("s_mul_i32", sT0, sLW, 8 * BLK)); e(I("v_add_u32", hD, sT0, hD))
    e(I("s_lshl_b32", sT0, sLW, 2)); e(I("s_add_u32", sT0, sT0, SY + F_RDYKV)); e(I("v_mov_b32", hSYw, sT0))
    def Lq(i):
        if i >= 16: return
        if i >= 2: e(WAIT(vm=kvwin))
        for hf_ in range(2):
            e(I("s_mov_b32", sSO, (i >> 1) * 16384 + hf_ * 4096 + (OOB if "nokv" in exp else 0)))
            for m in range(4):
                e(I("buffer_load_dwordx4", RB[i % NRB].sub((hf_ * 4 + m) * 4, 4), hG, sV if i & 1 else sK, sSO,
                    mods=mods(f"offen offset:{m*1024}", kv_mods)))
    def Wr(i):
        if i == 2: poll(h23, "fwq", hP, F_DONEF, 4, 100)
        if i >= 9: poll(h23, f"fwk{i}", hP, F_DONEKV, 6, i - 8)
        e(I("v_add_u32", hDst, (i % NSLOT) * TILE, hD))
        for m in range(8):
            e(I("ds_write_b128", hDst, RB[i % NRB].sub(m * 4, 4), mods=f"offset:{(m & 1) * 4 * BLK + (m >> 1) * 256}"))
        e(I("v_mov_b32", hVal, i + 1)); e(I("ds_write_b32", hSYw, hVal))
    Lq(0); Lq(1)
    e(I("s_barrier"))
    Wr(0); Wr(1)
    STAMP(h23, 1)
    poll(h23, "kvres", hP, F_RDYF, 2, kvres)
    STAMP(h23, 2)
    for i in range(2, 9): Lq(i)
    STAMP(h23, 3)
    for i in range(2, 16):
        Wr(i); Lq(i + 7)
    STAMP(h23, 6)
    STAMP_OUT(h23, 7, hT1, hT2)
    e(LABEL(L("end")))
    e(I("s_endpgm"))

    paths = [pre + cq + cqb + cqb + cv + body + body + ce,
             rare[0], rare[1],
             pre + hp + h01 + h01b + h01c + hb + hb + hf,
             pre + hp + h23,
             hb + hr] + spins
    apply_waits(paths)
    apply_hazards(paths)
    order = [pre, cq, cqb, cv, body, ce, hp, h01, h01b, h01c, hb, hf, h23, hr, rare[0], rare[1]] + spins
    txt = "\n".join(render(x) for x in order)
    return txt, dict(vgpr=256, sgpr=100, accum=216)
```

```python
from ir import *

K2_LDS = 135168
def gen_k2(name, dbg=False):
    pre, body, post = [], [], []
    e = pre.append
    sWO, sO, sOUT = S(8, 4), S(12, 4), S(16, 4)
    sB, sRG, sNG, sQT0, sNQ, sW = S(20), S(21), S(22), S(23), S(24), S(25)
    sT0, sT1, sT2 = S(26), S(27), S(28)
    sKS, sM0B, sSO_O, sSO_W, sM0V = S(29), S(30), S(31), S(32), S(33)
    pWO, pOUT, pWS = S(34, 2), S(36, 2), S(38, 2)
    vLane, vT0, vT1, vT2 = V(1), V(2), V(3), V(4)
    vOffO = [V(8 + t) for t in range(4)]
    vOffW = [V(12 + b) for b in range(4)]
    vRd = V(16)
    ACC = [[V(32 + (qt * 4 + T) * 4, 4) for T in range(4)] for qt in range(4)]
    OF = [[V(96 + (st * 4 + qt) * 4, 4) for qt in range(4)] for st in range(4)]
    WF = [V(160 + T * 4, 4) for T in range(4)]
    NV = 176

    e(I("s_cmp_ge_u32", S(2), 256))
    e(I("s_cbranch_scc1", f"L_{name}_end"))
    e(I("s_load_dwordx2", pWO, S(0, 2), 32))
    e(I("s_load_dwordx2", pOUT, S(0, 2), 40))
    e(I("s_load_dwordx2", pWS, S(0, 2), 56))
    e(I("v_lshrrev_b32", vT0, 6, V(0)))
    e(I("v_and_b32", vLane, 63, V(0)))
    e(I("v_readfirstlane_b32", sW, vT0))
    e(I("s_and_b32", sB, S(2), 7))
    e(I("s_lshr_b32", sT0, S(2), 3))
    e(I("s_lshr_b32", sRG, sT0, 3))
    e(I("s_and_b32", sNG, sT0, 7))
    e(I("s_mul_i32", sQT0, sRG, 3))
    e(I("s_add_u32", sQT0, sQT0, 1))
    e(I("s_cmp_eq_u32", sRG, 0))
    e(I("s_cselect_b32", sQT0, 0, sQT0))
    e(I("s_cselect_b32", sNQ, 4, 3))
    for qt in range(4):
        for T in range(4):
            for r in range(4):
                e(I("v_mov_b32", ACC[qt][T][r], 0))
    e(I("v_lshlrev_b32", vOffO[0], 4, vLane))
    for t in range(1, 4):
        e(I("v_add_u32", vOffO[t], t * 131072, vOffO[0]))
    e(I("v_and_b32", vT0, 7, vLane))
    e(I("v_lshlrev_b32", vT0, 4, vT0))
    e(I("v_bfe_u32", vT1, vLane, 3, 1))
    e(I("v_lshl_add_u32", vT0, vT1, 10, vT0))
    e(I("v_lshrrev_b32", vT1, 4, vLane))
    e(I("v_lshl_add_u32", vOffW[0], vT1, 13, vT0))
    for b in range(1, 4):
        e(I("v_add_u32", vOffW[b], b * 992, vOffW[0]))
    e(I("v_and_b32", vT0, 3, vLane))
    e(I("v_lshlrev_b32", vT0, 3, vT0))
    e(I("v_bfe_u32", vT1, vLane, 3, 2))
    e(I("v_mul_u32_u24", vT1, 1056, vT1))
    e(I("v_add_u32", vT0, vT0, vT1))
    e(I("v_bfe_u32", vT1, vLane, 2, 1))
    e(I("v_lshl_add_u32", vT0, vT1, 7, vT0))
    e(I("v_bfe_u32", vT1, vLane, 5, 1))
    e(I("v_lshl_add_u32", vT0, vT1, 8, vT0))
    e(I("s_mul_i32", sM0B, sW, 16896))
    e(I("v_add_u32", vRd, sM0B, vT0))
    if dbg:
        e(I("s_load_dwordx2", S(44, 2), S(0, 2), 48)); e(I("s_memrealtime", S(46, 2)))
    e(WAIT(lgkm=0))
    if dbg:
        e(I("s_sub_u32", S(40), S(44), 0)); e(I("s_subb_u32", S(41), S(45), 0)); e(I("s_mov_b32", S(42), 256)); e(I("s_mov_b32", S(43), 0x20000))
    e(I("s_mul_i32", sT0, sB, 13))
    e(I("s_add_u32", sT0, sT0, sQT0))
    e(I("s_lshl_b32", sT0, sT0, 17))
    e(I("s_lshl_b32", sT1, sW, 14))
    e(I("s_add_u32", sT0, sT0, sT1))
    e(I("s_add_u32", sO[0], pWS[0], sT0))
    e(I("s_addc_u32", sO[1], pWS[1], 0))
    e(I("s_lshl_b32", sT2, sNQ, 17))
    e(I("s_sub_u32", sO[2], sT2, sT1))
    e(I("s_mov_b32", sO[3], 0x20000))
    e(I("s_lshl_b32", sT0, sW, 19))
    e(I("s_lshl_b32", sT1, sNG, 7))
    e(I("s_add_u32", sT0, sT0, sT1))
    e(I("s_add_u32", sWO[0], pWO[0], sT0))
    e(I("s_addc_u32", sWO[1], pWO[1], 0))
    e(I("s_sub_u32", sWO[2], 4194304, sT0))
    e(I("s_mov_b32", sWO[3], 0x20000))
    e(I("s_mul_i32", sT0, sB, 212992))
    e(I("s_lshl_b32", sT1, sQT0, 14))
    e(I("s_add_u32", sT0, sT0, sT1))
    e(I("s_lshl_b32", sT1, sNG, 7))
    e(I("s_add_u32", sT0, sT0, sT1))
    e(I("s_add_u32", sOUT[0], pOUT[0], sT0))
    e(I("s_addc_u32", sOUT[1], pOUT[1], 0))
    e(I("s_sub_u32", sOUT[2], 1703936, sT0))
    e(I("s_mov_b32", sOUT[3], 0x20000))

    def issue(lst, st):
        a = lst.append
        a(I("s_lshl_b32", sSO_O, sKS, 10))
        a(I("s_lshl_b32", sSO_W, sKS, 15))
        a(I("s_add_u32", sM0V, sM0B, st * 4224))
        a(I("s_cmp_lt_u32", sKS, 16))
        a(I("s_cselect_b32", sSO_O, sSO_O, 0x40000000))
        a(I("s_cselect_b32", sSO_W, sSO_W, 0x40000000))
        a(I("s_cselect_b32", M0, sM0V, 0x30000))
        a(I("s_add_u32", sKS, sKS, 1))
        for b in range(4):
            a(I("buffer_load_dwordx4", vOffW[b], sWO, sSO_W, mods=f"offen offset:{b*1056} lds"))
        for t in range(4):
            a(I("buffer_load_dwordx4", OF[st][t], vOffO[t], sO, sSO_O, mods="offen"))
    e(I("s_mov_b32", sKS, 0))
    for st in range(3):
        issue(pre, st)
    e(I("s_mov_b32", sT2, 0))
    e(LABEL(f"L_{name}_loop"))
    b_ = body.append
    for st in range(4):
        b_(WAIT(vm=16))
        for T in range(4):
            for hh in range(2):
                b_(I("ds_read_b64_tr_b16", WF[T].sub(2 * hh, 2), vRd, mods=f"offset:{st*4224 + hh*512 + T*32}"))
        issue(body, (st + 3) & 3)
        for T in range(4):
            for qt in range(4):
                b_(I("v_mfma_f32_16x16x32_bf16", ACC[qt][T], WF[T], OF[st][qt], ACC[qt][T]))
    b_(I("s_add_u32", sT2, sT2, 1))
    b_(I("s_cmp_lt_u32", sT2, 4))
    b_(I("s_cbranch_scc1", f"L_{name}_loop"))
    p = post.append
    p(WAIT(vm=0, lgkm=0))
    p(I("s_barrier"))
    p(I("s_lshl_b32", sT0, sW, 14))
    p(I("v_lshlrev_b32", vT0, 4, vLane))
    p(I("v_add_u32", vT1, sT0, vT0))
    for qt in range(4):
        for T in range(4):
            p(I("ds_write_b128", vT1, ACC[qt][T], mods=f"offset:{(qt*4+T)*1024}"))
    p(I("s_lshl_b32", sT0, sW, 11))
    p(I("v_add_u32", vT1, sT0, vT0))
    p(I("v_add_u32", vT2, 65536, vT1))
    p(WAIT(lgkm=0))
    p(I("s_barrier"))
    RB = [[V(96 + (s * 2 + x) * 4, 4) for x in range(2)] for s in range(8)]
    for s in range(8):
        for x in range(2):
            p(I("ds_read_b128", RB[s][x], vT1 if s < 4 else vT2, mods=f"offset:{(s&3)*16384 + x*1024}"))
    p(I("s_lshr_b32", sT0, sW, 1))
    p(I("s_cmp_ge_u32", sT0, sNQ))
    p(I("s_cbranch_scc1", f"L_{name}_end"))
    for s in range(1, 8):
        for x in range(2):
            for r in range(4):
                p(I("v_add_f32", RB[0][x][r], RB[0][x][r], RB[s][x][r]))
    for x in range(2):
        p(I("v_cvt_pk_bf16_f32", V(20 + 2 * x), RB[0][x][0], RB[0][x][1]))
        p(I("v_cvt_pk_bf16_f32", V(21 + 2 * x), RB[0][x][2], RB[0][x][3]))
    p(I("v_and_b32", vT0, 15, vLane))
    p(I("v_lshlrev_b32", vT0, 10, vT0))
    p(I("v_lshrrev_b32", vT1, 4, vLane))
    p(I("v_lshl_add_u32", vT0, vT1, 3, vT0))
    p(I("s_lshl_b32", sT0, sT0, 14))
    p(I("s_and_b32", sT1, sW, 1))
    p(I("s_lshl_b32", sT1, sT1, 6))
    p(I("s_add_u32", sT0, sT0, sT1))
    for x in range(2):
        p(I("buffer_store_dwordx2", V(20 + 2 * x, 2), vT0, sOUT, sT0, mods=f"offen offset:{x*32}"))
    if dbg:
        p(WAIT(vm=0)); p(I("s_memrealtime", S(44, 2))); p(WAIT(lgkm=0))
        p(I("v_mov_b32", vT0, 0)); p(I("s_not_b32", sT0, S(46))); p(I("v_mov_b32", vT1, sT0)); p(I("s_mov_b64", EXEC, 1))
        p(I("buffer_atomic_umax", vT1, vT0, S(40, 4), 0, mods="offen offset:48"))
        p(I("s_nop", 1)); p(I("v_mov_b32", vT1, S(44)))
        p(I("buffer_atomic_umax", vT1, vT0, S(40, 4), 0, mods="offen offset:52"))
        p(WAIT(vm=0))
    p(LABEL(f"L_{name}_end"))
    p(I("s_endpgm"))
    paths = [pre + body + body + post]
    apply_waits(paths)
    apply_hazards(paths)
    txt = render(pre) + "\n" + render(body) + "\n" + render(post)
    desc = dict(vgpr=NV, sgpr=48, accum=NV)
    return txt, desc

def kernel_wrap(name, txt, desc):
    return f""".text
.globl {name}
.p2align 8
.type {name},@function
{name}:
{txt}
"""
def kernel_desc(name, desc):
    return f""".amdhsa_kernel {name}
  .amdhsa_next_free_vgpr {desc['vgpr']}
  .amdhsa_next_free_sgpr {desc['sgpr']}
  .amdhsa_accum_offset {desc['accum']}
  .amdhsa_group_segment_fixed_size 0
  .amdhsa_kernarg_size 64
  .amdhsa_user_sgpr_count 2
  .amdhsa_user_sgpr_kernarg_segment_ptr 1
  .amdhsa_system_sgpr_workgroup_id_x 1
.end_amdhsa_kernel
"""
if __name__ == "__main__":
    n = "oproj_kernel"
    txt, desc = gen_k2(n)
    print(f"; @launch kernel={n} grid=(256,1,1) block=(512,1,1) lds={K2_LDS}")
    print('.amdgcn_target "amdgcn-amd-amdhsa--gfx950"')
    print(kernel_wrap(n, txt, desc))
    print('.section .rodata,"a"\n.p2align 6')
    print(kernel_desc(n, desc))
```

```python
from ir import *

K2_LDS = 135168
def gen_k2(name, dbg=False, wo_mods="", o_mods="", rot=0):
    pre, body, post = [], [], []
    e = pre.append
    sWO, sO, sOUT = S(8, 4), S(12, 4), S(16, 4)
    sB, sRG, sNG, sQT0, sNQ, sW = S(20), S(21), S(22), S(23), S(24), S(25)
    sT0, sT1, sT2 = S(26), S(27), S(28)
    sKS, sM0B, sSO_O, sSO_W, sM0V = S(29), S(30), S(31), S(32), S(33)
    pWO, pOUT, pWS = S(34, 2), S(36, 2), S(38, 2)
    vLane, vT0, vT1, vT2 = V(1), V(2), V(3), V(4)
    vOffO = [V(8 + t) for t in range(4)]
    vOffW = [V(12 + b) for b in range(4)]
    vRd = V(16)
    ACC = [[V(32 + (qt * 4 + T) * 4, 4) for T in range(4)] for qt in range(4)]
    OF = [[V(96 + (st * 4 + qt) * 4, 4) for qt in range(4)] for st in range(4)]
    WF = [V(160 + T * 4, 4) for T in range(4)]
    NV = 176

    e(I("s_cmp_ge_u32", S(2), 256))
    e(I("s_cbranch_scc1", f"L_{name}_end"))
    e(I("s_load_dwordx2", pWO, S(0, 2), 32))
    e(I("s_load_dwordx2", pOUT, S(0, 2), 40))
    e(I("s_load_dwordx2", pWS, S(0, 2), 56))
    e(I("v_lshrrev_b32", vT0, 6, V(0)))
    e(I("v_and_b32", vLane, 63, V(0)))
    e(I("v_readfirstlane_b32", sW, vT0))
    e(I("s_and_b32", sB, S(2), 7))
    e(I("s_lshr_b32", sT0, S(2), 3))
    e(I("s_lshr_b32", sRG, sT0, 3))
    e(I("s_and_b32", sNG, sT0, 7))
    e(I("s_mul_i32", sQT0, sRG, 3))
    e(I("s_add_u32", sQT0, sQT0, 1))
    e(I("s_cmp_eq_u32", sRG, 0))
    e(I("s_cselect_b32", sQT0, 0, sQT0))
    e(I("s_cselect_b32", sNQ, 4, 3))
    for qt in range(4):
        for T in range(4):
            for r in range(4):
                e(I("v_mov_b32", ACC[qt][T][r], 0))
    e(I("v_lshlrev_b32", vOffO[0], 4, vLane))
    for t in range(1, 4):
        e(I("v_add_u32", vOffO[t], t * 131072, vOffO[0]))
    e(I("v_and_b32", vT0, 7, vLane))
    e(I("v_lshlrev_b32", vT0, 4, vT0))
    e(I("v_bfe_u32", vT1, vLane, 3, 1))
    e(I("v_lshl_add_u32", vT0, vT1, 10, vT0))
    e(I("v_lshrrev_b32", vT1, 4, vLane))
    e(I("v_lshl_add_u32", vOffW[0], vT1, 13, vT0))
    for b in range(1, 4):
        e(I("v_add_u32", vOffW[b], b * 992, vOffW[0]))
    e(I("v_and_b32", vT0, 3, vLane))
    e(I("v_lshlrev_b32", vT0, 3, vT0))
    e(I("v_bfe_u32", vT1, vLane, 3, 2))
    e(I("v_mul_u32_u24", vT1, 1056, vT1))
    e(I("v_add_u32", vT0, vT0, vT1))
    e(I("v_bfe_u32", vT1, vLane, 2, 1))
    e(I("v_lshl_add_u32", vT0, vT1, 7, vT0))
    e(I("v_bfe_u32", vT1, vLane, 5, 1))
    e(I("v_lshl_add_u32", vT0, vT1, 8, vT0))
    e(I("s_mul_i32", sM0B, sW, 16896))
    e(I("v_add_u32", vRd, sM0B, vT0))
    if dbg:
        e(I("s_load_dwordx2", S(44, 2), S(0, 2), 48)); e(I("s_memrealtime", S(48, 2)))
    e(WAIT(lgkm=0))
    if dbg:
        e(I("s_sub_u32", S(40), S(44), 0)); e(I("s_subb_u32", S(41), S(45), 0)); e(I("s_mov_b32", S(42), 256)); e(I("s_mov_b32", S(43), 0x20000))
    e(I("s_mul_i32", sT0, sB, 13))
    e(I("s_add_u32", sT0, sT0, sQT0))
    e(I("s_lshl_b32", sT0, sT0, 17))
    e(I("s_lshl_b32", sT1, sW, 14))
    e(I("s_add_u32", sT0, sT0, sT1))
    e(I("s_add_u32", sO[0], pWS[0], sT0))
    e(I("s_addc_u32", sO[1], pWS[1], 0))
    e(I("s_lshl_b32", sT2, sNQ, 17))
    e(I("s_sub_u32", sO[2], sT2, sT1))
    e(I("s_mov_b32", sO[3], 0x20000))
    e(I("s_lshl_b32", sT0, sW, 19))
    e(I("s_lshl_b32", sT1, sNG, 7))
    e(I("s_add_u32", sT0, sT0, sT1))
    e(I("s_add_u32", sWO[0], pWO[0], sT0))
    e(I("s_addc_u32", sWO[1], pWO[1], 0))
    e(I("s_sub_u32", sWO[2], 4194304, sT0))
    e(I("s_mov_b32", sWO[3], 0x20000))
    e(I("s_mul_i32", sT0, sB, 212992))
    e(I("s_lshl_b32", sT1, sQT0, 14))
    e(I("s_add_u32", sT0, sT0, sT1))
    e(I("s_lshl_b32", sT1, sNG, 7))
    e(I("s_add_u32", sT0, sT0, sT1))
    e(I("s_add_u32", sOUT[0], pOUT[0], sT0))
    e(I("s_addc_u32", sOUT[1], pOUT[1], 0))
    e(I("s_sub_u32", sOUT[2], 1703936, sT0))
    e(I("s_mov_b32", sOUT[3], 0x20000))

    def issue(lst, st):
        a = lst.append
        if rot:
            a(I("s_add_u32", sSO_W, sKS, S(47))); a(I("s_and_b32", sSO_W, sSO_W, 15))
            a(I("s_lshl_b32", sSO_O, sSO_W, 10))
            a(I("s_lshl_b32", sSO_W, sSO_W, 15))
        else:
            a(I("s_lshl_b32", sSO_O, sKS, 10))
            a(I("s_lshl_b32", sSO_W, sKS, 15))
        a(I("s_add_u32", sM0V, sM0B, st * 4224))
        a(I("s_cmp_lt_u32", sKS, 16))
        a(I("s_cselect_b32", sSO_O, sSO_O, 0x40000000))
        a(I("s_cselect_b32", sSO_W, sSO_W, 0x40000000))
        a(I("s_cselect_b32", M0, sM0V, 0x30000))
        a(I("s_add_u32", sKS, sKS, 1))
        for b in range(4):
            a(I("buffer_load_dwordx4", vOffW[b], sWO, sSO_W, mods=" ".join(x for x in (f"offen offset:{b*1056}", wo_mods, "lds") if x)))
        for t in range(4):
            a(I("buffer_load_dwordx4", OF[st][t], vOffO[t], sO, sSO_O, mods=("offen " + o_mods).strip()))
    e(I("s_mov_b32", sKS, 0))
    if rot:
        e(I("s_lshl_b32", S(47), sNG, 1)); e(I("s_lshl_b32", sT0, sRG, 2)); e(I("s_add_u32", S(47), S(47), sT0))
    for st in range(3):
        issue(pre, st)
    e(I("s_mov_b32", sT2, 0))
    e(LABEL(f"L_{name}_loop"))
    b_ = body.append
    for st in range(4):
        b_(WAIT(vm=16))
        for T in range(4):
            for hh in range(2):
                b_(I("ds_read_b64_tr_b16", WF[T].sub(2 * hh, 2), vRd, mods=f"offset:{st*4224 + hh*512 + T*32}"))
        issue(body, (st + 3) & 3)
        for T in range(4):
            for qt in range(4):
                b_(I("v_mfma_f32_16x16x32_bf16", ACC[qt][T], WF[T], OF[st][qt], ACC[qt][T]))
    b_(I("s_add_u32", sT2, sT2, 1))
    b_(I("s_cmp_lt_u32", sT2, 4))
    b_(I("s_cbranch_scc1", f"L_{name}_loop"))
    p = post.append
    p(WAIT(vm=0, lgkm=0))
    p(I("s_barrier"))
    p(I("s_lshl_b32", sT0, sW, 14))
    p(I("v_lshlrev_b32", vT0, 4, vLane))
    p(I("v_add_u32", vT1, sT0, vT0))
    for qt in range(4):
        for T in range(4):
            p(I("ds_write_b128", vT1, ACC[qt][T], mods=f"offset:{(qt*4+T)*1024}"))
    p(I("s_lshl_b32", sT0, sW, 11))
    p(I("v_add_u32", vT1, sT0, vT0))
    p(I("v_add_u32", vT2, 65536, vT1))
    p(WAIT(lgkm=0))
    p(I("s_barrier"))
    RB = [[V(96 + (s * 2 + x) * 4, 4) for x in range(2)] for s in range(8)]
    for s in range(8):
        for x in range(2):
            p(I("ds_read_b128", RB[s][x], vT1 if s < 4 else vT2, mods=f"offset:{(s&3)*16384 + x*1024}"))
    p(I("s_lshr_b32", sT0, sW, 1))
    p(I("s_cmp_ge_u32", sT0, sNQ))
    p(I("s_cbranch_scc1", f"L_{name}_end"))
    for s in range(1, 8):
        for x in range(2):
            for r in range(4):
                p(I("v_add_f32", RB[0][x][r], RB[0][x][r], RB[s][x][r]))
    for x in range(2):
        p(I("v_cvt_pk_bf16_f32", V(20 + 2 * x), RB[0][x][0], RB[0][x][1]))
        p(I("v_cvt_pk_bf16_f32", V(21 + 2 * x), RB[0][x][2], RB[0][x][3]))
    p(I("v_and_b32", vT0, 15, vLane))
    p(I("v_lshlrev_b32", vT0, 10, vT0))
    p(I("v_lshrrev_b32", vT1, 4, vLane))
    p(I("v_lshl_add_u32", vT0, vT1, 3, vT0))
    p(I("s_lshl_b32", sT0, sT0, 14))
    p(I("s_and_b32", sT1, sW, 1))
    p(I("s_lshl_b32", sT1, sT1, 6))
    p(I("s_add_u32", sT0, sT0, sT1))
    for x in range(2):
        p(I("buffer_store_dwordx2", V(20 + 2 * x, 2), vT0, sOUT, sT0, mods=f"offen offset:{x*32}"))
    if dbg:
        p(WAIT(vm=0)); p(I("s_memrealtime", S(44, 2))); p(WAIT(lgkm=0))
        p(I("s_and_b32", sT0, S(2), 0x1d)); p(I("s_or_b32", sT0, sT0, sW)); p(I("s_cmp_lg_u32", sT0, 0)); p(I("s_cbranch_scc1", f"L_{name}_end"))
        p(I("v_mov_b32", vT0, 0)); p(I("s_not_b32", sT0, S(48))); p(I("v_mov_b32", vT1, sT0)); p(I("s_mov_b64", EXEC, 1))
        p(I("buffer_atomic_umax", vT1, vT0, S(40, 4), 0, mods="offen offset:48"))
        p(I("s_nop", 1)); p(I("v_mov_b32", vT1, S(44)))
        p(I("buffer_atomic_umax", vT1, vT0, S(40, 4), 0, mods="offen offset:52"))
        p(WAIT(vm=0))
    p(LABEL(f"L_{name}_end"))
    p(I("s_endpgm"))
    paths = [pre + body + body + post]
    apply_waits(paths)
    apply_hazards(paths)
    txt = render(pre) + "\n" + render(body) + "\n" + render(post)
    desc = dict(vgpr=NV, sgpr=56, accum=NV)
    return txt, desc

def kernel_wrap(name, txt, desc):
    return f""".text
.globl {name}
.p2align 8
.type {name},@function
{name}:
{txt}
"""
def kernel_desc(name, desc):
    return f""".amdhsa_kernel {name}
  .amdhsa_next_free_vgpr {desc['vgpr']}
  .amdhsa_next_free_sgpr {desc['sgpr']}
  .amdhsa_accum_offset {desc['accum']}
  .amdhsa_group_segment_fixed_size 0
  .amdhsa_kernarg_size 64
  .amdhsa_user_sgpr_count 2
  .amdhsa_user_sgpr_kernarg_segment_ptr 1
  .amdhsa_system_sgpr_workgroup_id_x 1
.end_amdhsa_kernel
"""
if __name__ == "__main__":
    n = "oproj_kernel"
    txt, desc = gen_k2(n)
    print(f"; @launch kernel={n} grid=(256,1,1) block=(512,1,1) lds={K2_LDS}")
    print('.amdgcn_target "amdgcn-amd-amdhsa--gfx950"')
    print(kernel_wrap(n, txt, desc))
    print('.section .rodata,"a"\n.p2align 6')
    print(kernel_desc(n, desc))
```

```python
import sys
from k1 import gen_k1, K1_LDS
from k2 import gen_k2, K2_LDS, kernel_wrap, kernel_desc
args = sys.argv[1:]
stamps = "--stamps" in args
only1 = "--k1" in args
kvm = "nt" if "--nt" in args else ""
hdr = open("standalone__mha_block_cached__near_ridge.s.ref").read().split("; Override")[0]
n1, n2 = "attn_kernel", "oproj_kernel"
exp = [a[2:] for a in args if a.startswith("-x")]
kw = {}
for a in args:
    if a.startswith("-k"):
        k, v = a[2:].split("="); kw[k] = int(v) if v.lstrip("-").isdigit() else v
t1, d1 = gen_k1(n1, stamps=stamps, kv_mods=kvm, exp=exp, **kw)
kw2 = {}
for a in args:
    if a.startswith("-2"):
        k, v = a[2:].split("="); kw2[k] = int(v) if v.lstrip("-").isdigit() else v
t2, d2 = gen_k2(n2, dbg=("dbg" in exp), **kw2)
out = [hdr.rstrip()]
out.append(f"; @launch kernel={n1} grid=(256,1,1) block=(512,1,1) lds={K1_LDS}")
if not only1:
    out.append(f"; @launch kernel={n2} grid=(256,1,1) block=(512,1,1) lds={K2_LDS}")
out.append('.amdgcn_target "amdgcn-amd-amdhsa--gfx950"')
out.append(kernel_wrap(n1, t1, d1))
out.append(kernel_wrap(n2, t2, d2))
out.append('.section .rodata,"a"\n.p2align 6')
out.append(kernel_desc(n1, d1))
out.append(".p2align 6")
out.append(kernel_desc(n2, d2))
print("\n".join(out))
```

```python
from ir import *
import struct

def f32bits(x): return struct.unpack("<I", struct.pack("<f", x))[0]
CSCALE = (128 ** -0.5) * 1.4426950408889634
BLK = 1056
TILE = 16 * BLK
NSLOT = 9
XB0 = 2 * TILE
XBSZ = 26 * BLK
WQ_BASE = XB0 + 2 * XBSZ
WQ_CH = 8 * BLK
SY = WQ_BASE + 8 * WQ_CH
Q13X = SY + 256
HML = Q13X + 4096
HXA = 9 * TILE
RED = 6 * TILE
KF_LDS = 163840
OOB = 0x40000000
MFMA = "v_mfma_f32_16x16x32_bf16"
WSLOT = [7, 8, 0, 1, 2, 3, 4, 5]
WNEED = [8, 10, 10, 12, 12, 14, 14, 16]
P_OFF = 0x1000000
FL_OFF = 0x2000000
F_RDYF, F_RDYKV, F_DONEF, F_DONEKV, F_HFIN = 0, 8, 16, 32, 64
F_RDYWO, F_CNT1, F_CNT2, F_CNT3, F_GO, F_RDYO, F_NONCE = 80, 96, 100, 104, 108, 112, 116

sA, sBd, sOa, sP, sOUT = S(8, 4), S(12, 4), S(16, 4), S(20, 4), S(24, 4)
sWO, sCN, sFL = S(64, 4), S(68, 4), S(72, 4)
pX, pK, pV, pWQ, pWO, pOUT, pDBG, pWS = [S(28 + 2 * i, 2) for i in range(8)]
sW, sB, sH, sT0, sT1, sT2, sT3 = [S(44 + i) for i in range(7)]
sCNT, sNEED, sNEED2, sKSL, sVSL, sKD, sVD = [S(51 + i) for i in range(7)]
sC2 = S(58, 2)
sHW, sM0, sSO, sTI = S(60), S(61), S(62), S(63)
sLW, sC2T, sROT, sDN, sBUD, sNG, sKG, sL1, sL2 = [S(76 + i) for i in range(9)]
sRT, sCY = 86, 94
vSY, vLane = V(0), V(1)

def sched(mfmas, fixed, flex, cap=2.0):
    out = []; qs = [list(q) for q in flex]
    placed = set()
    def ready(item, g):
        if item[2] > g: return False
        if len(item) > 3 and any(id(d) not in placed for d in item[3]): return False
        return True
    for g, m in enumerate(mfmas):
        out.append(m)
        room = cap
        for ins, cost in fixed.get(g, []):
            out.append(ins); room -= cost; placed.add(id(ins))
        progress = True
        while progress:
            progress = False
            for q in qs:
                if q and ready(q[0], g) and q[0][1] <= room + 1e-9:
                    it = q.pop(0); out.append(it[0]); room -= it[1]; placed.add(id(it[0])); progress = True
                    break
    while any(qs):
        for q in qs:
            if q and ready(q[0], 10 ** 6):
                it = q.pop(0); out.append(it[0]); placed.add(id(it[0])); break
        else:
            raise RuntimeError("unschedulable")
    return out

def xlane_max(lst, x, t0, t1):
    a = lst.append
    a(I("v_mov_b32", t0, x)); a(I("v_mov_b32", t1, x))
    a(I("v_permlane32_swap_b32", t0, t1))
    a(I("v_max_f32", x, t0, t1))
    a(I("v_mov_b32", t0, x)); a(I("v_mov_b32", t1, x))
    a(I("v_permlane16_swap_b32", t0, t1))
    a(I("v_max_f32", x, t0, t1))

def mods(*m): return " ".join(x for x in m if x)

def gen_kf(name, stamps=False, kv_mods="nt", exp=(), f_mods="", wo_mods="", kvwin=16, kvres=22, NB=18):
    L = lambda s: f"L_{name}_{s}"
    spins = []
    def STAMP(lst, i):
        if stamps:
            lst.append(I("s_memrealtime", S(4, 2))); lst.append(I("s_memtime", S(6, 2))); lst.append(WAIT(lgkm=0))
            lst.append(I("s_mov_b32", S(sRT + i), S(4))); lst.append(I("s_mov_b32", S(sCY + i), S(6)))
    def STAMP_OUT(lst, vt, vd):
        if not stamps: return
        a = lst.append
        a(WAIT(vm=0)); STAMP(lst, 7)
        a(I("s_add_u32", sA[0], pWS[0], 0x4000000)); a(I("s_addc_u32", sA[1], pWS[1], 0))
        a(I("s_mov_b32", sA[2], 0x100000)); a(I("s_mov_b32", sA[3], 0x20000))
        a(I("s_lshl_b32", sT0, S(2), 3)); a(I("s_add_u32", sT0, sT0, sW)); a(I("s_lshl_b32", sT0, sT0, 6))
        a(I("v_mov_b32", vt, 0))
        for i in range(8):
            a(I("v_mov_b32", vd, S(sRT + i))); a(I("buffer_store_dword", vd, vt, sA, sT0, mods=f"offen offset:{4*i}")); a(I("s_nop", 1))
            a(I("v_mov_b32", vd, S(sCY + i))); a(I("buffer_store_dword", vd, vt, sA, sT0, mods=f"offen offset:{32+4*i}")); a(I("s_nop", 1))
        a(WAIT(vm=0))
    def srd(e, d, ptr, off, size):
        e(I("s_add_u32", d[0], ptr[0], off)); e(I("s_addc_u32", d[1], ptr[1], 0))
        if isinstance(size, tuple): e(I("s_sub_u32", d[2], size[0], size[1]))
        else: e(I("s_mov_b32", d[2], size))
        e(I("s_mov_b32", d[3], 0x20000))
    def spin_tail(site_label, sleep):
        r = [I("s_sleep", sleep)] if sleep else []
        return r + [I("s_sub_u32", sBUD, sBUD, 1), I("s_cbranch_scc0", site_label), I("s_endpgm")]
    def check2(site, vF, off, need):
        early = I("ds_read_b64", vF, vSY, mods=f"offset:{off}")
        chk = [I("v_min_u32", vF[0], vF[0], vF[1]), I("v_cmp_gt_u32", VCC, need, vF[0]),
               I("s_cbranch_vccnz", L("spin_" + site)), LABEL(L("ret_" + site))]
        if "nosync" in exp: return early, chk[:2]
        spins.append([LABEL(L("spin_" + site)), I("ds_read_b64", vF, vSY, mods=f"offset:{off}"), WAIT(lgkm=0),
                      I("v_min_u32", vF[0], vF[0], vF[1]), I("v_cmp_gt_u32", VCC, need, vF[0]),
                      I("s_cbranch_vccz", L("ret_" + site))] + spin_tail(L("spin_" + site), 1))
        return early, chk
    def poll(lst, site, regs, off, nwords, need, sleep=1, addr=None):
        if "nosync" in exp: return
        a = lst.append
        ad = addr or vSY
        a(LABEL(L("poll_" + site)))
        op = {1: "ds_read_b32", 2: "ds_read_b64"}.get(nwords, "ds_read_b128")
        a(I(op, regs.sub(0, min(nwords, 4)), ad, mods=f"offset:{off}"))
        if nwords == 6: a(I("ds_read_b64", regs.sub(4, 2), ad, mods=f"offset:{off+16}"))
        a(WAIT(lgkm=0))
        if nwords == 2: a(I("v_min_u32", regs[0], regs[0], regs[1]))
        elif nwords >= 4:
            a(I("v_min3_u32", regs[0], regs[0], regs[1], regs[2]))
            if nwords == 4: a(I("v_min_u32", regs[0], regs[0], regs[3]))
            else:
                a(I("v_min3_u32", regs[0], regs[0], regs[3], regs[4])); a(I("v_min_u32", regs[0], regs[0], regs[5]))
        a(I("v_cmp_gt_u32", VCC, need, regs[0]))
        a(I("s_cbranch_vccz", L("pok_" + site)))
        lst.extend(spin_tail(L("poll_" + site), sleep))
        a(LABEL(L("pok_" + site)))
    def arrive(lst, site, t0, t1, off, total, word):
        a = lst.append
        a(WAIT(vm=0))
        a(I("v_mov_b32", t0, 1))
        a(I("s_mov_b64", EXEC, 1))
        a(I("ds_add_rtn_u32", t1, vSY, t0, mods=f"offset:{off}")); a(WAIT(lgkm=0))
        a(I("v_cmp_eq_u32", VCC, total - 1, t1))
        a(I("s_cbranch_vccz", L("arr_" + site)))
        poll(lst, "nonce" + site, t0, F_NONCE, 1, 1)
        a(I("v_mov_b32", t1, word))
        a(I("buffer_store_dword", t0, t1, sFL, 0, mods="offen sc1"))
        a(LABEL(L("arr_" + site)))
        a(I("s_mov_b64", EXEC, -1))
    def tail_srds(e):
        e(I("s_mul_i32", sT0, sB, 13 * 131072)); e(I("s_lshl_b32", sT1, sKG, 15)); e(I("s_add_u32", sT0, sT0, sT1))
        srd(e, sOa, pWS, sT0, (13 * 131072, sT1))
        e(I("s_lshl_b32", sT0, sB, 3)); e(I("s_add_u32", sT0, sT0, sNG))
        e(I("s_lshl_b32", sL2, sT0, 7))
        e(I("s_mul_i32", sT0, sT0, 4 * 53248)); e(I("s_add_u32", sT0, sT0, P_OFF))
        srd(e, sP, pWS, sT0, 4 * 53248)
        e(I("s_mul_i32", sT0, sB, 212992)); e(I("s_lshl_b32", sT1, sNG, 7)); e(I("s_add_u32", sT0, sT0, sT1))
        srd(e, sOUT, pOUT, sT0, (1703936, sT0))
        srd(e, sFL, pWS, FL_OFF, 65536)
        e(I("s_lshl_b32", sT0, sB, 2)); e(I("s_add_u32", sT0, sT0, sKG)); e(I("s_add_u32", sT0, sT0, 64))
        e(I("s_lshl_b32", sL1, sT0, 7))
    def lane_kv(lst, vKl, vVl, t0):
        a = lst.append
        a(I("v_and_b32", t0, 7, vLane)); a(I("v_mul_u32_u24", vKl, BLK, t0))
        a(I("v_bfe_u32", t0, vLane, 3, 1)); a(I("v_lshl_add_u32", vKl, t0, 8, vKl))
        a(I("v_lshrrev_b32", t0, 4, vLane)); a(I("v_lshl_add_u32", vKl, t0, 4, vKl))
        a(I("v_bfe_u32", t0, vLane, 2, 3)); a(I("v_mul_u32_u24", vVl, BLK, t0))
        a(I("v_lshrrev_b32", t0, 5, vLane)); a(I("v_lshl_add_u32", vVl, t0, 8, vVl))
        a(I("v_and_b32", t0, 3, vLane)); a(I("v_lshl_add_u32", vVl, t0, 3, vVl))
    def wo_rd_addr(e, dst, t0, t1):
        e(I("v_and_b32", t0, 3, vLane)); e(I("v_lshlrev_b32", t0, 3, t0))
        e(I("v_bfe_u32", t1, vLane, 3, 2)); e(I("v_mul_u32_u24", t1, BLK, t1)); e(I("v_add_u32", t0, t0, t1))
        e(I("v_bfe_u32", t1, vLane, 2, 1)); e(I("v_lshl_add_u32", t0, t1, 7, t0))
        e(I("v_bfe_u32", t1, vLane, 5, 1)); e(I("v_lshl_add_u32", dst, t1, 8, t0))
    def final_part(lst, tag, vA, vB, R):
        e = lst.append
        e(I("v_lshlrev_b32", vA, 4, vLane))
        e(I("v_and_b32", vB, 15, vLane)); e(I("v_lshlrev_b32", vB, 10, vB))
        e(I("v_lshrrev_b32", R[0], 4, vLane)); e(I("v_lshl_add_u32", vB, R[0], 3, vB))
        e(I("s_mul_i32", sT0, sKG, 12)); e(I("s_add_u32", sT0, sT0, sW))
        e(I("s_lshl_b32", sT1, sT0, 10))
        e(I("s_add_u32", sT2, sT1, 8192))
        e(I("s_cmp_lt_u32", sW, 4)); e(I("s_cselect_b32", sT3, 1, 0)); e(I("s_cmp_eq_u32", sKG, 3)); e(I("s_cselect_b32", sT3, 1, sT3))
        e(I("s_cmp_eq_u32", sT3, 1)); e(I("s_cselect_b32", sT2, sT2, OOB))
        poll(lst, "go" + tag, R.sub(0, 1), F_GO, 1, 1)
        STAMP(lst, 6)
        for i, so in enumerate((sT1, sT2)):
            for s in range(4):
                e(I("s_add_u32", sSO, so, s * 53248))
                e(I("buffer_load_dwordx4", R.sub((i * 4 + s) * 4, 4), vA, sP, sSO, mods="offen sc1"))
        for i in range(2):
            B = lambda s, r: R[(i * 4 + s) * 4 + r]
            for r in range(4):
                e(I("v_add_f32", B(0, r), B(0, r), B(1, r))); e(I("v_add_f32", B(2, r), B(2, r), B(3, r)))
            for r in range(4): e(I("v_add_f32", B(0, r), B(0, r), B(2, r)))
            e(I("v_cvt_pk_bf16_f32", B(0, 0), B(0, 0), B(0, 1))); e(I("v_cvt_pk_bf16_f32", B(0, 1), B(0, 2), B(0, 3)))
            if i: e(I("s_add_u32", sT0, sT0, 8))
            e(I("s_lshr_b32", sT1, sT0, 2)); e(I("s_lshl_b32", sT1, sT1, 14)); e(I("s_and_b32", sSO, sT0, 3)); e(I("s_lshl_b32", sSO, sSO, 5))
            e(I("s_add_u32", sSO, sSO, sT1))
            if i:
                e(I("s_cmp_eq_u32", sT3, 1)); e(I("s_cselect_b32", sSO, sSO, OOB))
            e(I("buffer_store_dwordx2", R.sub(i * 16, 2), vB, sOUT, sSO, mods="offen"))
        STAMP_OUT(lst, vA, vB)
        e(I("s_endpgm"))

    pre = []; e = pre.append
    e(I("s_cmp_ge_u32", S(2), 256))
    e(I("s_cbranch_scc1", L("end")))
    e(I("s_load_dwordx16", S(28, 16), S(0, 2), 0))
    e(I("v_lshrrev_b32", V(2), 6, V(0)))
    e(I("v_and_b32", vLane, 63, V(0)))
    e(I("v_readfirstlane_b32", sW, V(2)))
    e(I("s_and_b32", sT0, S(2), 1)); e(I("s_lshl_b32", sT0, sT0, 2))
    e(I("s_bfe_u32", sT1, S(2), (2 << 16) | 3)); e(I("s_add_u32", sB, sT0, sT1))
    e(I("s_bfe_u32", sKG, S(2), (2 << 16) | 1)); e(I("s_lshl_b32", sT0, sKG, 3))
    e(I("s_lshr_b32", sNG, S(2), 5)); e(I("s_add_u32", sH, sT0, sNG))
    e(I("s_mov_b32", sC2T, 2 * TILE)); e(I("s_mov_b32", sBUD, 400000))
    e(I("s_bfe_u32", sROT, S(2), (3 << 16) | 3))
    e(I("v_lshlrev_b32", V(3), 2, vLane)); e(I("v_add_u32", V(3), SY, V(3))); e(I("v_mov_b32", V(4), 0))
    e(I("ds_write_b32", V(3), V(4)))
    e(I("v_mov_b32", vSY, SY))
    e(I("s_sub_u32", sHW, sW, 4)); e(I("s_and_b32", sLW, sW, 1))
    e(I("s_cmp_ge_u32", sW, 4))
    e(I("s_cbranch_scc1", L("helper")))

    vK, vV, vOr = V(2), V(3), V(4)
    vT0, vT1, vT2 = V(5), V(6), V(7)
    NEGM = [V(8 + 4 * t, 4) for t in range(3)]
    SB = [[[V(20 + ((e_ * 2 + sb) * 3 + t) * 4, 4) for t in range(3)] for sb in range(2)] for e_ in range(2)]
    vT3, vSYd, vF = V(68), V(69), V(70, 2)
    O = [[V(72 + (t * 8 + T) * 4, 4) for T in range(8)] for t in range(3)]
    Q = [[V(168 + (t * 4 + kk) * 4, 4) for kk in range(4)] for t in range(3)]
    LA_ = [A(4 * t, 4) for t in range(3)]
    ONES = A(12, 4)
    POOL = [A(16 + 4 * i, 4) for i in range(6)]
    XR = [[[V((20 if st == 0 else 168) + (h_ * 4 + t) * 4, 4) for t in range(4)] for h_ in range(2)] for st in range(2)]
    Q13A = [V(52, 4), V(56, 4)]
    W13 = [V(60, 4), V(64, 4)]
    WQF = [A(4 * T, 4) for T in range(8)]
    vXa = [V(8), V(9), V(10), V(11)]
    vWQ, vW13 = V(4), V(12)
    cq = []; e = cq.append
    lane_kv(cq, vK, vV, vT0)
    e(I("v_lshrrev_b32", vT0, 5, vLane)); e(I("v_lshl_add_u32", vWQ, vT0, 8, vV))
    e(I("v_add_u32", vWQ, WQ_BASE, vWQ))
    e(I("s_lshl_b32", sT0, sW, 6)); e(I("v_add_u32", vW13, sT0, vWQ))
    e(I("v_and_b32", vT0, 3, vLane)); e(I("v_mul_u32_u24", vT0, BLK, vT0))
    e(I("v_bfe_u32", vT1, vLane, 2, 2)); e(I("v_lshl_add_u32", vT0, vT1, 7, vT0))
    e(I("v_lshrrev_b32", vT1, 4, vLane)); e(I("v_lshl_add_u32", vT0, vT1, 4, vT0))
    for t in range(3):
        e(I("s_mul_i32", sT0, sW, 3)); e(I("s_add_u32", sT0, sT0, t))
        e(I("s_lshr_b32", sT1, sT0, 1)); e(I("s_mul_i32", sT1, sT1, 4 * BLK))
        e(I("s_and_b32", sT0, sT0, 1)); e(I("s_lshl_b32", sT0, sT0, 9))
        e(I("s_add_u32", sT0, sT0, sT1)); e(I("s_add_u32", sT0, sT0, XB0))
        e(I("v_add_u32", vXa[t], sT0, vT0))
    e(I("v_and_b32", vT0, 1, vLane)); e(I("v_mul_u32_u24", vT0, BLK, vT0))
    e(I("v_bfe_u32", vT2, vLane, 1, 3)); e(I("v_lshl_add_u32", vT0, vT2, 7, vT0))
    e(I("v_lshl_add_u32", vT0, vT1, 4, vT0))
    e(I("v_add_u32", vXa[3], XB0 + 24 * BLK, vT0))
    e(I("s_lshl_b32", sT0, sW, 2)); e(I("s_add_u32", sT0, sT0, SY)); e(I("v_mov_b32", vSYd, sT0))
    e(I("s_mov_b32", sC2[0], f32bits(CSCALE))); e(I("s_mov_b32", sC2[1], f32bits(CSCALE)))
    e(WAIT(lgkm=0))
    e(I("s_barrier"))
    STAMP(cq, 0)
    for t in range(3):
        for T in range(8):
            for r in range(4): e(I("v_mov_b32", O[t][T][r], 0))
    for R in Q13A:
        for r in range(4): e(I("v_mov_b32", R[r], 0))
    tail_srds(e)
    def xreads(c, st):
        return [I("ds_read_b128", XR[st][h_][t], vXa[t], mods=f"offset:{(c & 1) * XBSZ + h_ * 64}") for h_ in range(2) for t in range(4)]
    def wqreads(s, T):
        return [I("ds_read_b64_tr_b16", WQF[T].sub(2 * hh, 2), vWQ, mods=f"offset:{(s & 7) * WQ_CH + hh * 256 + T * 32}") for hh in range(2)]
    def w13reads(s):
        return [I("ds_read_b64_tr_b16", W13[x].sub(2 * hh, 2), vW13, mods=f"offset:{(s & 7) * WQ_CH + hh * 256 + x * 32}")
                for x in range(2) for hh in range(2)]
    def done_write(off):
        return [I("v_mov_b32", vF[0], sDN), I("ds_write_b32", vSYd, vF[0], mods=f"offset:{off}")]
    poll(cq, "cq0", vF, F_RDYF, 2, 2, sleep=0)
    cq.extend(xreads(0, 0))
    LAQ = 4
    for T in range(LAQ): cq.extend(wqreads(0, T))
    e(I("s_mov_b32", sDN, 1)); cq.extend(done_write(F_DONEF))
    e(I("s_mov_b32", sNEED, 4))
    e(I("s_mov_b32", sCNT, 0))
    STAMP(cq, 1)
    e(LABEL(L("cq_loop")))
    mf = []; fixed = {}
    def fx(g, ins, cost=1): fixed.setdefault(g, []).append((ins, cost))
    for s in range(8):
        st = (s >> 1) & 1; h_ = s & 1
        base = len(mf)
        early, chk = check2(f"cq{s}", vF, F_RDYF, sNEED)
        fx(base + 2, early)
        for i, r in enumerate(w13reads(s)): fx(base + 3 * i + 2 + (3 if i == 0 else 0), r)
        for T in range(8):
            g0 = len(mf)
            for t in range(3):
                mf.append(I(MFMA, O[t][T], WQF[T], XR[st][h_][t], O[t][T]))
            if T in (5, 6):
                mf.append(I(MFMA, Q13A[T - 5], W13[T - 5], XR[st][h_][3], Q13A[T - 5]))
            f = s * 8 + T + LAQ
            s2, T2 = f >> 3, f & 7
            if T2 == 0:
                fx(g0 - 1, I("s_add_u32", sDN, sDN, 1), 0)
                for x in chk: fx(g0, x, 0.5 if x.cls == "valu" else 0)
                fx(g0, I("s_add_u32", sNEED, sNEED, 1 if (s & 1) == 0 else 2), 0)
                fx(g0, I("s_min_u32", sNEED, sNEED, 24), 0)
                for x in done_write(F_DONEF): fx(g0, x, 0.5)
            rr = wqreads(s2, T2)
            fx(g0 + (1 if T2 == 0 else 0), rr[0]); fx(g0 + (2 if T2 == 0 else 1), rr[1])
            if h_ == 1 and T < 4:
                xr = xreads((s >> 1) + 1, 1 - st)
                fx(g0 + 2, xr[2 * T]); fx(g0 + 2, xr[2 * T + 1])
    cqb = sched(mf, fixed, [])
    cv = []; e = cv.append
    e(I("s_mov_b32", sDN, 100)); cv.extend(done_write(F_DONEF))
    STAMP(cv, 2)
    allp = [(Q13A[0], Q13A[1], Q13A[0])] + [(O[t][2 * kk], O[t][2 * kk + 1], Q[t][kk]) for kk in range(4) for t in range(3)]
    for X, Y, Z in allp:
        for R in (X, Y):
            e(I("v_pk_mul_f32", R.sub(0, 2), R.sub(0, 2), sC2)); e(I("v_pk_mul_f32", R.sub(2, 2), R.sub(2, 2), sC2))
        e(I("v_cvt_pk_bf16_f32", Z[0], X[0], X[1])); e(I("v_cvt_pk_bf16_f32", Z[1], X[2], X[3]))
        e(I("v_cvt_pk_bf16_f32", Z[2], Y[0], Y[1])); e(I("v_cvt_pk_bf16_f32", Z[3], Y[2], Y[3]))
    for X, Y, Z in allp:
        e(I("v_permlane32_swap_b32", Z[0], Z[2])); e(I("v_permlane32_swap_b32", Z[1], Z[3]))
    for X, Y, Z in allp:
        e(I("v_permlane16_swap_b32", Z[0], Z[2])); e(I("v_permlane16_swap_b32", Z[1], Z[3]))
    e(I("v_lshlrev_b32", vT0, 4, vLane))
    e(I("s_lshl_b32", sT0, sW, 10)); e(I("s_add_u32", sT0, sT0, Q13X))
    e(I("v_add_u32", vT0, sT0, vT0))
    e(I("ds_write_b128", vT0, Q13A[0]))
    e(I("s_mov_b32", sDN, 101)); cv.extend(done_write(F_DONEF))
    zero = []
    for t in range(3):
        for T in range(8):
            for r in range(4): zero.append(I("v_mov_b32", O[t][T][r], 0))
    zero.append(I("v_mov_b32", vT3, 0x3F803F80))
    for t in range(3):
        for r in range(4): zero.append(I("v_accvgpr_write_b32", LA_[t][r], 0))
    for r in range(4): zero.append(I("v_accvgpr_write_b32", ONES[r], vT3))
    e(I("v_add_u32", vV, TILE, vV))
    e(I("s_mov_b32", sKSL, 0)); e(I("s_mov_b32", sVSL, 1)); e(I("s_mov_b32", sKD, 0))
    e(I("s_mov_b32", sCNT, 0)); e(I("s_mov_b32", sDN, 0))
    e(I("s_mov_b32", sNEED, 2)); e(I("s_mov_b32", sNEED2, 3))
    poll(cv, "k0", vF, F_RDYKV, 2, 1)
    def kread(buf, addr, uh, sb, kk):
        return I("ds_read_b128", buf, addr, mods=f"offset:{uh * 8 * BLK + sb * 512 + kk * 64}")
    def vreads(buf, uh, T):
        return [I("ds_read_b64_tr_b16", buf.sub(2 * hh, 2), vV, mods=f"offset:{uh * 8 * BLK + hh * 512 + T * 32}") for hh in range(2)]
    def qk_simple(lst, addr, uh, D, C):
        for sb in range(2):
            for kk in range(4): lst.append(kread(POOL[kk], addr, uh, sb, kk))
            for kk in range(4):
                for t in range(3):
                    c = D[sb][t] if kk else (0 if C is None else C[t])
                    lst.append(I(MFMA, D[sb][t], POOL[kk], Q[t][kk], c))
    def rowmax(lst, D, t, dst):
        a = lst.append
        x, y = D[0][t], D[1][t]
        a(I("v_max3_f32", dst, x[0], x[1], x[2])); a(I("v_max3_f32", dst, dst, x[3], y[0]))
        a(I("v_max3_f32", dst, dst, y[1], y[2])); a(I("v_max_f32", dst, dst, y[3]))
        xlane_max(lst, dst, vT1, vT2)
    def exps(D, t, sb): return [I("v_exp_f32", D[sb][t][r], D[sb][t][r]) for r in range(4)]
    def cvts(D, t):
        x, y = D[0][t], D[1][t]
        return [I("v_cvt_pk_bf16_f32", x[0], x[0], x[1]), I("v_cvt_pk_bf16_f32", x[1], x[2], x[3]),
                I("v_cvt_pk_bf16_f32", x[2], y[0], y[1]), I("v_cvt_pk_bf16_f32", x[3], y[2], y[3])]
    P8 = POOL + [A(0, 4), A(4, 4)]
    for i in range(8): e(kread(P8[i], vK, 0, i >> 2, i & 3))
    zq = list(zero)
    for i in range(8):
        for t in range(3):
            e(I(MFMA, SB[0][i >> 2][t], P8[i], Q[t][i & 3], SB[0][i >> 2][t] if i & 3 else 0))
            for _ in range(3):
                if zq and zq[0].op == "v_mov_b32": e(zq.pop(0))
    cv.extend(zq)
    for t in range(3):
        rowmax(cv, SB[0], t, vT0)
        e(I("v_sub_f32", NEGM[t][0], "0xc0e00000", vT0))
        for r in range(1, 4): e(I("v_mov_b32", NEGM[t][r], NEGM[t][0]))
        for sb in range(2):
            for r in range(4): e(I("v_add_f32", SB[0][sb][t][r], SB[0][sb][t][r], NEGM[t][0]))
    BUFSEQ = list(range(6)) * 2 + list(range(5)) * 4
    LAF = 4
    def frag_reads(f):
        f &= 31
        buf = POOL[BUFSEQ[f]]
        blk, i = f >> 3, f & 7
        if blk == 0: return [kread(buf, vK, 1, i >> 2, i & 3)]
        if blk == 1: return vreads(buf, 0, i)
        if blk == 2: return [kread(buf, vK, 0, i >> 2, i & 3)]
        return vreads(buf, 1, i)
    def exp_order(D):
        o = []
        for t in range(3): o += [(x, t) for x in exps(D, t, 0)]
        for t in range(3): o += [(x, t) for x in exps(D, t, 1)]
        return o
    for f in range(LAF): cv.extend(frag_reads(f))
    for x, t in exp_order(SB[0])[:NB]: e(x)
    STAMP(cv, 3)
    e(LABEL(L("c_loop")))
    body = []
    def blockA(par, fbase, extra):
        D = SB[1 - par]; Pn = SB[par]
        mf = []; fixed = {}
        for i in range(8):
            f = fbase + i; sb, kk = i >> 2, i & 3
            g0 = len(mf)
            for t in range(3):
                mf.append(I(MFMA, D[sb][t], POOL[BUFSEQ[f]], Q[t][kk], NEGM[t] if kk == 0 else D[sb][t]))
            for g, items in extra.items():
                if g == g0: fixed.setdefault(g, []).extend(items)
            for j, r in enumerate(frag_reads(f + LAF)): fixed.setdefault(g0 + j, []).append((r, 1))
        for g, items in extra.items():
            if g % 3: fixed.setdefault(g, []).extend(items)
        eo = exp_order(Pn)[NB:]
        qe = [(x, 2, 0) for x, t in eo]
        dep = {t: [x for x, tt in eo if tt == t] for t in range(3)}
        qs = []
        p = [Pn[0][t][r] for t in range(3) for r in range(4)]
        for t in range(3):
            for x in cvts(Pn, t): qs.append((x, 1, 0, dep[t]))
            if t == 0:
                qs.append((I("v_or3_b32", vOr, p[0], p[1], p[2]), 1, 0))
            elif t == 1:
                qs.append((I("v_or3_b32", vOr, vOr, p[3], p[4]), 1, 0))
                qs.append((I("v_or3_b32", vOr, vOr, p[5], p[6]), 1, 0))
            else:
                qs.append((I("v_or3_b32", vOr, vOr, p[7], p[8]), 1, 0))
                qs.append((I("v_or3_b32", vOr, vOr, p[9], p[10]), 1, 0))
                qs.append((I("v_or_b32", vOr, vOr, p[11]), 1, 0))
        qs.append((I("v_and_b32", vOr, 0x40004000, vOr), 1, 0))
        qs.append((I("v_cmp_ne_u32", VCC, 0, vOr), 1, 23))
        out = sched(mf, fixed, [qe, qs])
        if "norare" not in exp: out.append(I("s_cbranch_vccnz", L(f"c_rare{par}")))
        out.append(LABEL(L(f"c_ret{par}")))
        return out
    def blockB(par, fbase, extra):
        Pn = SB[par]; Dn = SB[1 - par]
        mf = []; fixed = {}
        for t in range(3):
            mf.append(I(MFMA, LA_[t], ONES, Pn[0][t], LA_[t]))
        for g, items in extra.items():
            if g < 3 or g % 3: fixed.setdefault(g, []).extend(items)
        for i in range(8):
            f = fbase + i
            g0 = len(mf)
            for t in range(3):
                mf.append(I(MFMA, O[t][i], POOL[BUFSEQ[f]], Pn[0][t], O[t][i]))
            for g, items in extra.items():
                if g == g0: fixed.setdefault(g, []).extend(items)
            for j, r in enumerate(frag_reads(f + LAF)): fixed.setdefault(g0 + j, []).append((r, 1))
        qe = [(x, 2, 0 if k < 12 else 4) for k, (x, t) in enumerate(exp_order(Dn)[:NB])]
        return sched(mf, fixed, [qe])
    def slot_adv(sSL, sD):
        return [I("s_add_u32", sSL, sSL, 2), I("s_cmp_ge_u32", sSL, NSLOT),
                I("s_cselect_b32", sD, (2 - NSLOT) * TILE, sC2T), I("s_cselect_b32", sT0, NSLOT, 0),
                I("s_sub_u32", sSL, sSL, sT0)]
    c1 = lambda lst: [(x, 0.5 if x.cls == "valu" else (1 if x.cls.startswith("lds") else 0)) for x in lst]
    eV, cV = check2("cv", vF, F_RDYKV, sNEED)
    eK, cK = check2("ck", vF, F_RDYKV, sNEED2)
    body += blockA(0, 0, {4: c1([eV]), 12: c1(cV)})
    body += blockB(0, 8, {0: c1(slot_adv(sKSL, sKD)), 2: c1([I("v_add_u32", vK, sKD, vK)]), 5: c1([eK]), 15: c1(cK)})
    body += blockA(1, 16, {})
    nx = [I("s_add_u32", sNEED, sNEED, 2), I("s_add_u32", sNEED2, sNEED2, 2), I("s_min_u32", sNEED2, sNEED2, 16),
          I("s_add_u32", sDN, sDN, 2)]
    body += blockB(1, 24, {16: c1(slot_adv(sVSL, sVD) + nx), 17: c1(done_write(F_DONEKV)), 20: c1([I("v_add_u32", vV, sVD, vV)])})
    def filt(lst):
        o = []
        for x in lst:
            if "noexp" in exp and x.op == "v_exp_f32": continue
            if "nolds" in exp and x.cls == "ldsrd": continue
            if "novalu" in exp and x.cls == "valu" and x.op != "v_add_u32": continue
            if "nomfma" in exp and x.cls == "mfma": continue
            o.append(x)
        return o
    body = filt(body); cqb = filt(cqb)
    cqb += [I("s_add_u32", sCNT, sCNT, 1), I("s_cmp_lt_u32", sCNT, 2), I("s_cbranch_scc1", L("cq_loop"))]
    body += [I("s_add_u32", sCNT, sCNT, 1), I("s_cmp_lt_u32", sCNT, 8), I("s_cbranch_scc1", L("c_loop"))]
    ce = []; e = ce.append
    STAMP(ce, 4)
    vWr, vOo = V(2), V(3)
    ACC = [[V(20 + (t * 4 + T) * 4, 4) for T in range(4)] for t in range(3)]
    SETS = [168, 72, 120]
    OF = [[[V(SETS[s] + (t * 4 + kk) * 4, 4) for kk in range(4)] for t in range(3)] for s in range(3)]
    WF = [A(4 * i, 4) for i in range(8)]
    e(I("v_lshlrev_b32", vOo, 4, vLane)); e(I("s_mul_i32", sT0, sW, 3 * 131072)); e(I("v_add_u32", vOo, sT0, vOo))
    e(I("s_lshl_b32", sT1, sNG, 12))
    vR = [V(8 + 2 * t, 2) for t in range(3)]
    for t in range(3): e(I("v_accvgpr_read_b32", vR[t][0], LA_[t][0]))
    for t in range(3): e(I("v_rcp_f32", vR[t][0], vR[t][0]))
    for t in range(3): e(I("v_mov_b32", vR[t][1], vR[t][0]))
    for t in range(3):
        for kk in range(4):
            X, Y, Z = O[t][2 * kk], O[t][2 * kk + 1], OF[0][t][kk]
            for R in (X, Y):
                e(I("v_pk_mul_f32", R.sub(0, 2), R.sub(0, 2), vR[t])); e(I("v_pk_mul_f32", R.sub(2, 2), R.sub(2, 2), vR[t]))
            e(I("v_cvt_pk_bf16_f32", Z[0], X[0], X[1])); e(I("v_cvt_pk_bf16_f32", Z[1], X[2], X[3]))
            e(I("v_cvt_pk_bf16_f32", Z[2], Y[0], Y[1])); e(I("v_cvt_pk_bf16_f32", Z[3], Y[2], Y[3]))
            e(I("buffer_store_dwordx4", Z, vOo, sOa, sT1, mods=f"offen offset:{kk*1024} sc1"))
        e(I("s_add_u32", sT1, sT1, 131072))
    wo_rd_addr(e, vWr, vT0, vT1)
    e(I("v_add_u32", V(4), 61440, vWr)); e(I("v_add_u32", V(7), 122880, vWr))
    def oloads(g):
        r = [I("s_add_u32", sT1, sNG, g), I("s_and_b32", sT1, sT1, 7), I("s_lshl_b32", sT1, sT1, 12)]
        for t in range(3):
            r.append(I("s_add_u32", sSO, sT1, t * 131072))
            for kk in range(4):
                r.append(I("buffer_load_dwordx4", OF[g % 3][t][kk], vOo, sOa, sSO, mods=f"offen offset:{kk*1024}"))
        return r
    def wreads(g, kk, T):
        buf = WF[(kk & 1) * 4 + T]
        base = WSLOT[g] * TILE + kk * 4 * BLK + T * 32
        a_, off = [vWr, V(4), V(7)][base // 61440], base % 61440
        return [I("ds_read_b64_tr_b16", buf.sub(2 * hh, 2), a_, mods=f"offset:{off + hh*512}") for hh in range(2)]
    def head_block(g, ol):
        poll(ce, f"wo{g}", vF, F_RDYWO + 4 * (g & 1), 1, (g >> 1) + 1, sleep=0)
        for T in range(4): ce.extend(wreads(g, 0, T))
        mf = []; fixed = {}
        for kk in range(4):
            for T in range(4):
                g0 = len(mf)
                for t in range(3):
                    mf.append(I(MFMA, ACC[t][T], WF[(kk & 1) * 4 + T], OF[g % 3][t][kk], 0 if (g == 0 and kk == 0) else ACC[t][T]))
                if kk < 3:
                    rr = wreads(g, kk + 1, T)
                    fixed.setdefault(g0, []).append((rr[0], 1)); fixed.setdefault(g0 + 1, []).append((rr[1], 1))
        ce.extend(sched(mf, fixed, [[(x, 0.5 if x.cls == "salu" else 1, 1) for x in ol]]))
    head_block(0, [])
    e(I("s_lshl_b32", sT0, sNG, 2)); e(I("s_add_u32", sT2, sT0, sL1))
    arrive(ce, "c1", vT0, vT1, F_CNT1, 6, sT2)
    poll(ce, "o1", vF, F_RDYO, 1, 2, sleep=0); ce.extend(oloads(1))
    STAMP(ce, 5)
    poll(ce, "o2", vF, F_RDYO, 1, 3, sleep=0); ce.extend(oloads(2))
    for g in range(1, 8):
        if g + 2 < 8: poll(ce, f"o{g+2}", vF, F_RDYO, 1, g + 3, sleep=0)
        head_block(g, oloads(g + 2) if g + 2 < 8 else [])
    e(I("v_lshlrev_b32", vT0, 4, vLane))
    e(I("s_mul_i32", sT0, sKG, 53248)); e(I("s_mul_i32", sT1, sW, 12288)); e(I("s_add_u32", sT0, sT0, sT1))
    for t in range(3):
        for T in range(4):
            e(I("buffer_store_dwordx4", ACC[t][T], vT0, sP, sT0, mods=f"offen offset:{T*1024} sc1"))
        e(I("s_add_u32", sT0, sT0, 4096))
    e(I("s_lshl_b32", sT0, sKG, 2)); e(I("s_add_u32", sT2, sT0, sL2))
    arrive(ce, "c2", vT0, vT1, F_CNT2, 8, sT2)
    final_part(ce, "c", vT0, vT1, V(72, 32))
    rare = []
    for par in range(2):
        r_ = []; e = r_.append
        e(LABEL(L(f"c_rare{par}")))
        e(WAIT(lgkm=0)); e(I("s_nop", 15))
        if par == 0:
            aN, uhN, aN1, uhN1 = vK, 0, vK, 1
        else:
            e(I("v_subrev_u32", vT3, sKD, vK))
            aN, uhN, aN1, uhN1 = vT3, 1, vK, 0
        Dn, Dn1 = SB[par], SB[1 - par]
        qk_simple(r_, aN, uhN, Dn, None)
        for t in range(3):
            rowmax(r_, Dn, t, vT0)
            e(I("v_add_f32", vT0, "0x40e00000", vT0))
            e(I("v_max_f32_e64", vT0, vT0, "-" + str(NEGM[t][0])))
            e(I("v_sub_f32_e64", vT1, "-" + str(NEGM[t][0]), vT0))
            e(I("v_exp_f32", vT1, vT1))
            for r in range(4): e(I("v_sub_f32", NEGM[t][r], 0, vT0))
            for T in range(8):
                for r in range(4): e(I("v_mul_f32", O[t][T][r], O[t][T][r], vT1))
            for r in range(4):
                e(I("v_accvgpr_read_b32", vT2, LA_[t][r])); e(I("v_mul_f32", vT2, vT2, vT1)); e(I("v_accvgpr_write_b32", LA_[t][r], vT2))
            for sb in range(2):
                for r in range(4): e(I("v_add_f32", Dn[sb][t][r], Dn[sb][t][r], NEGM[t][0]))
            r_.extend(exps(Dn, t, 0)); r_.extend(exps(Dn, t, 1)); r_.extend(cvts(Dn, t))
        qk_simple(r_, aN1, uhN1, Dn1, NEGM)
        fb = 8 if par == 0 else 24
        for f in range(fb, fb + LAF): r_.extend(frag_reads(f))
        e(WAIT(lgkm=0)); e(I("s_nop", 15))
        e(I("s_branch", L(f"c_ret{par}")))
        rare.append(r_)

    hT0, hT1, hT2, hT3 = V(5), V(6), V(7), V(4)
    hP = V(8, 8)
    hSYw, hVal, hIss = V(16), V(17), V(18)
    hp = []; e = hp.append
    e(LABEL(L("helper")))
    if "noload" in exp: e(I("s_endpgm"))
    e(I("s_cmp_ge_u32", sHW, 2))
    e(I("s_cbranch_scc1", L("h23")))
    h01 = []; e = h01.append
    sX, sWQ = sA, sBd
    hXo, hXo2, hWo = V(20), V(21), [V(22 + m) for m in range(4)]
    e(I("v_and_b32", hT0, 7, vLane)); e(I("v_lshlrev_b32", hT0, 4, hT0)); e(I("v_lshrrev_b32", hT1, 3, vLane))
    e(I("v_lshl_add_u32", hXo, hT1, 12, hT0)); e(I("v_lshl_add_u32", hXo2, hT1, 11, hT0))
    e(I("s_lshl_b32", sT0, sLW, 10)); e(I("s_add_u32", sT0, sT0, 192 * 1024)); e(I("v_add_u32", hXo2, sT0, hXo2))
    e(I("s_mul_i32", sT0, sLW, 96 * 1024)); e(I("v_add_u32", hXo, sT0, hXo))
    e(I("v_and_b32", hT0, 15, vLane)); e(I("v_lshlrev_b32", hT0, 4, hT0))
    e(I("v_bfe_u32", hT1, vLane, 4, 1)); e(I("v_lshl_add_u32", hT0, hT1, 15, hT0))
    e(I("v_lshrrev_b32", hT1, 5, vLane)); e(I("v_lshl_add_u32", hT0, hT1, 17, hT0))
    e(I("s_lshl_b32", sT0, sLW, 16))
    e(I("v_add_u32", hWo[0], sT0, hT0))
    for m in range(1, 4): e(I("v_add_u32", hWo[m], m * (8192 - BLK), hWo[0]))
    e(I("s_mul_i32", sT3, sLW, 12 * BLK)); e(I("s_add_u32", sT3, sT3, XB0))
    e(I("s_mul_i32", sT2, sLW, BLK)); e(I("s_add_u32", sT2, sT2, XB0 + 24 * BLK))
    e(I("s_mul_i32", sM0, sLW, 4 * BLK)); e(I("s_add_u32", sM0, sM0, WQ_BASE))
    e(I("s_lshl_b32", sT0, sLW, 2)); e(I("s_add_u32", sT0, sT0, SY + F_RDYF)); e(I("v_mov_b32", hSYw, sT0))
    e(WAIT(lgkm=0))
    e(I("s_mul_i32", sT0, sB, 212992)); srd(e, sX, pX, sT0, 212992)
    e(I("s_lshl_b32", sT0, sH, 8)); srd(e, sWQ, pWQ, sT0, (4194304, sT0))
    def x_issue(lst, buf):
        a = lst.append
        a(I("s_add_u32", sSO, sTI, sROT)); a(I("s_and_b32", sSO, sSO, 7)); a(I("s_lshl_b32", sSO, sSO, 7))
        if "nox" in exp: a(I("s_mov_b32", sSO, OOB))
        for n in range(12):
            a(I("s_add_u32", M0, sT3, buf * XBSZ + n * BLK))
            a(I("s_add_u32", sT0, sSO, ((n >> 2) * 32 + (n & 3)) * 1024))
            a(I("buffer_load_dwordx4", hXo, sX, sT0, mods=mods("offen", f_mods, "lds")))
        a(I("s_add_u32", M0, sT2, buf * XBSZ))
        a(I("s_nop", 0))
        a(I("buffer_load_dwordx4", hXo2, sX, sSO, mods=mods("offen", f_mods, "lds")))
    def w_issue(lst, slot, odd):
        a = lst.append
        a(I("s_add_u32", sSO, sTI, sROT)); a(I("s_and_b32", sSO, sSO, 7)); a(I("s_lshl_b32", sSO, sSO, 19))
        if odd: a(I("s_add_u32", sSO, sSO, 1 << 18))
        if "nowq" in exp: a(I("s_mov_b32", sSO, OOB))
        a(I("s_add_u32", M0, sM0, slot * WQ_CH))
        a(I("s_nop", 0))
        for m in range(4):
            a(I("buffer_load_dwordx4", hWo[m], sWQ, sSO, mods=mods(f"offen offset:{m*BLK}", f_mods, "lds")))
    def poll_pub(lst, site, need):
        if "nosync" in exp: return
        a = lst.append
        a(I("ds_read_b128", hP.sub(0, 4), vSY, mods=f"offset:{F_DONEF}")); a(WAIT(lgkm=0))
        a(I("v_min3_u32", hP[0], hP[0], hP[1], hP[2])); a(I("v_min_u32", hP[0], hP[0], hP[3]))
        a(I("v_cmp_gt_u32", VCC, need, hP[0]))
        a(I("s_cbranch_vccz", L("pok_" + site)))
        a(WAIT(vm=4)); a(I("v_add_u32", hVal, -1, hIss)); a(I("ds_write_b32", hSYw, hVal))
        a(WAIT(vm=0)); a(I("v_mov_b32", hVal, hIss)); a(I("ds_write_b32", hSYw, hVal))
        poll(lst, site, hP, F_DONEF, 4, need, sleep=0)
    def pub_lag(lst, vmn):
        a = lst.append
        a(WAIT(vm=vmn))
        a(I("v_add_u32", hIss, 1, hIss))
        a(I("v_add_u32", hT3, -2, hIss)); a(I("v_max_i32", hVal, hVal, hT3))
        a(I("ds_write_b32", hSYw, hVal))
    e(I("s_mov_b32", sTI, 0)); e(I("v_mov_b32", hIss, 2)); e(I("v_mov_b32", hVal, 0))
    w_issue(h01, 0, 0); x_issue(h01, 0)
    e(I("s_barrier"))
    STAMP(h01, 0)
    w_issue(h01, 1, 1)
    e(WAIT(vm=4)); e(I("v_mov_b32", hIss, 3)); e(I("v_mov_b32", hVal, 2)); e(I("ds_write_b32", hSYw, hVal))
    e(I("s_mov_b32", sTI, 1))
    x_issue(h01, 1); pub_lag(h01, 17)
    w_issue(h01, 2, 0); pub_lag(h01, 17)
    w_issue(h01, 3, 1); pub_lag(h01, 8)
    for c in range(2, 8):
        e(I("s_mov_b32", sTI, c))
        poll_pub(h01, f"hx{c}", 2 * c - 3)
        x_issue(h01, c & 1); pub_lag(h01, 17)
        w_issue(h01, (2 * c) & 7, 0); pub_lag(h01, 17)
        w_issue(h01, (2 * c + 1) & 7, 1); pub_lag(h01, 8)
    STAMP(h01, 1)
    e(WAIT(vm=4)); e(I("v_mov_b32", hVal, 23)); e(I("ds_write_b32", hSYw, hVal))
    e(WAIT(vm=0)); e(I("v_mov_b32", hVal, 24)); e(I("ds_write_b32", hSYw, hVal))
    tail_srds(e)
    hK, hV = V(2), V(3)
    hNEG = V(20, 4); hS = [V(24, 4), V(28, 4)]; hL = V(32, 4)
    hO = [V(36 + 4 * T, 4) for T in range(8)]
    hQ = [V(68 + 4 * kk, 4) for kk in range(4)]
    hKF = [[V(84 + (sb * 4 + kk) * 4, 4) for kk in range(4)] for sb in range(2)]
    hVF = [V(116 + 4 * T, 4) for T in range(8)]
    hONES = V(148, 4)
    lane_kv(h01, hK, hV, hT0)
    e(I("s_mul_i32", sT0, sLW, 8 * BLK)); e(I("v_add_u32", hK, sT0, hK))
    e(I("s_add_u32", sT0, sT0, TILE)); e(I("v_add_u32", hV, sT0, hV))
    for T in range(8):
        for r in range(4): e(I("v_mov_b32", hO[T][r], 0))
    for r in range(4):
        e(I("v_mov_b32", hL[r], 0)); e(I("v_mov_b32", hNEG[r], "0x7f000000")); e(I("v_mov_b32", hONES[r], 0x3F803F80))
    e(I("s_lshl_b32", sT0, sLW, 2)); e(I("s_add_u32", sT0, sT0, SY + F_DONEKV + 16)); e(I("v_mov_b32", hSYw, sT0))
    poll(h01, "hq13", hP, F_DONEF, 4, 101)
    STAMP(h01, 3)
    e(I("v_lshlrev_b32", hT0, 4, vLane)); e(I("v_add_u32", hT0, Q13X, hT0))
    for kk in range(4): e(I("ds_read_b128", hQ[kk], hT0, mods=f"offset:{kk*1024}"))
    e(I("s_mov_b32", sNEED, 2)); e(I("s_mov_b32", sKSL, 0))
    e(LABEL(L("h_loop")))
    hb = []; e = hb.append
    poll(hb, "hkv", hP, F_RDYKV, 2, sNEED)
    for sb in range(2):
        for kk in range(4): e(I("ds_read_b128", hKF[sb][kk], hK, mods=f"offset:{sb*512 + kk*64}"))
    for T in range(8):
        for hh in range(2): e(I("ds_read_b64_tr_b16", hVF[T].sub(2 * hh, 2), hV, mods=f"offset:{hh*512 + T*32}"))
    e(I("v_mov_b32", hVal, sNEED)); e(I("ds_write_b32", hSYw, hVal))
    for sb in range(2):
        for kk in range(4):
            e(I(MFMA, hS[sb], hKF[sb][kk], hQ[kk], hNEG if kk == 0 else hS[sb]))
    e(I("s_add_u32", sKSL, sKSL, 2)); e(I("s_cmp_ge_u32", sKSL, NSLOT))
    e(I("s_cselect_b32", sKD, (2 - NSLOT) * TILE, sC2T)); e(I("s_cselect_b32", sT0, NSLOT, 0)); e(I("s_sub_u32", sKSL, sKSL, sT0))
    e(I("s_add_u32", sT0, sKSL, 1)); e(I("s_cmp_ge_u32", sT0, NSLOT)); e(I("s_cselect_b32", sT0, 0, sT0))
    e(I("s_cmp_lt_u32", sT0, 2)); e(I("s_cselect_b32", sVD, (2 - NSLOT) * TILE, sC2T))
    def hsoft(lst):
        a = lst.append
        for sb in range(2):
            for r in range(4): a(I("v_exp_f32", hS[sb][r], hS[sb][r]))
        x, y = hS
        a(I("v_cvt_pk_bf16_f32", x[0], x[0], x[1])); a(I("v_cvt_pk_bf16_f32", x[1], x[2], x[3]))
        a(I("v_cvt_pk_bf16_f32", x[2], y[0], y[1])); a(I("v_cvt_pk_bf16_f32", x[3], y[2], y[3]))
    hsoft(hb)
    e(I("v_or3_b32", hT0, hS[0][0], hS[0][1], hS[0][2])); e(I("v_or_b32", hT0, hT0, hS[0][3]))
    e(I("v_and_b32", hT0, 0x40004000, hT0))
    e(I("v_cmp_ne_u32", VCC, 0, hT0))
    if "norare" not in exp: e(I("s_cbranch_vccnz", L("h_rare")))
    e(LABEL(L("h_ret")))
    e(I(MFMA, hL, hONES, hS[0], hL))
    for T in range(8): e(I(MFMA, hO[T], hVF[T], hS[0], hO[T]))
    e(I("v_add_u32", hK, sKD, hK)); e(I("v_add_u32", hV, sVD, hV))
    e(I("s_add_u32", sNEED, sNEED, 2)); e(I("s_cmp_le_u32", sNEED, 16))
    e(I("s_cbranch_scc1", L("h_loop")))
    hf = []; e = hf.append
    STAMP(hf, 4)
    e(I("v_lshlrev_b32", hT0, 4, vLane))
    e(I("s_cmp_eq_u32", sLW, 0)); e(I("s_cbranch_scc0", L("hf1")))
    e(I("v_add_u32", hT1, HXA, hT0))
    for x in range(4): e(I("ds_write_b128", hT1, hO[4 + x], mods=f"offset:{x*1024}"))
    e(I("v_add_u32", hT1, Q13X, hT0))
    e(I("s_branch", L("hf2")))
    hf1 = []; e = hf1.append
    e(LABEL(L("hf1")))
    e(I("v_add_u32", hT1, Q13X, hT0))
    for x in range(4): e(I("ds_write_b128", hT1, hO[x], mods=f"offset:{x*1024}"))
    for x in range(4):
        for r in range(4): e(I("v_mov_b32", hO[x][r], hO[4 + x][r]))
    e(I("v_add_u32", hT1, HXA, hT0))
    hf2 = []; e = hf2.append
    e(LABEL(L("hf2")))
    e(I("v_lshlrev_b32", hT2, 3, vLane))
    e(I("s_lshl_b32", sT0, sLW, 9)); e(I("s_add_u32", sT0, sT0, HML))
    e(I("v_add_u32", hT3, sT0, hT2))
    e(I("v_mov_b32", hNEG[1], hL[0]))
    e(I("ds_write_b64", hT3, hNEG.sub(0, 2)))
    e(I("s_lshl_b32", sT0, sLW, 2)); e(I("s_add_u32", sT0, sT0, SY + F_HFIN)); e(I("v_mov_b32", hSYw, sT0))
    e(I("v_mov_b32", hVal, 1)); e(I("ds_write_b32", hSYw, hVal))
    poll(hf2, "hfin", hP, F_HFIN, 2, 1, sleep=0)
    ML = V(68, 2)
    PO = [V(84 + x * 4, 4) for x in range(4)]
    e(I("s_xor_b32", sT0, sLW, 1)); e(I("s_lshl_b32", sT0, sT0, 9)); e(I("s_add_u32", sT0, sT0, HML))
    e(I("v_add_u32", hT2, sT0, hT2))
    e(I("ds_read_b64", ML, hT2))
    for x in range(4): e(I("ds_read_b128", PO[x], hT1, mods=f"offset:{x*1024}"))
    e(I("v_min_f32", hT2, ML[0], hNEG[0]))
    e(I("v_sub_f32", ML[0], hT2, ML[0])); e(I("v_exp_f32", ML[0], ML[0]))
    e(I("v_sub_f32", hNEG[0], hT2, hNEG[0])); e(I("v_exp_f32", hNEG[0], hNEG[0]))
    e(I("v_mul_f32", hT3, ML[0], ML[1])); e(I("v_fmac_f32", hT3, hNEG[0], hNEG[1]))
    e(I("v_rcp_f32", hT3, hT3))
    e(I("v_mul_f32", ML[0], ML[0], hT3)); e(I("v_mul_f32", hNEG[0], hNEG[0], hT3))
    for x in range(4):
        for r in range(4):
            e(I("v_mul_f32", hO[x][r], hO[x][r], hNEG[0]))
            e(I("v_fmac_f32", hO[x][r], PO[x][r], ML[0]))
    e(I("s_lshl_b32", sT0, sLW, 11)); e(I("s_lshl_b32", sT1, sNG, 12)); e(I("s_add_u32", sT0, sT0, sT1)); e(I("s_add_u32", sT0, sT0, 12 * 131072))
    for j in range(2):
        X, Y = hO[2 * j], hO[2 * j + 1]
        e(I("v_cvt_pk_bf16_f32", X[0], X[0], X[1])); e(I("v_cvt_pk_bf16_f32", X[1], X[2], X[3]))
        e(I("v_cvt_pk_bf16_f32", X[2], Y[0], Y[1])); e(I("v_cvt_pk_bf16_f32", X[3], Y[2], Y[3]))
        e(I("buffer_store_dwordx4", X, hT0, sOa, sT0, mods=f"offen offset:{j*1024} sc1"))
    e(I("s_lshl_b32", sT0, sNG, 2)); e(I("s_add_u32", sT2, sT0, sL1))
    arrive(hf2, "h1", hT0, hT1, F_CNT1, 6, sT2)
    e(I("s_branch", L("h_p3")))
    hr = []; e = hr.append
    e(LABEL(L("h_rare")))
    e(I("s_nop", 15))
    for sb in range(2):
        for kk in range(4):
            e(I(MFMA, hS[sb], hKF[sb][kk], hQ[kk], 0 if kk == 0 else hS[sb]))
    x, y = hS
    e(I("v_max3_f32", hT0, x[0], x[1], x[2])); e(I("v_max3_f32", hT0, hT0, x[3], y[0]))
    e(I("v_max3_f32", hT0, hT0, y[1], y[2])); e(I("v_max_f32", hT0, hT0, y[3]))
    xlane_max(hr, hT0, hT1, hT2)
    e(I("v_add_f32", hT0, "0x40e00000", hT0))
    e(I("v_max_f32_e64", hT0, hT0, "-" + str(hNEG[0])))
    e(I("v_sub_f32_e64", hT1, "-" + str(hNEG[0]), hT0))
    e(I("v_exp_f32", hT1, hT1))
    for r in range(4): e(I("v_sub_f32", hNEG[r], 0, hT0))
    for T in range(8):
        for r in range(4): e(I("v_mul_f32", hO[T][r], hO[T][r], hT1))
    for r in range(4): e(I("v_mul_f32", hL[r], hL[r], hT1))
    for sb in range(2):
        for r in range(4): e(I("v_add_f32", hS[sb][r], hS[sb][r], hNEG[0]))
    hsoft(hr)
    e(I("s_nop", 3))
    e(I("s_branch", L("h_ret")))
    h23 = []; e = h23.append
    sK, sV = sA, sBd
    hG, hD, hDst = V(20), V(21), V(22)
    RB = [V(24 + 32 * b, 32) for b in range(6)] + [A(0, 32)]
    NRB = 7
    e(LABEL(L("h23")))
    e(I("v_lshlrev_b32", hG, 4, vLane)); e(I("s_lshl_b32", sT0, sLW, 13)); e(I("v_add_u32", hG, sT0, hG))
    e(I("s_lshl_b32", sT0, sB, 5)); e(I("s_add_u32", sT0, sT0, sH)); e(I("s_lshl_b32", sT0, sT0, 17))
    e(WAIT(lgkm=0))
    srd(e, sK, pK, sT0, 131072); srd(e, sV, pV, sT0, 131072)
    def Lq(i):
        if i >= 16: return
        if i >= 2: e(WAIT(vm=kvwin))
        for hf_ in range(2):
            e(I("s_mov_b32", sSO, (i >> 1) * 16384 + hf_ * 4096 + (OOB if "nokv" in exp else 0)))
            for m in range(4):
                e(I("buffer_load_dwordx4", RB[i % NRB].sub((hf_ * 4 + m) * 4, 4), hG, sV if i & 1 else sK, sSO,
                    mods=mods(f"offen offset:{m*1024}", kv_mods)))
    def Wr(i):
        if i == 2: poll(h23, "fwq", hP, F_DONEF, 4, 100)
        if i >= 9: poll(h23, f"fwk{i}", hP, F_DONEKV, 6, i - 8)
        e(I("v_add_u32", hDst, (i % NSLOT) * TILE, hD))
        for m in range(8):
            e(I("ds_write_b128", hDst, RB[i % NRB].sub(m * 4, 4), mods=f"offset:{(m & 1) * 4 * BLK + (m >> 1) * 256}"))
        e(I("v_mov_b32", hVal, i + 1)); e(I("ds_write_b32", hSYw, hVal))
    Lq(0); Lq(1)
    e(I("s_barrier"))
    STAMP(h23, 0)
    e(I("v_and_b32", hT0, 15, vLane)); e(I("v_lshlrev_b32", hT0, 4, hT0))
    e(I("v_lshrrev_b32", hT1, 4, vLane)); e(I("v_mul_u32_u24", hT1, BLK, hT1)); e(I("v_add_u32", hD, hT0, hT1))
    e(I("s_mul_i32", sT0, sLW, 8 * BLK)); e(I("v_add_u32", hD, sT0, hD))
    e(I("s_lshl_b32", sT0, sLW, 2)); e(I("s_add_u32", sT0, sT0, SY + F_RDYKV)); e(I("v_mov_b32", hSYw, sT0))
    tail_srds(e)
    e(I("s_lshl_b32", sT0, sKG, 20)); e(I("s_lshl_b32", sT1, sNG, 7)); e(I("s_add_u32", sT0, sT0, sT1))
    srd(e, sWO, pWO, sT0, (4194304, sT0))
    srd(e, sCN, pDBG, 0, 256)
    Wr(0); Wr(1)
    e(I("s_cmp_eq_u32", sLW, 1)); e(I("s_cbranch_scc0", L("nononce")))
    e(I("s_memrealtime", S(4, 2))); e(WAIT(lgkm=0))
    e(I("s_or_b32", sT0, S(4), 1))
    e(I("s_mov_b64", EXEC, 1))
    e(I("v_mov_b32", hP[0], sT0)); e(I("v_mov_b32", hP[1], 0)); e(I("v_mov_b32", hT0, 0))
    e(I("buffer_atomic_cmpswap", hP.sub(0, 2), hT0, sCN, 0, mods="offen sc0 sc1")); e(WAIT(vm=0))
    e(I("v_mov_b32", hT1, sT0))
    e(I("v_cmp_eq_u32", VCC, 0, hP[0]))
    e(I("v_cndmask_b32", hP[0], hP[0], hT1))
    e(I("ds_write_b32", vSY, hP[0], mods=f"offset:{F_NONCE}"))
    e(I("s_mov_b64", EXEC, -1))
    e(LABEL(L("nononce")))
    STAMP(h23, 1)
    poll(h23, "kvres", hP, F_RDYF, 2, kvres)
    STAMP(h23, 2)
    for i in range(2, 9): Lq(i)
    for i in range(2, 16):
        Wr(i); Lq(i + 7)
    STAMP(h23, 3)
    vW = [V(24 + b) for b in range(4)]
    e(I("v_and_b32", hT0, 7, vLane)); e(I("v_lshlrev_b32", hT0, 4, hT0))
    e(I("v_bfe_u32", hT1, vLane, 3, 1)); e(I("v_lshl_add_u32", hT0, hT1, 10, hT0))
    e(I("v_lshrrev_b32", hT1, 4, vLane)); e(I("v_lshl_add_u32", vW[0], hT1, 13, hT0))
    for b in range(1, 4): e(I("v_add_u32", vW[b], b * 992, vW[0]))
    e(I("s_lshl_b32", sT0, sLW, 2)); e(I("s_add_u32", sT0, sT0, SY + F_RDYWO)); e(I("v_mov_b32", hSYw, sT0))
    for i in range(4):
        e(I("s_cmp_eq_u32", sLW, 0))
        e(I("s_cselect_b32", sNEED, WNEED[2 * i], WNEED[2 * i + 1]))
        e(I("s_cselect_b32", sT2, WSLOT[2 * i], WSLOT[2 * i + 1])); e(I("s_mul_i32", sM0, sT2, TILE))
        if i:
            e(WAIT(vm=0)); e(I("v_mov_b32", hVal, i)); e(I("ds_write_b32", hSYw, hVal))
        poll(h23, f"wf{i}", hP, F_DONEKV, 6, sNEED)
        e(I("s_add_u32", sT1, sNG, sLW)); e(I("s_add_u32", sT1, sT1, 2 * i)); e(I("s_and_b32", sT1, sT1, 7)); e(I("s_lshl_b32", sT1, sT1, 17))
        for kk in range(4):
            e(I("s_add_u32", M0, sM0, kk * 4 * BLK))
            e(I("s_add_u32", sSO, sT1, kk * 32768))
            for b in range(4):
                e(I("buffer_load_dwordx4", vW[b], sWO, sSO, mods=mods(f"offen offset:{b*BLK}", wo_mods, "lds")))
    e(WAIT(vm=0)); e(I("v_mov_b32", hVal, 4)); e(I("ds_write_b32", hSYw, hVal))
    STAMP(h23, 4)
    e(I("s_cmp_eq_u32", sLW, 0)); e(I("s_cbranch_scc0", L("h_p3")))
    poll(h23, "wn1", hT2, F_NONCE, 1, 1)
    e(I("v_add_u32", hT1, sNG, vLane)); e(I("v_and_b32", hT1, 7, hT1)); e(I("v_lshlrev_b32", hT1, 2, hT1)); e(I("v_add_u32", hT1, sL1, hT1))
    e(I("s_mov_b64", EXEC, 255))
    e(LABEL(L("w1")))
    e(I("buffer_load_dword", hT0, hT1, sFL, 0, mods="offen sc1")); e(WAIT(vm=0))
    e(I("v_cmp_ne_u32", VCC, hT0, hT2))
    e(I("s_nop", 2)); e(I("s_or_b32", sT0, "vcc_lo", 0x100)); e(I("s_ff1_i32_b32", sT0, sT0))
    e(I("v_mov_b32", hT0, sT0)); e(I("ds_write_b32", vSY, hT0, mods=f"offset:{F_RDYO}"))
    e(I("s_cmp_eq_u32", sT0, 8)); e(I("s_cbranch_scc1", L("w1ok")))
    h23.extend(spin_tail(L("w1"), 2))
    e(LABEL(L("w1ok")))
    e(I("s_mov_b64", EXEC, -1))
    h3 = []; e = h3.append
    e(LABEL(L("h_p3")))
    hWr, hOo, hF = V(2), V(3), V(8)
    hACC = [V(24 + 4 * T, 4) for T in range(4)]
    hOF = [[V(40 + (x * 4 + kk) * 4, 4) for kk in range(4)] for x in range(2)]
    hWF = [V(72 + 4 * i, 4) for i in range(16)]
    wo_rd_addr(e, hWr, hT0, hT1)
    e(I("v_lshlrev_b32", hOo, 4, vLane))
    for x in range(2):
        e(I("s_lshl_b32", sT0, sHW, 1)); e(I("s_add_u32", sT0, sT0, x))
        e(I("s_add_u32", sT2, sT0, 1))
        poll(h3, f"ho{x}", hF, F_RDYO, 1, sT2)
        if x == 0: STAMP(h3, 5)
        e(I("s_add_u32", sT1, sNG, sT0)); e(I("s_and_b32", sT1, sT1, 7))
        e(I("s_lshl_b32", sT1, sT1, 12)); e(I("s_add_u32", sSO, sT1, 12 * 131072))
        for kk in range(4):
            e(I("buffer_load_dwordx4", hOF[x][kk], hOo, sOa, sSO, mods=f"offen offset:{kk*1024}"))
    for x in range(2):
        e(I("s_add_u32", sT2, sHW, 1))
        poll(h3, f"hwo{x}", hF, F_RDYWO + 4 * x, 1, sT2)
        e(I("s_lshl_b32", sT0, sHW, 1)); e(I("s_add_u32", sT0, sT0, x + 7))
        e(I("s_cmp_ge_u32", sT0, 9)); e(I("s_cselect_b32", sT1, 9, 0)); e(I("s_sub_u32", sT0, sT0, sT1))
        e(I("s_mul_i32", sT0, sT0, TILE)); e(I("v_add_u32", hT0, sT0, hWr))
        for kk in range(4):
            for T in range(4):
                for hh in range(2):
                    e(I("ds_read_b64_tr_b16", hWF[kk * 4 + T].sub(2 * hh, 2), hT0, mods=f"offset:{kk*4*BLK + T*32 + hh*512}"))
        for kk in range(4):
            for T in range(4):
                e(I(MFMA, hACC[T], hWF[kk * 4 + T], hOF[x][kk], 0 if (x == 0 and kk == 0) else hACC[T]))
    e(I("s_lshl_b32", sT0, sHW, 12)); e(I("s_add_u32", sT0, sT0, RED)); e(I("v_add_u32", hT0, sT0, hOo))
    for T in range(4): e(I("ds_write_b128", hT0, hACC[T], mods=f"offset:{T*1024}"))
    e(I("v_mov_b32", hT1, 1)); e(I("s_mov_b64", EXEC, 1))
    e(I("ds_add_u32", vSY, hT1, mods=f"offset:{F_CNT3}")); e(I("s_mov_b64", EXEC, -1))
    poll(h3, "hred", hF, F_CNT3, 1, 4, sleep=0)
    e(I("s_lshl_b32", sT0, sHW, 10)); e(I("s_add_u32", sT0, sT0, RED)); e(I("v_add_u32", hT0, sT0, hOo))
    for s in range(4): e(I("ds_read_b128", hWF[s], hT0, mods=f"offset:{s*4096}"))
    for r in range(4):
        e(I("v_add_f32", hWF[0][r], hWF[0][r], hWF[1][r])); e(I("v_add_f32", hWF[2][r], hWF[2][r], hWF[3][r]))
    for r in range(4): e(I("v_add_f32", hWF[0][r], hWF[0][r], hWF[2][r]))
    e(I("s_mul_i32", sT0, sKG, 53248)); e(I("s_lshl_b32", sT1, sHW, 10)); e(I("s_add_u32", sT0, sT0, sT1)); e(I("s_add_u32", sT0, sT0, 49152))
    e(I("buffer_store_dwordx4", hWF[0], hOo, sP, sT0, mods="offen sc1"))
    e(I("s_lshl_b32", sT0, sKG, 2)); e(I("s_add_u32", sT2, sT0, sL2))
    arrive(h3, "h2", hT0, hT1, F_CNT2, 8, sT2)
    e(I("s_cmp_eq_u32", sHW, 3)); e(I("s_cbranch_scc0", L("nowatch")))
    poll(h3, "wn2", hT2, F_NONCE, 1, 1)
    e(I("v_lshlrev_b32", hT1, 2, vLane)); e(I("v_add_u32", hT1, sL2, hT1))
    e(I("s_mov_b64", EXEC, 15))
    e(LABEL(L("w2")))
    e(I("buffer_load_dword", hT0, hT1, sFL, 0, mods="offen sc1")); e(WAIT(vm=0))
    e(I("v_cmp_ne_u32", VCC, hT0, hT2))
    e(I("s_cbranch_vccz", L("w2ok")))
    h3.extend(spin_tail(L("w2"), 2))
    e(LABEL(L("w2ok")))
    e(I("s_mov_b64", EXEC, -1))
    e(I("v_mov_b32", hT0, 1)); e(I("ds_write_b32", vSY, hT0, mods=f"offset:{F_GO}"))
    e(LABEL(L("nowatch")))
    final_part(h3, "h", hT0, hT1, V(72, 32))
    fin = [LABEL(L("end")), I("s_endpgm")]

    paths = [pre + cq + cqb + cqb + cv + body + body + ce,
             rare[0], rare[1],
             pre + hp + h01 + hb + hb + hf + hf2 + h3,
             hb + hf[:3] + hf1 + hf2,
             pre + hp + h23 + h3,
             hb + hr] + spins
    apply_waits(paths)
    apply_hazards(paths)
    order = [pre, cq, cqb, cv, body, ce, hp, h01, hb, hf, hf1, hf2, h23, h3, fin, hr, rare[0], rare[1]] + spins
    txt = "\n".join(render(x) for x in order)
    return txt, dict(vgpr=256, sgpr=102, accum=216)
```

```python
import sys
from kf import gen_kf, KF_LDS
from k2 import kernel_wrap, kernel_desc
args = sys.argv[1:]
exp = [a[2:] for a in args if a.startswith("-x")]
kw = {}
for a in args:
    if a.startswith("-k"):
        k, v = a[2:].split("="); kw[k] = int(v) if v.lstrip("-").isdigit() else v
hdr = open("standalone__mha_block_cached__near_ridge.s.ref").read().split("; @launch")[0]
n = "standalone__mha_block_cached__near_ridge_kernel"
t, d = gen_kf("k", stamps="--stamps" in args, exp=exp, **kw)
out = [hdr.rstrip()]
out.append(f"; @launch grid=(256,1,1) block=(512,1,1) lds={KF_LDS}")
out.append('.amdgcn_target "amdgcn-amd-amdhsa--gfx950"')
out.append(kernel_wrap(n, t, d))
out.append('.section .rodata,"a"\n.p2align 6')
out.append(kernel_desc(n, d))
print("\n".join(out))
```

```python
from ir import *
import struct

def f32bits(x): return struct.unpack("<I", struct.pack("<f", x))[0]
CSCALE = (128 ** -0.5) * 1.4426950408889634
BLK = 1056
TILE = 16 * BLK
NSLOT = 9
XB0 = 2 * TILE
XBSZ = 26 * BLK
WQ_BASE = XB0 + 2 * XBSZ
WQ_CH = 8 * BLK
SY = WQ_BASE + 8 * WQ_CH
Q13X = SY + 256
HML = Q13X + 4096
HXA = 9 * TILE
RED = 6 * TILE
KF_LDS = 163840
OOB = 0x40000000
MFMA = "v_mfma_f32_16x16x32_bf16"
WSLOT = [7, 8, 0, 1, 2, 3, 4, 5]
WNEED = [8, 10, 10, 12, 12, 14, 14, 16]
P_OFF = 0x1000000
FL_OFF = 0x2000000
F_RDYF, F_RDYKV, F_DONEF, F_DONEKV, F_HFIN = 0, 8, 16, 32, 64
F_RDYWO, F_CNT1, F_CNT2, F_CNT3, F_GO, F_RDYO, F_NONCE, F_FISS = 80, 96, 100, 104, 108, 112, 116, 120

sA, sBd, sOa, sP, sOUT = S(8, 4), S(12, 4), S(16, 4), S(20, 4), S(24, 4)
sWO, sCN, sFL = S(64, 4), S(68, 4), S(72, 4)
pX, pK, pV, pWQ, pWO, pOUT, pDBG, pWS = [S(28 + 2 * i, 2) for i in range(8)]
sW, sB, sH, sT0, sT1, sT2, sT3 = [S(44 + i) for i in range(7)]
sCNT, sNEED, sNEED2, sKSL, sVSL, sKD, sVD = [S(51 + i) for i in range(7)]
sC2 = S(58, 2)
sHW, sM0, sSO, sTI = S(60), S(61), S(62), S(63)
sLW, sC2T, sROT, sDN, sBUD, sNG, sKG, sL1, sL2 = [S(76 + i) for i in range(9)]
sRT, sCY = 86, 94
vSY, vLane = V(0), V(1)

def sched(mfmas, fixed, flex, cap=2.0):
    out = []; qs = [list(q) for q in flex]
    placed = set()
    def ready(item, g):
        if item[2] > g: return False
        if len(item) > 3 and any(id(d) not in placed for d in item[3]): return False
        return True
    for g, m in enumerate(mfmas):
        out.append(m)
        room = cap
        for ins, cost in fixed.get(g, []):
            out.append(ins); room -= cost; placed.add(id(ins))
        progress = True
        while progress:
            progress = False
            for q in qs:
                if q and ready(q[0], g) and q[0][1] <= room + 1e-9:
                    it = q.pop(0); out.append(it[0]); room -= it[1]; placed.add(id(it[0])); progress = True
                    break
    while any(qs):
        for q in qs:
            if q and ready(q[0], 10 ** 6):
                it = q.pop(0); out.append(it[0]); placed.add(id(it[0])); break
        else:
            raise RuntimeError("unschedulable")
    return out

def xlane_max(lst, x, t0, t1):
    a = lst.append
    a(I("v_mov_b32", t0, x)); a(I("v_mov_b32", t1, x))
    a(I("v_permlane32_swap_b32", t0, t1))
    a(I("v_max_f32", x, t0, t1))
    a(I("v_mov_b32", t0, x)); a(I("v_mov_b32", t1, x))
    a(I("v_permlane16_swap_b32", t0, t1))
    a(I("v_max_f32", x, t0, t1))

def mods(*m): return " ".join(x for x in m if x)

def gen_kf(name, stamps=False, kv_mods="nt", exp=(), f_mods="", wo_mods="", kvwin=16, kvres=8, NB=18, kvpre=0, tail=0, prio=2, slp=4, touch=1, kvlate=0, eq=8, h1d=0, kvearly=1, fsl=1):
    L = lambda s: f"L_{name}_{s}"
    spins = []
    ce = None
    def TSTAMP(lst, i):
        if tail == 1: STAMP(lst, i, True)
    def STAMP(lst, i, force=False):
        if tail and not force and 0 < i < (6 if tail == 1 else 7): return
        if stamps:
            lst.append(I("s_memrealtime", S(4, 2))); lst.append(I("s_memtime", S(6, 2))); lst.append(WAIT(lgkm=0))
            lst.append(I("s_mov_b32", S(sRT + i), S(4))); lst.append(I("s_mov_b32", S(sCY + i), S(6)))
    def STAMP_OUT(lst, vt, vd):
        if not stamps: return
        a = lst.append
        a(WAIT(vm=0)); STAMP(lst, 7)
        if "xcc" in exp:
            a(RAW(f"    s_getreg_b32 s{sCY+1}, hwreg(HW_REG_XCC_ID)")); a(RAW(f"    s_getreg_b32 s{sCY+2}, hwreg(HW_REG_HW_ID)"))
        a(I("s_add_u32", sA[0], pWS[0], 0x4000000)); a(I("s_addc_u32", sA[1], pWS[1], 0))
        a(I("s_mov_b32", sA[2], 0x100000)); a(I("s_mov_b32", sA[3], 0x20000))
        a(I("s_lshl_b32", sT0, S(2), 3)); a(I("s_add_u32", sT0, sT0, sW)); a(I("s_lshl_b32", sT0, sT0, 6))
        a(I("v_mov_b32", vt, 0))
        for i in range(8):
            a(I("v_mov_b32", vd, S(sRT + i))); a(I("buffer_store_dword", vd, vt, sA, sT0, mods=f"offen offset:{4*i}")); a(I("s_nop", 1))
            a(I("v_mov_b32", vd, S(sCY + i))); a(I("buffer_store_dword", vd, vt, sA, sT0, mods=f"offen offset:{32+4*i}")); a(I("s_nop", 1))
        a(WAIT(vm=0))
    def srd(e, d, ptr, off, size):
        e(I("s_add_u32", d[0], ptr[0], off)); e(I("s_addc_u32", d[1], ptr[1], 0))
        if isinstance(size, tuple): e(I("s_sub_u32", d[2], size[0], size[1]))
        else: e(I("s_mov_b32", d[2], size))
        e(I("s_mov_b32", d[3], 0x20000))
    def spin_tail(site_label, sleep):
        r = [I("s_sleep", sleep)] if sleep else []
        return r + [I("s_sub_u32", sBUD, sBUD, 1), I("s_cbranch_scc0", site_label), I("s_endpgm")]
    def check2(site, vF, off, need):
        early = I("ds_read_b64", vF, vSY, mods=f"offset:{off}")
        chk = [I("v_min_u32", vF[0], vF[0], vF[1]), I("v_cmp_gt_u32", VCC, need, vF[0]),
               I("s_cbranch_vccnz", L("spin_" + site)), LABEL(L("ret_" + site))]
        if "nosync" in exp: return early, chk[:2]
        spins.append([LABEL(L("spin_" + site)), I("ds_read_b64", vF, vSY, mods=f"offset:{off}"), WAIT(lgkm=0),
                      I("v_min_u32", vF[0], vF[0], vF[1]), I("v_cmp_gt_u32", VCC, need, vF[0]),
                      I("s_cbranch_vccz", L("ret_" + site))] + spin_tail(L("spin_" + site), 1))
        return early, chk
    def check1(site, vF, off, need):
        early = I("ds_read_b32", vF[0], vSY, mods=f"offset:{off}")
        chk = [I("v_cmp_gt_u32", VCC, need, vF[0]), I("s_cbranch_vccnz", L("spin_" + site)), LABEL(L("ret_" + site))]
        if "nosync" in exp: return early, chk[:1]
        spins.append([LABEL(L("spin_" + site)), I("ds_read_b32", vF[0], vSY, mods=f"offset:{off}"), WAIT(lgkm=0),
                      I("v_cmp_gt_u32", VCC, need, vF[0]),
                      I("s_cbranch_vccz", L("ret_" + site))] + spin_tail(L("spin_" + site), 0))
        return early, chk
    def poll(lst, site, regs, off, nwords, need, sleep=1, addr=None):
        if "nosync" in exp: return
        a = lst.append
        ad = addr or vSY
        a(LABEL(L("poll_" + site)))
        op = {1: "ds_read_b32", 2: "ds_read_b64"}.get(nwords, "ds_read_b128")
        a(I(op, regs.sub(0, min(nwords, 4)), ad, mods=f"offset:{off}"))
        if nwords == 6: a(I("ds_read_b64", regs.sub(4, 2), ad, mods=f"offset:{off+16}"))
        a(WAIT(lgkm=0))
        if nwords == 2: a(I("v_min_u32", regs[0], regs[0], regs[1]))
        elif nwords >= 4:
            a(I("v_min3_u32", regs[0], regs[0], regs[1], regs[2]))
            if nwords == 4: a(I("v_min_u32", regs[0], regs[0], regs[3]))
            else:
                a(I("v_min3_u32", regs[0], regs[0], regs[3], regs[4])); a(I("v_min_u32", regs[0], regs[0], regs[5]))
        a(I("v_cmp_gt_u32", VCC, need, regs[0]))
        a(I("s_cbranch_vccz", L("pok_" + site)))
        lst.extend(spin_tail(L("poll_" + site), sleep))
        a(LABEL(L("pok_" + site)))
    def arrive(lst, site, t0, t1, off, total, word, vm=0):
        a = lst.append
        a(WAIT(vm=vm))
        a(I("v_mov_b32", t0, 1))
        a(I("s_mov_b64", EXEC, 1))
        a(I("ds_add_rtn_u32", t1, vSY, t0, mods=f"offset:{off}")); a(WAIT(lgkm=0))
        a(I("v_cmp_eq_u32", VCC, total - 1, t1))
        a(I("s_cbranch_vccz", L("arr_" + site)))
        poll(lst, "nonce" + site, t0, F_NONCE, 1, 1)
        a(I("v_mov_b32", t1, word))
        st = I("buffer_store_dword", t0, t1, sFL, 0, mods="offen sc1"); st.nocount = True
        a(st)
        a(LABEL(L("arr_" + site)))
        a(I("s_mov_b64", EXEC, -1))
    def tail_srds(e):
        e(I("s_mul_i32", sT0, sB, 13 * 131072)); e(I("s_lshl_b32", sT1, sKG, 15)); e(I("s_add_u32", sT0, sT0, sT1))
        srd(e, sOa, pWS, sT0, (13 * 131072, sT1))
        e(I("s_lshl_b32", sT0, sB, 3)); e(I("s_add_u32", sT0, sT0, sNG))
        e(I("s_lshl_b32", sL2, sT0, 7))
        e(I("s_mul_i32", sT0, sT0, 4 * 53248)); e(I("s_add_u32", sT0, sT0, P_OFF))
        srd(e, sP, pWS, sT0, 4 * 53248)
        e(I("s_mul_i32", sT0, sB, 212992)); e(I("s_lshl_b32", sT1, sNG, 7)); e(I("s_add_u32", sT0, sT0, sT1))
        srd(e, sOUT, pOUT, sT0, (1703936, sT0))
        srd(e, sFL, pWS, FL_OFF, 65536)
        e(I("s_lshl_b32", sT0, sB, 2)); e(I("s_add_u32", sT0, sT0, sKG)); e(I("s_add_u32", sT0, sT0, 64))
        e(I("s_lshl_b32", sL1, sT0, 7))
    def lane_kv(lst, vKl, vVl, t0):
        a = lst.append
        a(I("v_and_b32", t0, 7, vLane)); a(I("v_mul_u32_u24", vKl, BLK, t0))
        a(I("v_bfe_u32", t0, vLane, 3, 1)); a(I("v_lshl_add_u32", vKl, t0, 8, vKl))
        a(I("v_lshrrev_b32", t0, 4, vLane)); a(I("v_lshl_add_u32", vKl, t0, 4, vKl))
        a(I("v_bfe_u32", t0, vLane, 2, 3)); a(I("v_mul_u32_u24", vVl, BLK, t0))
        a(I("v_lshrrev_b32", t0, 5, vLane)); a(I("v_lshl_add_u32", vVl, t0, 8, vVl))
        a(I("v_and_b32", t0, 3, vLane)); a(I("v_lshl_add_u32", vVl, t0, 3, vVl))
    def wo_rd_addr(e, dst, t0, t1):
        e(I("v_and_b32", t0, 3, vLane)); e(I("v_lshlrev_b32", t0, 3, t0))
        e(I("v_bfe_u32", t1, vLane, 3, 2)); e(I("v_mul_u32_u24", t1, BLK, t1)); e(I("v_add_u32", t0, t0, t1))
        e(I("v_bfe_u32", t1, vLane, 2, 1)); e(I("v_lshl_add_u32", t0, t1, 7, t0))
        e(I("v_bfe_u32", t1, vLane, 5, 1)); e(I("v_lshl_add_u32", dst, t1, 8, t0))
    def final_part(lst, tag, vA, vB, R):
        e = lst.append
        e(I("v_lshlrev_b32", vA, 4, vLane))
        e(I("v_and_b32", vB, 15, vLane)); e(I("v_lshlrev_b32", vB, 10, vB))
        e(I("v_lshrrev_b32", R[0], 4, vLane)); e(I("v_lshl_add_u32", vB, R[0], 3, vB))
        e(I("s_mul_i32", sT0, sKG, 12)); e(I("s_add_u32", sT0, sT0, sW))
        e(I("s_lshl_b32", sT1, sT0, 10))
        e(I("s_add_u32", sT2, sT1, 8192))
        e(I("s_cmp_lt_u32", sW, 4)); e(I("s_cselect_b32", sT3, 1, 0)); e(I("s_cmp_eq_u32", sKG, 3)); e(I("s_cselect_b32", sT3, 1, sT3))
        e(I("s_cmp_eq_u32", sT3, 1)); e(I("s_cselect_b32", sT2, sT2, OOB))
        poll(lst, "go" + tag, R.sub(0, 1), F_GO, 1, 1)
        STAMP(lst, 6)
        for i, so in enumerate((sT1, sT2)):
            for s in range(4):
                e(I("s_add_u32", sSO, so, s * 53248))
                e(I("buffer_load_dwordx4", R.sub((i * 4 + s) * 4, 4), vA, sP, sSO, mods="offen sc1"))
        for i in range(2):
            B = lambda s, r: R[(i * 4 + s) * 4 + r]
            for r in range(4):
                e(I("v_add_f32", B(0, r), B(0, r), B(1, r))); e(I("v_add_f32", B(2, r), B(2, r), B(3, r)))
            for r in range(4): e(I("v_add_f32", B(0, r), B(0, r), B(2, r)))
            e(I("v_cvt_pk_bf16_f32", B(0, 0), B(0, 0), B(0, 1))); e(I("v_cvt_pk_bf16_f32", B(0, 1), B(0, 2), B(0, 3)))
            if i: e(I("s_add_u32", sT0, sT0, 8))
            e(I("s_lshr_b32", sT1, sT0, 2)); e(I("s_lshl_b32", sT1, sT1, 14)); e(I("s_and_b32", sSO, sT0, 3)); e(I("s_lshl_b32", sSO, sSO, 5))
            e(I("s_add_u32", sSO, sSO, sT1))
            if i:
                e(I("s_cmp_eq_u32", sT3, 1)); e(I("s_cselect_b32", sSO, sSO, OOB))
            e(I("buffer_store_dwordx2", R.sub(i * 16, 2), vB, sOUT, sSO, mods="offen"))
        STAMP_OUT(lst, vA, vB)
        e(I("s_endpgm"))

    pre = []; e = pre.append
    e(I("s_cmp_ge_u32", S(2), 256))
    e(I("s_cbranch_scc1", L("end")))
    e(I("s_load_dwordx16", S(28, 16), S(0, 2), 0))
    e(I("v_lshrrev_b32", V(2), 6, V(0)))
    e(I("v_and_b32", vLane, 63, V(0)))
    e(I("v_readfirstlane_b32", sW, V(2)))
    e(I("s_and_b32", sT0, S(2), 1)); e(I("s_lshl_b32", sT0, sT0, 2))
    e(I("s_lshr_b32", sT1, S(2), 6)); e(I("s_add_u32", sB, sT0, sT1))
    e(I("s_bfe_u32", sKG, S(2), (2 << 16) | 1)); e(I("s_lshl_b32", sT0, sKG, 3))
    e(I("s_bfe_u32", sNG, S(2), (3 << 16) | 3)); e(I("s_add_u32", sH, sT0, sNG))
    e(I("s_mov_b32", sC2T, 2 * TILE)); e(I("s_mov_b32", sBUD, 400000))
    e(I("s_lshl_b32", sROT, sT1, 1)); e(I("s_add_u32", sROT, sROT, sNG))
    if "norot" in exp: e(I("s_mov_b32", sROT, 0))
    e(I("v_lshlrev_b32", V(3), 2, vLane)); e(I("v_add_u32", V(3), SY, V(3))); e(I("v_mov_b32", V(4), 0))
    e(I("ds_write_b32", V(3), V(4)))
    e(I("v_mov_b32", vSY, SY))
    e(I("s_sub_u32", sHW, sW, 4)); e(I("s_and_b32", sLW, sW, 1))
    e(I("s_cmp_ge_u32", sW, 4))
    e(I("s_cbranch_scc1", L("helper")))

    vK, vV, vOr = V(2), V(3), V(4)
    vT0, vT1, vT2 = V(5), V(6), V(7)
    NEGM = [V(8 + 4 * t, 4) for t in range(3)]
    SB = [[[V(20 + ((e_ * 2 + sb) * 3 + t) * 4, 4) for t in range(3)] for sb in range(2)] for e_ in range(2)]
    vT3, vSYd, vF = V(68), V(69), V(70, 2)
    O = [[V(72 + (t * 8 + T) * 4, 4) for T in range(8)] for t in range(3)]
    Q = [[V(168 + (t * 4 + kk) * 4, 4) for kk in range(4)] for t in range(3)]
    LA_ = [A(4 * t, 4) for t in range(3)]
    ONES = A(12, 4)
    POOL = [A(16 + 4 * i, 4) for i in range(6)]
    XR = [[[V((20 if st == 0 else 168) + (h_ * 4 + t) * 4, 4) for t in range(4)] for h_ in range(2)] for st in range(2)]
    Q13A = [V(52, 4), V(56, 4)]
    W13 = [V(60, 4), V(64, 4)]
    WQF = [A(4 * T, 4) for T in range(8)]
    vXa = [V(8), V(9), V(10), V(11)]
    vWQ, vW13 = V(4), V(12)
    cq = []; e = cq.append
    if prio: e(I("s_setprio", prio))
    lane_kv(cq, vK, vV, vT0)
    e(I("v_lshrrev_b32", vT0, 5, vLane)); e(I("v_lshl_add_u32", vWQ, vT0, 8, vV))
    e(I("v_add_u32", vWQ, WQ_BASE, vWQ))
    e(I("s_lshl_b32", sT0, sW, 6)); e(I("v_add_u32", vW13, sT0, vWQ))
    e(I("v_and_b32", vT0, 3, vLane)); e(I("v_mul_u32_u24", vT0, BLK, vT0))
    e(I("v_bfe_u32", vT1, vLane, 2, 2)); e(I("v_lshl_add_u32", vT0, vT1, 7, vT0))
    e(I("v_lshrrev_b32", vT1, 4, vLane)); e(I("v_lshl_add_u32", vT0, vT1, 4, vT0))
    for t in range(3):
        e(I("s_mul_i32", sT0, sW, 3)); e(I("s_add_u32", sT0, sT0, t))
        e(I("s_lshr_b32", sT1, sT0, 1)); e(I("s_mul_i32", sT1, sT1, 4 * BLK))
        e(I("s_and_b32", sT0, sT0, 1)); e(I("s_lshl_b32", sT0, sT0, 9))
        e(I("s_add_u32", sT0, sT0, sT1)); e(I("s_add_u32", sT0, sT0, XB0))
        e(I("v_add_u32", vXa[t], sT0, vT0))
    e(I("v_and_b32", vT0, 1, vLane)); e(I("v_mul_u32_u24", vT0, BLK, vT0))
    e(I("v_bfe_u32", vT2, vLane, 1, 3)); e(I("v_lshl_add_u32", vT0, vT2, 7, vT0))
    e(I("v_lshl_add_u32", vT0, vT1, 4, vT0))
    e(I("v_add_u32", vXa[3], XB0 + 24 * BLK, vT0))
    e(I("s_lshl_b32", sT0, sW, 2)); e(I("s_add_u32", sT0, sT0, SY)); e(I("v_mov_b32", vSYd, sT0))
    e(I("s_mov_b32", sC2[0], f32bits(CSCALE))); e(I("s_mov_b32", sC2[1], f32bits(CSCALE)))
    e(WAIT(lgkm=0))
    STAMP(cq, 0)
    e(I("s_barrier"))
    if "fonly" in exp: e(I("s_endpgm"))
    for t in range(3):
        for T in range(8):
            for r in range(4): e(I("v_mov_b32", O[t][T][r], 0))
    for R in Q13A:
        for r in range(4): e(I("v_mov_b32", R[r], 0))
    tail_srds(e)
    def xreads(c, st):
        return [I("ds_read_b128", XR[st][h_][t], vXa[t], mods=f"offset:{(c & 1) * XBSZ + h_ * 64}") for h_ in range(2) for t in range(4)]
    def wqreads(s, T):
        return [I("ds_read_b64_tr_b16", WQF[T].sub(2 * hh, 2), vWQ, mods=f"offset:{(s & 7) * WQ_CH + hh * 256 + T * 32}") for hh in range(2)]
    def w13reads(s):
        return [I("ds_read_b64_tr_b16", W13[x].sub(2 * hh, 2), vW13, mods=f"offset:{(s & 7) * WQ_CH + hh * 256 + x * 32}")
                for x in range(2) for hh in range(2)]
    def done_write(off):
        return [I("v_mov_b32", vF[0], sDN), I("ds_write_b32", vSYd, vF[0], mods=f"offset:{off}")]
    poll(cq, "cq0", vF, F_RDYF, 1, 1, sleep=0)
    cq.extend(xreads(0, 0))
    LAQ = 4
    for T in range(LAQ): cq.extend(wqreads(0, T))
    e(I("s_mov_b32", sDN, 2)); cq.extend(done_write(F_DONEF))
    e(I("s_mov_b32", sNEED, 2))
    e(I("s_mov_b32", sCNT, 0))
    STAMP(cq, 1, tail in (4, 5))
    e(LABEL(L("cq_loop")))
    mf = []; fixed = {}
    def fx(g, ins, cost=1): fixed.setdefault(g, []).append((ins, cost))
    for s in range(8):
        st = (s >> 1) & 1; h_ = s & 1
        base = len(mf)
        if h_ == 0:
            early, chk = check1(f"cq{s}", vF, F_RDYF + 4 * (((s >> 1) + 1) & 1), sNEED)
            fx(base + eq, early)
        for i, r in enumerate(w13reads(s)): fx(base + 3 * i + 2, r)
        for T in range(8):
            g0 = len(mf)
            for t in range(3):
                mf.append(I(MFMA, O[t][T], WQF[T], XR[st][h_][t], O[t][T]))
            if T in (5, 6):
                mf.append(I(MFMA, Q13A[T - 5], W13[T - 5], XR[st][h_][3], Q13A[T - 5]))
            f = s * 8 + T + LAQ
            s2, T2 = f >> 3, f & 7
            if T2 == 0 and h_ == 0:
                for x in chk: fx(g0, x, 0.5 if x.cls == "valu" else 0)
                fx(g0, I("s_add_u32", sNEED, sNEED, 1), 0)
                if tail in (4, 5):
                    tmp = [I("s_cmp_eq_u32", sCNT, tail - 4), I("s_cbranch_scc0", L(f"sk{s}"))]
                    STAMP(tmp, 2 + (s >> 1), True); tmp.append(LABEL(L(f"sk{s}")))
                    for x in tmp: fx(g0, x, 0)
            if T2 == 0 and h_ == 1:
                fx(g0 - 1, I("s_add_u32", sDN, sDN, 1), 0)
                for x in done_write(F_DONEF): fx(g0, x, 0.5)
            rr = wqreads(s2, T2)
            fx(g0 + (1 if T2 == 0 else 0), rr[0]); fx(g0 + (2 if T2 == 0 else 1), rr[1])
            if h_ == 0 and T >= 4:
                xr = xreads((s >> 1) + 1, 1 - st)
                fx(g0 + 2, xr[2 * (T - 4)]); fx(g0 + 2, xr[2 * (T - 4) + 1])
                if T == 7:
                    fx(g0 + 2, I("s_add_u32", sDN, sDN, 3), 0)
                    for x in done_write(F_DONEF): fx(g0 + 2, x, 0.5)
    cqb = sched(mf, fixed, [])
    cv = []; e = cv.append
    e(I("s_mov_b32", sDN, 1000)); cv.extend(done_write(F_DONEF))
    STAMP(cv, 2)
    if tail in (4, 5): STAMP(cv, 6, True)
    allp = [(Q13A[0], Q13A[1], Q13A[0])] + [(O[t][2 * kk], O[t][2 * kk + 1], Q[t][kk]) for kk in range(4) for t in range(3)]
    for X, Y, Z in allp:
        for R in (X, Y):
            e(I("v_pk_mul_f32", R.sub(0, 2), R.sub(0, 2), sC2)); e(I("v_pk_mul_f32", R.sub(2, 2), R.sub(2, 2), sC2))
        e(I("v_cvt_pk_bf16_f32", Z[0], X[0], X[1])); e(I("v_cvt_pk_bf16_f32", Z[1], X[2], X[3]))
        e(I("v_cvt_pk_bf16_f32", Z[2], Y[0], Y[1])); e(I("v_cvt_pk_bf16_f32", Z[3], Y[2], Y[3]))
    for X, Y, Z in allp:
        e(I("v_permlane32_swap_b32", Z[0], Z[2])); e(I("v_permlane32_swap_b32", Z[1], Z[3]))
    for X, Y, Z in allp:
        e(I("v_permlane16_swap_b32", Z[0], Z[2])); e(I("v_permlane16_swap_b32", Z[1], Z[3]))
    e(I("v_lshlrev_b32", vT0, 4, vLane))
    e(I("s_lshl_b32", sT0, sW, 10)); e(I("s_add_u32", sT0, sT0, Q13X))
    e(I("v_add_u32", vT0, sT0, vT0))
    e(I("ds_write_b128", vT0, Q13A[0]))
    e(I("s_mov_b32", sDN, 1001)); cv.extend(done_write(F_DONEF))
    zero = []
    for t in range(3):
        for T in range(8):
            for r in range(4): zero.append(I("v_mov_b32", O[t][T][r], 0))
    zero.append(I("v_mov_b32", vT3, 0x3F803F80))
    for t in range(3):
        for r in range(4): zero.append(I("v_accvgpr_write_b32", LA_[t][r], 0))
    for r in range(4): zero.append(I("v_accvgpr_write_b32", ONES[r], vT3))
    e(I("v_add_u32", vV, TILE, vV))
    e(I("s_mov_b32", sKSL, 0)); e(I("s_mov_b32", sVSL, 1)); e(I("s_mov_b32", sKD, 0))
    e(I("s_mov_b32", sCNT, 0)); e(I("s_mov_b32", sDN, 0))
    e(I("s_mov_b32", sNEED, 2)); e(I("s_mov_b32", sNEED2, 3))
    poll(cv, "k0", vF, F_RDYKV, 2, 1)
    def kread(buf, addr, uh, sb, kk):
        return I("ds_read_b128", buf, addr, mods=f"offset:{uh * 8 * BLK + sb * 512 + kk * 64}")
    def vreads(buf, uh, T):
        return [I("ds_read_b64_tr_b16", buf.sub(2 * hh, 2), vV, mods=f"offset:{uh * 8 * BLK + hh * 512 + T * 32}") for hh in range(2)]
    def qk_simple(lst, addr, uh, D, C):
        for sb in range(2):
            for kk in range(4): lst.append(kread(POOL[kk], addr, uh, sb, kk))
            for kk in range(4):
                for t in range(3):
                    c = D[sb][t] if kk else (0 if C is None else C[t])
                    lst.append(I(MFMA, D[sb][t], POOL[kk], Q[t][kk], c))
    def rowmax(lst, D, t, dst):
        a = lst.append
        x, y = D[0][t], D[1][t]
        a(I("v_max3_f32", dst, x[0], x[1], x[2])); a(I("v_max3_f32", dst, dst, x[3], y[0]))
        a(I("v_max3_f32", dst, dst, y[1], y[2])); a(I("v_max_f32", dst, dst, y[3]))
        xlane_max(lst, dst, vT1, vT2)
    def exps(D, t, sb): return [I("v_exp_f32", D[sb][t][r], D[sb][t][r]) for r in range(4)]
    def cvts(D, t):
        x, y = D[0][t], D[1][t]
        return [I("v_cvt_pk_bf16_f32", x[0], x[0], x[1]), I("v_cvt_pk_bf16_f32", x[1], x[2], x[3]),
                I("v_cvt_pk_bf16_f32", x[2], y[0], y[1]), I("v_cvt_pk_bf16_f32", x[3], y[2], y[3])]
    P8 = POOL + [A(0, 4), A(4, 4)]
    for i in range(8): e(kread(P8[i], vK, 0, i >> 2, i & 3))
    zq = list(zero)
    for i in range(8):
        for t in range(3):
            e(I(MFMA, SB[0][i >> 2][t], P8[i], Q[t][i & 3], SB[0][i >> 2][t] if i & 3 else 0))
            for _ in range(3):
                if zq and zq[0].op == "v_mov_b32": e(zq.pop(0))
    cv.extend(zq)
    for t in range(3):
        rowmax(cv, SB[0], t, vT0)
        e(I("v_sub_f32", NEGM[t][0], "0xc0e00000", vT0))
        for r in range(1, 4): e(I("v_mov_b32", NEGM[t][r], NEGM[t][0]))
        for sb in range(2):
            for r in range(4): e(I("v_add_f32", SB[0][sb][t][r], SB[0][sb][t][r], NEGM[t][0]))
    BUFSEQ = list(range(6)) * 2 + list(range(5)) * 4
    LAF = 4
    def frag_reads(f):
        f &= 31
        buf = POOL[BUFSEQ[f]]
        blk, i = f >> 3, f & 7
        if blk == 0: return [kread(buf, vK, 1, i >> 2, i & 3)]
        if blk == 1: return vreads(buf, 0, i)
        if blk == 2: return [kread(buf, vK, 0, i >> 2, i & 3)]
        return vreads(buf, 1, i)
    def exp_order(D):
        o = []
        for t in range(3): o += [(x, t) for x in exps(D, t, 0)]
        for t in range(3): o += [(x, t) for x in exps(D, t, 1)]
        return o
    for f in range(LAF): cv.extend(frag_reads(f))
    for x, t in exp_order(SB[0])[:NB]: e(x)
    STAMP(cv, 3)
    e(LABEL(L("c_loop")))
    body = []
    def blockA(par, fbase, extra):
        D = SB[1 - par]; Pn = SB[par]
        mf = []; fixed = {}
        for i in range(8):
            f = fbase + i; sb, kk = i >> 2, i & 3
            g0 = len(mf)
            for t in range(3):
                mf.append(I(MFMA, D[sb][t], POOL[BUFSEQ[f]], Q[t][kk], NEGM[t] if kk == 0 else D[sb][t]))
            for g, items in extra.items():
                if g == g0: fixed.setdefault(g, []).extend(items)
            for j, r in enumerate(frag_reads(f + LAF)): fixed.setdefault(g0 + j, []).append((r, 1))
        for g, items in extra.items():
            if g % 3: fixed.setdefault(g, []).extend(items)
        eo = exp_order(Pn)[NB:]
        qe = [(x, 2, 0) for x, t in eo]
        dep = {t: [x for x, tt in eo if tt == t] for t in range(3)}
        qs = []
        p = [Pn[0][t][r] for t in range(3) for r in range(4)]
        for t in range(3):
            for x in cvts(Pn, t): qs.append((x, 1, 0, dep[t]))
            if t == 0:
                qs.append((I("v_or3_b32", vOr, p[0], p[1], p[2]), 1, 0))
            elif t == 1:
                qs.append((I("v_or3_b32", vOr, vOr, p[3], p[4]), 1, 0))
                qs.append((I("v_or3_b32", vOr, vOr, p[5], p[6]), 1, 0))
            else:
                qs.append((I("v_or3_b32", vOr, vOr, p[7], p[8]), 1, 0))
                qs.append((I("v_or3_b32", vOr, vOr, p[9], p[10]), 1, 0))
                qs.append((I("v_or_b32", vOr, vOr, p[11]), 1, 0))
        qs.append((I("v_and_b32", vOr, 0x40004000, vOr), 1, 0))
        qs.append((I("v_cmp_ne_u32", VCC, 0, vOr), 1, 23))
        out = sched(mf, fixed, [qe, qs])
        if "norare" not in exp: out.append(I("s_cbranch_vccnz", L(f"c_rare{par}")))
        out.append(LABEL(L(f"c_ret{par}")))
        return out
    def blockB(par, fbase, extra):
        Pn = SB[par]; Dn = SB[1 - par]
        mf = []; fixed = {}
        for t in range(3):
            mf.append(I(MFMA, LA_[t], ONES, Pn[0][t], LA_[t]))
        for g, items in extra.items():
            if g < 3 or g % 3: fixed.setdefault(g, []).extend(items)
        for i in range(8):
            f = fbase + i
            g0 = len(mf)
            for t in range(3):
                mf.append(I(MFMA, O[t][i], POOL[BUFSEQ[f]], Pn[0][t], O[t][i]))
            for g, items in extra.items():
                if g == g0: fixed.setdefault(g, []).extend(items)
            for j, r in enumerate(frag_reads(f + LAF)): fixed.setdefault(g0 + j, []).append((r, 1))
        qe = [(x, 2, 0 if k < 12 else 4) for k, (x, t) in enumerate(exp_order(Dn)[:NB])]
        return sched(mf, fixed, [qe])
    def slot_adv(sSL, sD):
        return [I("s_add_u32", sSL, sSL, 2), I("s_cmp_ge_u32", sSL, NSLOT),
                I("s_cselect_b32", sD, (2 - NSLOT) * TILE, sC2T), I("s_cselect_b32", sT0, NSLOT, 0),
                I("s_sub_u32", sSL, sSL, sT0)]
    c1 = lambda lst: [(x, 0.5 if x.cls == "valu" else (1 if x.cls.startswith("lds") else 0)) for x in lst]
    eV, cV = check2("cv", vF, F_RDYKV, sNEED)
    eK, cK = check2("ck", vF, F_RDYKV, sNEED2)
    body += blockA(0, 0, {4: c1([eV]), 12: c1(cV)})
    body += blockB(0, 8, {0: c1(slot_adv(sKSL, sKD)), 2: c1([I("v_add_u32", vK, sKD, vK)]), 5: c1([eK]), 15: c1(cK)})
    body += blockA(1, 16, {})
    nx = [I("s_add_u32", sNEED, sNEED, 2), I("s_add_u32", sNEED2, sNEED2, 2), I("s_min_u32", sNEED2, sNEED2, 16),
          I("s_add_u32", sDN, sDN, 2)]
    body += blockB(1, 24, {16: c1(slot_adv(sVSL, sVD) + nx), 17: c1(done_write(F_DONEKV)), 20: c1([I("v_add_u32", vV, sVD, vV)])})
    def filt(lst):
        o = []
        for x in lst:
            if "noexp" in exp and x.op == "v_exp_f32": continue
            if "nolds" in exp and x.cls == "ldsrd": continue
            if "novalu" in exp and x.cls == "valu" and x.op != "v_add_u32": continue
            if "nomfma" in exp and x.cls == "mfma": continue
            o.append(x)
        return o
    body = filt(body); cqb = filt(cqb)
    cqb += [I("s_add_u32", sCNT, sCNT, 1), I("s_cmp_lt_u32", sCNT, 2), I("s_cbranch_scc1", L("cq_loop"))]
    body += [I("s_add_u32", sCNT, sCNT, 1), I("s_cmp_lt_u32", sCNT, 8), I("s_cbranch_scc1", L("c_loop"))]
    ce = []; e = ce.append
    STAMP(ce, 4); TSTAMP(ce, 1)
    vWr, vOo = V(2), V(3)
    ACC = [[V(20 + (t * 4 + T) * 4, 4) for T in range(4)] for t in range(3)]
    SETS = [168, 72, 120]
    OF = [[[V(SETS[s] + (t * 4 + kk) * 4, 4) for kk in range(4)] for t in range(3)] for s in range(3)]
    WF = [A(4 * i, 4) for i in range(8)]
    e(I("v_lshlrev_b32", vOo, 4, vLane)); e(I("s_mul_i32", sT0, sW, 3 * 131072)); e(I("v_add_u32", vOo, sT0, vOo))
    e(I("s_lshl_b32", sT1, sNG, 12))
    vR = [V(8 + 2 * t, 2) for t in range(3)]
    for t in range(3): e(I("v_accvgpr_read_b32", vR[t][0], LA_[t][0]))
    for t in range(3): e(I("v_rcp_f32", vR[t][0], vR[t][0]))
    for t in range(3): e(I("v_mov_b32", vR[t][1], vR[t][0]))
    for t in range(3):
        for kk in range(4):
            X, Y, Z = O[t][2 * kk], O[t][2 * kk + 1], OF[0][t][kk]
            for R in (X, Y):
                e(I("v_pk_mul_f32", R.sub(0, 2), R.sub(0, 2), vR[t])); e(I("v_pk_mul_f32", R.sub(2, 2), R.sub(2, 2), vR[t]))
            e(I("v_cvt_pk_bf16_f32", Z[0], X[0], X[1])); e(I("v_cvt_pk_bf16_f32", Z[1], X[2], X[3]))
            e(I("v_cvt_pk_bf16_f32", Z[2], Y[0], Y[1])); e(I("v_cvt_pk_bf16_f32", Z[3], Y[2], Y[3]))
            e(I("buffer_store_dwordx4", Z, vOo, sOa, sT1, mods=f"offen offset:{kk*1024} sc1"))
        e(I("s_add_u32", sT1, sT1, 131072))
    wo_rd_addr(e, vWr, vT0, vT1)
    e(I("v_add_u32", V(4), 61440, vWr)); e(I("v_add_u32", V(7), 122880, vWr))
    def oloads(g):
        r = [I("s_add_u32", sT1, sNG, g), I("s_and_b32", sT1, sT1, 7), I("s_lshl_b32", sT1, sT1, 12)]
        for t in range(3):
            r.append(I("s_add_u32", sSO, sT1, t * 131072))
            for kk in range(4):
                r.append(I("buffer_load_dwordx4", OF[g % 3][t][kk], vOo, sOa, sSO, mods=f"offen offset:{kk*1024}"))
        return r
    def wreads(g, kk, T):
        buf = WF[(kk & 1) * 4 + T]
        base = WSLOT[g] * TILE + kk * 4 * BLK + T * 32
        a_, off = [vWr, V(4), V(7)][base // 61440], base % 61440
        return [I("ds_read_b64_tr_b16", buf.sub(2 * hh, 2), a_, mods=f"offset:{off + hh*512}") for hh in range(2)]
    def head_block(g, ol):
        nonlocal ce
        poll(ce, f"wo{g}", vF, F_RDYWO + 4 * (g & 1), 1, (g >> 1) + 1, sleep=0)
        for T in range(4): ce.extend(wreads(g, 0, T))
        mf = []; fixed = {}
        for kk in range(4):
            for T in range(4):
                g0 = len(mf)
                for t in range(3):
                    mf.append(I(MFMA, ACC[t][T], WF[(kk & 1) * 4 + T], OF[g % 3][t][kk], 0 if (g == 0 and kk == 0) else ACC[t][T]))
                if kk < 3:
                    rr = wreads(g, kk + 1, T)
                    fixed.setdefault(g0, []).append((rr[0], 1)); fixed.setdefault(g0 + 1, []).append((rr[1], 1))
        ce.extend(sched(mf, fixed, [[(x, 0.5 if x.cls == "salu" else 1, 1) for x in ol]]))
    head_block(0, [])
    e(I("s_lshl_b32", sT0, sNG, 2)); e(I("s_add_u32", sT2, sT0, sL1))
    e(I("ds_read_b32", vF[0], vSY, mods=f"offset:{F_RDYO}")); e(WAIT(lgkm=0))
    e(I("v_cmp_gt_u32", VCC, 2, vF[0]))
    e(I("s_cbranch_vccnz", L("c_late")))
    ceA = oloads(1) + oloads(2)
    arrive(ceA, "c1a", vT0, vT1, F_CNT1, 6, sT2, vm=24)
    ceA.append(I("s_branch", L("c_go")))
    ceB = [LABEL(L("c_late"))]
    arrive(ceB, "c1b", vT0, vT1, F_CNT1, 6, sT2)
    TSTAMP(ceB, 2)
    poll(ceB, "o1", vF, F_RDYO, 1, 1, sleep=0); ceB.extend(oloads(1))
    poll(ceB, "o2", vF, F_RDYO, 1, 2, sleep=0); ceB.extend(oloads(2))
    ce1 = ce
    ce = [LABEL(L("c_go"))]; e = ce.append
    STAMP(ce, 5); TSTAMP(ce, 3)
    for g in range(1, 8):
        if g + 2 < 8: poll(ce, f"o{g+2}", vF, F_RDYO, 1, g + 2, sleep=0)
        head_block(g, oloads(g + 2) if g + 2 < 8 else [])
    TSTAMP(ce, 4)
    e(I("v_lshlrev_b32", vT0, 4, vLane))
    e(I("s_mul_i32", sT0, sKG, 53248)); e(I("s_mul_i32", sT1, sW, 12288)); e(I("s_add_u32", sT0, sT0, sT1))
    for t in range(3):
        for T in range(4):
            e(I("buffer_store_dwordx4", ACC[t][T], vT0, sP, sT0, mods=f"offen offset:{T*1024} sc1"))
        e(I("s_add_u32", sT0, sT0, 4096))
    e(I("s_lshl_b32", sT0, sKG, 2)); e(I("s_add_u32", sT2, sT0, sL2))
    arrive(ce, "c2", vT0, vT1, F_CNT2, 8, sT2)
    TSTAMP(ce, 5)
    final_part(ce, "c", vT0, vT1, V(72, 32))
    rare = []
    for par in range(2):
        r_ = []; e = r_.append
        e(LABEL(L(f"c_rare{par}")))
        e(WAIT(lgkm=0)); e(I("s_nop", 15))
        if par == 0:
            aN, uhN, aN1, uhN1 = vK, 0, vK, 1
        else:
            e(I("v_subrev_u32", vT3, sKD, vK))
            aN, uhN, aN1, uhN1 = vT3, 1, vK, 0
        Dn, Dn1 = SB[par], SB[1 - par]
        qk_simple(r_, aN, uhN, Dn, None)
        for t in range(3):
            rowmax(r_, Dn, t, vT0)
            e(I("v_add_f32", vT0, "0x40e00000", vT0))
            e(I("v_max_f32_e64", vT0, vT0, "-" + str(NEGM[t][0])))
            e(I("v_sub_f32_e64", vT1, "-" + str(NEGM[t][0]), vT0))
            e(I("v_exp_f32", vT1, vT1))
            for r in range(4): e(I("v_sub_f32", NEGM[t][r], 0, vT0))
            for T in range(8):
                for r in range(4): e(I("v_mul_f32", O[t][T][r], O[t][T][r], vT1))
            for r in range(4):
                e(I("v_accvgpr_read_b32", vT2, LA_[t][r])); e(I("v_mul_f32", vT2, vT2, vT1)); e(I("v_accvgpr_write_b32", LA_[t][r], vT2))
            for sb in range(2):
                for r in range(4): e(I("v_add_f32", Dn[sb][t][r], Dn[sb][t][r], NEGM[t][0]))
            r_.extend(exps(Dn, t, 0)); r_.extend(exps(Dn, t, 1)); r_.extend(cvts(Dn, t))
        qk_simple(r_, aN1, uhN1, Dn1, NEGM)
        fb = 8 if par == 0 else 24
        for f in range(fb, fb + LAF): r_.extend(frag_reads(f))
        e(WAIT(lgkm=0)); e(I("s_nop", 15))
        e(I("s_branch", L(f"c_ret{par}")))
        rare.append(r_)

    hT0, hT1, hT2, hT3 = V(5), V(6), V(7), V(4)
    hP = V(8, 8)
    hSYw, hVal, hIss = V(16), V(17), V(18)
    hp = []; e = hp.append
    e(LABEL(L("helper")))
    if "noload" in exp: e(I("s_endpgm"))
    e(I("s_cmp_ge_u32", sHW, 2))
    e(I("s_cbranch_scc1", L("h23")))
    h01 = []; e = h01.append
    sX, sWQ = sA, sBd
    hXo, hXo2, hWo = [V(26 + m) for m in range(4)], [V(20), V(21)], [V(22 + m) for m in range(4)]
    e(I("v_and_b32", hT0, 7, vLane)); e(I("v_lshlrev_b32", hT0, 4, hT0)); e(I("v_lshrrev_b32", hT1, 3, vLane))
    e(I("v_lshl_add_u32", hXo[3], hT1, 12, hT0)); e(I("v_lshl_add_u32", hXo2[1], hT1, 11, hT0))
    for m in range(3): e(I("v_add_u32", hXo[m], 96 - 32 * m, hXo[3]))
    e(I("v_add_u32", hXo2[1], 192 * 1024 + 64, hXo2[1])); e(I("v_add_u32", hXo2[0], 32, hXo2[1]))
    e(I("v_and_b32", hT0, 15, vLane)); e(I("v_lshlrev_b32", hT0, 4, hT0))
    e(I("v_bfe_u32", hT1, vLane, 4, 1)); e(I("v_lshl_add_u32", hT0, hT1, 15, hT0))
    e(I("v_lshrrev_b32", hT1, 5, vLane)); e(I("v_lshl_add_u32", hWo[0], hT1, 17, hT0))
    for m in range(1, 4): e(I("v_add_u32", hWo[m], m * (8192 - BLK), hWo[0]))
    e(I("s_lshl_b32", sT0, sLW, 2)); e(I("s_add_u32", sT0, sT0, SY + F_RDYF)); e(I("v_mov_b32", hSYw, sT0))
    e(WAIT(lgkm=0))
    e(I("s_mul_i32", sT0, sB, 212992)); e(I("s_add_u32", sX[0], pX[0], sT0)); e(I("s_addc_u32", sX[1], pX[1], 0))
    e(I("s_sub_u32", sX[0], sX[0], 96)); e(I("s_subb_u32", sX[1], sX[1], 0))
    e(I("s_mov_b32", sX[2], 212992 + 96)); e(I("s_mov_b32", sX[3], 0x20000))
    e(I("s_lshl_b32", sT0, sH, 8)); srd(e, sWQ, pWQ, sT0, (4194304, sT0))
    def x_issue(lst, c):
        a = lst.append
        a(I("s_add_u32", sSO, sROT, c)); a(I("s_and_b32", sSO, sSO, 7)); a(I("s_lshl_b32", sSO, sSO, 7))
        if "nox" in exp: a(I("s_mov_b32", sSO, OOB))
        for G in range(6):
            a(I("s_mov_b32", M0, XB0 + (c & 1) * XBSZ + 4 * G * BLK))
            a(I("s_add_u32", sT0, sSO, G * 32768))
            for m in range(4):
                a(I("buffer_load_dwordx4", hXo[m], sX, sT0, mods=mods(f"offen offset:{m*BLK}", f_mods, "lds")))
        a(I("s_mov_b32", M0, XB0 + (c & 1) * XBSZ + 24 * BLK))
        a(I("s_nop", 0))
        for m in range(2):
            a(I("buffer_load_dwordx4", hXo2[m], sX, sSO, mods=mods(f"offen offset:{m*BLK}", f_mods, "lds")))
    def w_issue(lst, s_):
        a = lst.append
        a(I("s_add_u32", sSO, sROT, s_ >> 1)); a(I("s_and_b32", sSO, sSO, 7)); a(I("s_lshl_b32", sSO, sSO, 19))
        if s_ & 1: a(I("s_add_u32", sSO, sSO, 1 << 18))
        if "nowq" in exp: a(I("s_mov_b32", sSO, OOB))
        for hl in range(2):
            a(I("s_mov_b32", M0, WQ_BASE + (s_ & 7) * WQ_CH + hl * 4 * BLK))
            a(I("s_add_u32", sT0, sSO, hl * 65536))
            for m in range(4):
                a(I("buffer_load_dwordx4", hWo[m], sWQ, sT0, mods=mods(f"offen offset:{m*BLK}", f_mods, "lds")))
    def pub(lst, val):
        lst.append(WAIT(vm=0)); lst.append(I("v_mov_b32", hVal, val)); lst.append(I("ds_write_b32", hSYw, hVal))
    STAMP(h01, 0)
    e(I("s_cmp_eq_u32", sLW, 0)); e(I("s_cbranch_scc0", L("f1")))
    fs = [[], [LABEL(L("f1")), I("s_barrier")] + ([I("s_sleep", h1d)] if h1d else [])]
    for lw in range(2):
        f_ = fs[lw]
        for c in range(lw, 9, 2):
            if c >= 4: poll(f_, f"hw{c}", hP, F_DONEF, 4, 4 * c - 12, sleep=fsl)
            for s_ in (2 * c - 1, 2 * c):
                if 0 <= s_ < 16: w_issue(f_, s_)
            if 2 <= c < 8:
                if tail == 2: STAMP(f_, c >> 1, True)
                if tail == 3 and c in (4, 5): STAMP(f_, 1, True)
                poll(f_, f"hx{c}", hP, F_DONEF, 4, 4 * c - 7, sleep=fsl)
                if tail == 3 and c in (4, 5): STAMP(f_, 2, True)
                if tail == 3 and c in (6, 7): STAMP(f_, 5, True)
            if c < 8: x_issue(f_, c)
            if c == 0: f_.append(I("s_barrier"))
            if c == 7 and kvearly:
                f_.append(I("v_mov_b32", hVal, 1)); f_.append(I("ds_write_b32", vSY, hVal, mods=f"offset:{F_FISS}"))
            if tail == 3 and c in (4, 5): STAMP(f_, 3, True)
            pub(f_, c + 1)
            if tail == 3 and c in (4, 5): STAMP(f_, 4, True)
        if lw == 0: f_.append(I("s_branch", L("f2")))
    h01a = h01
    h01 = [LABEL(L("f2"))]; e = h01.append
    STAMP(h01, 1)
    if "fonly" in exp:
        STAMP_OUT(h01, hT0, hT1); e(I("s_endpgm"))
    tail_srds(e)
    hK, hV = V(2), V(3)
    hNEG = V(20, 4); hS = [V(24, 4), V(28, 4)]; hL = V(32, 4)
    hO = [V(36 + 4 * T, 4) for T in range(8)]
    hQ = [V(68 + 4 * kk, 4) for kk in range(4)]
    hKF = [[V(84 + (sb * 4 + kk) * 4, 4) for kk in range(4)] for sb in range(2)]
    hVF = [V(116 + 4 * T, 4) for T in range(8)]
    hONES = V(148, 4)
    lane_kv(h01, hK, hV, hT0)
    e(I("s_mul_i32", sT0, sLW, 8 * BLK)); e(I("v_add_u32", hK, sT0, hK))
    e(I("s_add_u32", sT0, sT0, TILE)); e(I("v_add_u32", hV, sT0, hV))
    for T in range(8):
        for r in range(4): e(I("v_mov_b32", hO[T][r], 0))
    for r in range(4):
        e(I("v_mov_b32", hL[r], 0)); e(I("v_mov_b32", hNEG[r], "0x7f000000")); e(I("v_mov_b32", hONES[r], 0x3F803F80))
    e(I("s_lshl_b32", sT0, sLW, 2)); e(I("s_add_u32", sT0, sT0, SY + F_DONEKV + 16)); e(I("v_mov_b32", hSYw, sT0))
    poll(h01, "hq13", hP, F_DONEF, 4, 1001, sleep=slp)
    STAMP(h01, 3)
    e(I("v_lshlrev_b32", hT0, 4, vLane)); e(I("v_add_u32", hT0, Q13X, hT0))
    for kk in range(4): e(I("ds_read_b128", hQ[kk], hT0, mods=f"offset:{kk*1024}"))
    e(I("s_mov_b32", sNEED, 2)); e(I("s_mov_b32", sKSL, 0))
    e(LABEL(L("h_loop")))
    hb = []; e = hb.append
    poll(hb, "hkv", hP, F_RDYKV, 2, sNEED, sleep=slp)
    for sb in range(2):
        for kk in range(4): e(I("ds_read_b128", hKF[sb][kk], hK, mods=f"offset:{sb*512 + kk*64}"))
    for T in range(8):
        for hh in range(2): e(I("ds_read_b64_tr_b16", hVF[T].sub(2 * hh, 2), hV, mods=f"offset:{hh*512 + T*32}"))
    e(I("v_mov_b32", hVal, sNEED)); e(I("ds_write_b32", hSYw, hVal))
    for sb in range(2):
        for kk in range(4):
            e(I(MFMA, hS[sb], hKF[sb][kk], hQ[kk], hNEG if kk == 0 else hS[sb]))
    e(I("s_add_u32", sKSL, sKSL, 2)); e(I("s_cmp_ge_u32", sKSL, NSLOT))
    e(I("s_cselect_b32", sKD, (2 - NSLOT) * TILE, sC2T)); e(I("s_cselect_b32", sT0, NSLOT, 0)); e(I("s_sub_u32", sKSL, sKSL, sT0))
    e(I("s_add_u32", sT0, sKSL, 1)); e(I("s_cmp_ge_u32", sT0, NSLOT)); e(I("s_cselect_b32", sT0, 0, sT0))
    e(I("s_cmp_lt_u32", sT0, 2)); e(I("s_cselect_b32", sVD, (2 - NSLOT) * TILE, sC2T))
    def hsoft(lst):
        a = lst.append
        for sb in range(2):
            for r in range(4): a(I("v_exp_f32", hS[sb][r], hS[sb][r]))
        x, y = hS
        a(I("v_cvt_pk_bf16_f32", x[0], x[0], x[1])); a(I("v_cvt_pk_bf16_f32", x[1], x[2], x[3]))
        a(I("v_cvt_pk_bf16_f32", x[2], y[0], y[1])); a(I("v_cvt_pk_bf16_f32", x[3], y[2], y[3]))
    hsoft(hb)
    e(I("v_or3_b32", hT0, hS[0][0], hS[0][1], hS[0][2])); e(I("v_or_b32", hT0, hT0, hS[0][3]))
    e(I("v_and_b32", hT0, 0x40004000, hT0))
    e(I("v_cmp_ne_u32", VCC, 0, hT0))
    if "norare" not in exp: e(I("s_cbranch_vccnz", L("h_rare")))
    e(LABEL(L("h_ret")))
    e(I(MFMA, hL, hONES, hS[0], hL))
    for T in range(8): e(I(MFMA, hO[T], hVF[T], hS[0], hO[T]))
    e(I("v_add_u32", hK, sKD, hK)); e(I("v_add_u32", hV, sVD, hV))
    e(I("s_add_u32", sNEED, sNEED, 2)); e(I("s_cmp_le_u32", sNEED, 16))
    e(I("s_cbranch_scc1", L("h_loop")))
    hf = []; e = hf.append
    STAMP(hf, 4); TSTAMP(hf, 1)
    e(I("v_lshlrev_b32", hT0, 4, vLane))
    e(I("s_cmp_eq_u32", sLW, 0)); e(I("s_cbranch_scc0", L("hf1")))
    e(I("v_add_u32", hT1, HXA, hT0))
    for x in range(4): e(I("ds_write_b128", hT1, hO[4 + x], mods=f"offset:{x*1024}"))
    e(I("v_add_u32", hT1, Q13X, hT0))
    e(I("s_branch", L("hf2")))
    hf1 = []; e = hf1.append
    e(LABEL(L("hf1")))
    e(I("v_add_u32", hT1, Q13X, hT0))
    for x in range(4): e(I("ds_write_b128", hT1, hO[x], mods=f"offset:{x*1024}"))
    for x in range(4):
        for r in range(4): e(I("v_mov_b32", hO[x][r], hO[4 + x][r]))
    e(I("v_add_u32", hT1, HXA, hT0))
    hf2 = []; e = hf2.append
    e(LABEL(L("hf2")))
    e(I("v_lshlrev_b32", hT2, 3, vLane))
    e(I("s_lshl_b32", sT0, sLW, 9)); e(I("s_add_u32", sT0, sT0, HML))
    e(I("v_add_u32", hT3, sT0, hT2))
    e(I("v_mov_b32", hNEG[1], hL[0]))
    e(I("ds_write_b64", hT3, hNEG.sub(0, 2)))
    e(I("s_lshl_b32", sT0, sLW, 2)); e(I("s_add_u32", sT0, sT0, SY + F_HFIN)); e(I("v_mov_b32", hSYw, sT0))
    e(I("v_mov_b32", hVal, 1)); e(I("ds_write_b32", hSYw, hVal))
    poll(hf2, "hfin", hP, F_HFIN, 2, 1, sleep=0)
    ML = V(68, 2)
    PO = [V(84 + x * 4, 4) for x in range(4)]
    e(I("s_xor_b32", sT0, sLW, 1)); e(I("s_lshl_b32", sT0, sT0, 9)); e(I("s_add_u32", sT0, sT0, HML))
    e(I("v_add_u32", hT2, sT0, hT2))
    e(I("ds_read_b64", ML, hT2))
    for x in range(4): e(I("ds_read_b128", PO[x], hT1, mods=f"offset:{x*1024}"))
    e(I("v_min_f32", hT2, ML[0], hNEG[0]))
    e(I("v_sub_f32", ML[0], hT2, ML[0])); e(I("v_exp_f32", ML[0], ML[0]))
    e(I("v_sub_f32", hNEG[0], hT2, hNEG[0])); e(I("v_exp_f32", hNEG[0], hNEG[0]))
    e(I("v_mul_f32", hT3, ML[0], ML[1])); e(I("v_fmac_f32", hT3, hNEG[0], hNEG[1]))
    e(I("v_rcp_f32", hT3, hT3))
    e(I("v_mul_f32", ML[0], ML[0], hT3)); e(I("v_mul_f32", hNEG[0], hNEG[0], hT3))
    for x in range(4):
        for r in range(4):
            e(I("v_mul_f32", hO[x][r], hO[x][r], hNEG[0]))
            e(I("v_fmac_f32", hO[x][r], PO[x][r], ML[0]))
    e(I("s_lshl_b32", sT0, sLW, 11)); e(I("s_lshl_b32", sT1, sNG, 12)); e(I("s_add_u32", sT0, sT0, sT1)); e(I("s_add_u32", sT0, sT0, 12 * 131072))
    for j in range(2):
        X, Y = hO[2 * j], hO[2 * j + 1]
        e(I("v_cvt_pk_bf16_f32", X[0], X[0], X[1])); e(I("v_cvt_pk_bf16_f32", X[1], X[2], X[3]))
        e(I("v_cvt_pk_bf16_f32", X[2], Y[0], Y[1])); e(I("v_cvt_pk_bf16_f32", X[3], Y[2], Y[3]))
        e(I("buffer_store_dwordx4", X, hT0, sOa, sT0, mods=f"offen offset:{j*1024} sc1"))
    e(I("s_lshl_b32", sT0, sNG, 2)); e(I("s_add_u32", sT2, sT0, sL1))
    arrive(hf2, "h1", hT0, hT1, F_CNT1, 6, sT2)
    TSTAMP(hf2, 2)
    e(I("s_cmp_eq_u32", sLW, 1)); e(I("s_cbranch_scc0", L("h_p3")))
    poll(hf2, "wn1", hT2, F_NONCE, 1, 1)
    e(I("s_add_u32", sT0, sNG, 1))
    e(I("v_add_u32", hT1, sT0, vLane)); e(I("v_and_b32", hT1, 7, hT1)); e(I("v_lshlrev_b32", hT1, 2, hT1)); e(I("v_add_u32", hT1, sL1, hT1))
    e(I("s_mov_b64", EXEC, 127))
    e(LABEL(L("w1")))
    e(I("buffer_load_dword", hT0, hT1, sFL, 0, mods="offen sc1")); e(WAIT(vm=0))
    e(I("v_cmp_ne_u32", VCC, hT0, hT2))
    e(I("s_nop", 2)); e(I("s_or_b32", sT0, "vcc_lo", 0x80)); e(I("s_ff1_i32_b32", sT0, sT0))
    e(I("v_mov_b32", hT0, sT0)); e(I("ds_write_b32", vSY, hT0, mods=f"offset:{F_RDYO}"))
    e(I("s_cmp_eq_u32", sT0, 7)); e(I("s_cbranch_scc1", L("w1ok")))
    hf2.extend(spin_tail(L("w1"), 2))
    e(LABEL(L("w1ok")))
    e(I("s_mov_b64", EXEC, -1))
    e(I("s_branch", L("h_p3")))
    hr = []; e = hr.append
    e(LABEL(L("h_rare")))
    e(I("s_nop", 15))
    for sb in range(2):
        for kk in range(4):
            e(I(MFMA, hS[sb], hKF[sb][kk], hQ[kk], 0 if kk == 0 else hS[sb]))
    x, y = hS
    e(I("v_max3_f32", hT0, x[0], x[1], x[2])); e(I("v_max3_f32", hT0, hT0, x[3], y[0]))
    e(I("v_max3_f32", hT0, hT0, y[1], y[2])); e(I("v_max_f32", hT0, hT0, y[3]))
    xlane_max(hr, hT0, hT1, hT2)
    e(I("v_add_f32", hT0, "0x40e00000", hT0))
    e(I("v_max_f32_e64", hT0, hT0, "-" + str(hNEG[0])))
    e(I("v_sub_f32_e64", hT1, "-" + str(hNEG[0]), hT0))
    e(I("v_exp_f32", hT1, hT1))
    for r in range(4): e(I("v_sub_f32", hNEG[r], 0, hT0))
    for T in range(8):
        for r in range(4): e(I("v_mul_f32", hO[T][r], hO[T][r], hT1))
    for r in range(4): e(I("v_mul_f32", hL[r], hL[r], hT1))
    for sb in range(2):
        for r in range(4): e(I("v_add_f32", hS[sb][r], hS[sb][r], hNEG[0]))
    hsoft(hr)
    e(I("s_nop", 3))
    e(I("s_branch", L("h_ret")))
    h23 = []; e = h23.append
    sK, sV = sA, sBd
    hG, hD, hDst = V(20), V(21), V(22)
    RB = [V(24 + 32 * b, 32) for b in range(6)] + [A(0, 32)]
    NRB = 7
    e(LABEL(L("h23")))
    e(I("v_lshlrev_b32", hG, 4, vLane)); e(I("s_lshl_b32", sT0, sLW, 13)); e(I("v_add_u32", hG, sT0, hG))
    e(I("s_lshl_b32", sT0, sB, 5)); e(I("s_add_u32", sT0, sT0, sH)); e(I("s_lshl_b32", sT0, sT0, 17))
    e(WAIT(lgkm=0))
    srd(e, sK, pK, sT0, 131072); srd(e, sV, pV, sT0, 131072)
    def Lq(i):
        if i >= 16: return
        if i >= 2: e(WAIT(vm=kvwin))
        for hf_ in range(2):
            e(I("s_mov_b32", sSO, (i >> 1) * 16384 + hf_ * 4096 + (OOB if "nokv" in exp else 0)))
            for m in range(4):
                e(I("buffer_load_dwordx4", RB[i % NRB].sub((hf_ * 4 + m) * 4, 4), hG, sV if i & 1 else sK, sSO,
                    mods=mods(f"offen offset:{m*1024}", kv_mods)))
    def Wr(i):
        if i == 2: poll(h23, "fwq", hP, F_DONEF, 4, 1000)
        if i >= 9: poll(h23, f"fwk{i}", hP, F_DONEKV, 6, i - 8, sleep=slp)
        e(I("v_add_u32", hDst, (i % NSLOT) * TILE, hD))
        for m in range(8):
            e(I("ds_write_b128", hDst, RB[i % NRB].sub(m * 4, 4), mods=f"offset:{(m & 1) * 4 * BLK + (m >> 1) * 256}"))
        e(I("v_mov_b32", hVal, i + 1)); e(I("ds_write_b32", hSYw, hVal))
    STAMP(h23, 0)
    e(I("s_barrier"))
    if "fonly" in exp: e(I("s_endpgm"))
    if kvlate: e(I("s_sleep", kvlate))
    for i in range(kvpre): Lq(i)
    e(I("v_and_b32", hT0, 15, vLane)); e(I("v_lshlrev_b32", hT0, 4, hT0))
    e(I("v_lshrrev_b32", hT1, 4, vLane)); e(I("v_mul_u32_u24", hT1, BLK, hT1)); e(I("v_add_u32", hD, hT0, hT1))
    e(I("s_mul_i32", sT0, sLW, 8 * BLK)); e(I("v_add_u32", hD, sT0, hD))
    e(I("s_lshl_b32", sT0, sLW, 2)); e(I("s_add_u32", sT0, sT0, SY + F_RDYKV)); e(I("v_mov_b32", hSYw, sT0))
    tail_srds(e)
    e(I("s_lshl_b32", sT0, sKG, 20)); e(I("s_lshl_b32", sT1, sNG, 7)); e(I("s_add_u32", sT0, sT0, sT1))
    srd(e, sWO, pWO, sT0, (4194304, sT0))
    srd(e, sCN, pDBG, 0, 256)
    for i in range(kvpre): Wr(i)
    STAMP(h23, 1)
    if kvearly: poll(h23, "kvres", hP, F_FISS, 1, 1, sleep=2)
    else: poll(h23, "kvres", hP, F_RDYF, 2, kvres, sleep=2)
    STAMP(h23, 2)
    for i in range(kvpre, kvpre + 7):
        Lq(i)
        if kvpre == 0 and i in (2, 3): Wr(i - 2)
    if kvpre == 0: Lq(7); Lq(8)
    for i in range(2, 16):
        Wr(i); Lq(i + 7)
    e(I("s_cmp_eq_u32", sLW, 1)); e(I("s_cbranch_scc0", L("nononce")))
    e(I("s_memrealtime", S(4, 2))); e(WAIT(lgkm=0))
    e(I("s_or_b32", sT0, S(4), 1))
    e(I("s_mov_b64", EXEC, 1))
    e(I("v_mov_b32", hP[0], sT0)); e(I("v_mov_b32", hP[1], 0)); e(I("v_mov_b32", hT0, 0))
    e(I("buffer_atomic_cmpswap", hP.sub(0, 2), hT0, sCN, 0, mods="offen sc0 sc1")); e(WAIT(vm=0))
    e(I("v_mov_b32", hT1, sT0))
    e(I("v_cmp_eq_u32", VCC, 0, hP[0]))
    e(I("v_cndmask_b32", hP[0], hP[0], hT1))
    e(I("ds_write_b32", vSY, hP[0], mods=f"offset:{F_NONCE}"))
    e(I("s_mov_b64", EXEC, -1))
    e(LABEL(L("nononce")))
    STAMP(h23, 3); TSTAMP(h23, 1)
    vW = [V(24 + b) for b in range(4)]
    e(I("v_and_b32", hT0, 7, vLane)); e(I("v_lshlrev_b32", hT0, 4, hT0))
    e(I("v_bfe_u32", hT1, vLane, 3, 1)); e(I("v_lshl_add_u32", hT0, hT1, 10, hT0))
    e(I("v_lshrrev_b32", hT1, 4, vLane)); e(I("v_lshl_add_u32", vW[0], hT1, 13, hT0))
    for b in range(1, 4): e(I("v_add_u32", vW[b], b * 992, vW[0]))
    e(I("s_lshl_b32", sT0, sLW, 2)); e(I("s_add_u32", sT0, sT0, SY + F_RDYWO)); e(I("v_mov_b32", hSYw, sT0))
    for i in range(4):
        e(I("s_cmp_eq_u32", sLW, 0))
        e(I("s_cselect_b32", sNEED, WNEED[2 * i], WNEED[2 * i + 1]))
        e(I("s_cselect_b32", sT2, WSLOT[2 * i], WSLOT[2 * i + 1])); e(I("s_mul_i32", sM0, sT2, TILE))
        if i:
            e(WAIT(vm=0)); e(I("v_mov_b32", hVal, i)); e(I("ds_write_b32", hSYw, hVal))
        poll(h23, f"wf{i}", hP, F_DONEKV, 6, sNEED, sleep=slp if i < 3 else 1)
        e(I("s_add_u32", sT1, sNG, sLW)); e(I("s_add_u32", sT1, sT1, 2 * i)); e(I("s_and_b32", sT1, sT1, 7)); e(I("s_lshl_b32", sT1, sT1, 17))
        for kk in range(4):
            e(I("s_add_u32", M0, sM0, kk * 4 * BLK))
            e(I("s_add_u32", sSO, sT1, kk * 32768))
            for b in range(4):
                e(I("buffer_load_dwordx4", vW[b], sWO, sSO, mods=mods(f"offen offset:{b*BLK}", wo_mods, "lds")))
        if i == 0 and touch:
            for i2 in range(1, 4):
                e(I("s_add_u32", sT1, sNG, sLW)); e(I("s_add_u32", sT1, sT1, 2 * i2)); e(I("s_and_b32", sT1, sT1, 7)); e(I("s_lshl_b32", sT1, sT1, 17))
                for kk in range(4):
                    e(I("s_add_u32", sSO, sT1, kk * 32768))
                    for b in range(4):
                        e(I("buffer_load_dwordx4", V(32 + ((i2 - 1) * 16 + kk * 4 + b) % 40 * 4, 4), vW[b], sWO, sSO, mods=f"offen offset:{b*BLK}"))
            e(WAIT(vm=48)); e(I("v_mov_b32", hVal, 1)); e(I("ds_write_b32", hSYw, hVal))
    e(WAIT(vm=0)); e(I("v_mov_b32", hVal, 4)); e(I("ds_write_b32", hSYw, hVal))
    STAMP(h23, 4); TSTAMP(h23, 2)
    h3 = []; e = h3.append
    e(LABEL(L("h_p3")))
    hWr, hOo, hF = V(2), V(3), V(8)
    hACC = [V(24 + 4 * T, 4) for T in range(4)]
    hOF = [[V(40 + (x * 4 + kk) * 4, 4) for kk in range(4)] for x in range(2)]
    hWF = [V(72 + 4 * i, 4) for i in range(16)]
    wo_rd_addr(e, hWr, hT0, hT1)
    e(I("v_lshlrev_b32", hOo, 4, vLane))
    for x in range(2):
        e(I("s_lshl_b32", sT0, sHW, 1)); e(I("s_add_u32", sT0, sT0, x))
        if x == 0: poll(h3, "hown", hF, F_CNT1, 1, 6)
        poll(h3, f"ho{x}", hF, F_RDYO, 1, sT0)
        if x == 0: STAMP(h3, 5); TSTAMP(h3, 3)
        e(I("s_add_u32", sT1, sNG, sT0)); e(I("s_and_b32", sT1, sT1, 7))
        e(I("s_lshl_b32", sT1, sT1, 12)); e(I("s_add_u32", sSO, sT1, 12 * 131072))
        for kk in range(4):
            e(I("buffer_load_dwordx4", hOF[x][kk], hOo, sOa, sSO, mods=f"offen offset:{kk*1024}"))
    for x in range(2):
        e(I("s_add_u32", sT2, sHW, 1))
        poll(h3, f"hwo{x}", hF, F_RDYWO + 4 * x, 1, sT2)
        e(I("s_lshl_b32", sT0, sHW, 1)); e(I("s_add_u32", sT0, sT0, x + 7))
        e(I("s_cmp_ge_u32", sT0, 9)); e(I("s_cselect_b32", sT1, 9, 0)); e(I("s_sub_u32", sT0, sT0, sT1))
        e(I("s_mul_i32", sT0, sT0, TILE)); e(I("v_add_u32", hT0, sT0, hWr))
        for kk in range(4):
            for T in range(4):
                for hh in range(2):
                    e(I("ds_read_b64_tr_b16", hWF[kk * 4 + T].sub(2 * hh, 2), hT0, mods=f"offset:{kk*4*BLK + T*32 + hh*512}"))
        for kk in range(4):
            for T in range(4):
                e(I(MFMA, hACC[T], hWF[kk * 4 + T], hOF[x][kk], 0 if (x == 0 and kk == 0) else hACC[T]))
    e(I("s_lshl_b32", sT0, sHW, 12)); e(I("s_add_u32", sT0, sT0, RED)); e(I("v_add_u32", hT0, sT0, hOo))
    for T in range(4): e(I("ds_write_b128", hT0, hACC[T], mods=f"offset:{T*1024}"))
    e(I("v_mov_b32", hT1, 1)); e(I("s_mov_b64", EXEC, 1))
    e(I("ds_add_u32", vSY, hT1, mods=f"offset:{F_CNT3}")); e(I("s_mov_b64", EXEC, -1))
    poll(h3, "hred", hF, F_CNT3, 1, 4, sleep=0)
    e(I("s_lshl_b32", sT0, sHW, 10)); e(I("s_add_u32", sT0, sT0, RED)); e(I("v_add_u32", hT0, sT0, hOo))
    for s in range(4): e(I("ds_read_b128", hWF[s], hT0, mods=f"offset:{s*4096}"))
    for r in range(4):
        e(I("v_add_f32", hWF[0][r], hWF[0][r], hWF[1][r])); e(I("v_add_f32", hWF[2][r], hWF[2][r], hWF[3][r]))
    for r in range(4): e(I("v_add_f32", hWF[0][r], hWF[0][r], hWF[2][r]))
    e(I("s_mul_i32", sT0, sKG, 53248)); e(I("s_lshl_b32", sT1, sHW, 10)); e(I("s_add_u32", sT0, sT0, sT1)); e(I("s_add_u32", sT0, sT0, 49152))
    e(I("buffer_store_dwordx4", hWF[0], hOo, sP, sT0, mods="offen sc1"))
    e(I("s_lshl_b32", sT0, sKG, 2)); e(I("s_add_u32", sT2, sT0, sL2))
    TSTAMP(h3, 4)
    arrive(h3, "h2", hT0, hT1, F_CNT2, 8, sT2)
    TSTAMP(h3, 5)
    e(I("s_cmp_eq_u32", sHW, 3)); e(I("s_cbranch_scc0", L("nowatch")))
    poll(h3, "wn2", hT2, F_NONCE, 1, 1)
    e(I("v_lshlrev_b32", hT1, 2, vLane)); e(I("v_add_u32", hT1, sL2, hT1))
    e(I("s_mov_b64", EXEC, 15))
    e(LABEL(L("w2")))
    e(I("buffer_load_dword", hT0, hT1, sFL, 0, mods="offen sc1")); e(WAIT(vm=0))
    e(I("v_cmp_ne_u32", VCC, hT0, hT2))
    e(I("s_cbranch_vccz", L("w2ok")))
    h3.extend(spin_tail(L("w2"), 2))
    e(LABEL(L("w2ok")))
    e(I("s_mov_b64", EXEC, -1))
    e(I("v_mov_b32", hT0, 1)); e(I("ds_write_b32", vSY, hT0, mods=f"offset:{F_GO}"))
    e(LABEL(L("nowatch")))
    final_part(h3, "h", hT0, hT1, V(72, 32))
    fin = [LABEL(L("end")), I("s_endpgm")]

    paths = [pre + cq + cqb + cqb + cv + body + body + ce1 + ceA + ce, body + ce1 + ceB + ce,
             rare[0], rare[1],
             pre + hp + h01a + fs[0] + h01 + hb + hb + hf + hf2 + h3, h01a + fs[1] + h01,
             hb + hf[:3] + hf1 + hf2,
             pre + hp + h23 + h3,
             hb + hr] + spins
    apply_waits(paths)
    apply_hazards(paths)
    order = [pre, cq, cqb, cv, body, ce1, ceA, ceB, ce, hp, h01a, fs[0], fs[1], h01, hb, hf, hf1, hf2, h23, h3, fin, hr, rare[0], rare[1]] + spins
    txt = "\n".join(render(x) for x in order)
    return txt, dict(vgpr=256, sgpr=102, accum=216)
```

```python
from ir import *
import struct

def f32bits(x): return struct.unpack("<I", struct.pack("<f", x))[0]
CSCALE = (128 ** -0.5) * 1.4426950408889634
BLK = 1056
TILE = 16 * BLK
NSLOT = 9
XB0 = 2 * TILE
XBSZ = 26 * BLK
WQ_BASE = XB0 + 2 * XBSZ
WQ_CH = 8 * BLK
SY = WQ_BASE + 8 * WQ_CH
Q13X = SY + 256
HML = Q13X + 4096
HXA = 9 * TILE
RED = 6 * TILE
KF_LDS = 163840
OOB = 0x40000000
MFMA = "v_mfma_f32_16x16x32_bf16"
WSLOT = [7, 8, 0, 1, 2, 3, 4, 5]
WNEED = [8, 10, 10, 12, 12, 14, 14, 16]
P_OFF = 0x1000000
FL_OFF = 0x2000000
F_RDYF, F_RDYKV, F_DONEF, F_DONEKV, F_HFIN = 0, 8, 16, 32, 64
F_RDYWO, F_CNT1, F_CNT2, F_CNT3, F_GO, F_RDYO, F_NONCE, F_FISS = 80, 96, 100, 104, 108, 112, 116, 120

sA, sBd, sOa, sP, sOUT = S(8, 4), S(12, 4), S(16, 4), S(20, 4), S(24, 4)
sWO, sCN, sFL = S(64, 4), S(68, 4), S(72, 4)
pX, pK, pV, pWQ, pWO, pOUT, pDBG, pWS = [S(28 + 2 * i, 2) for i in range(8)]
sW, sB, sH, sT0, sT1, sT2, sT3 = [S(44 + i) for i in range(7)]
sCNT, sNEED, sNEED2, sKSL, sVSL, sKD, sVD = [S(51 + i) for i in range(7)]
sC2 = S(58, 2)
sHW, sM0, sSO, sTI = S(60), S(61), S(62), S(63)
sLW, sC2T, sROT, sDN, sBUD, sNG, sKG, sL1, sL2 = [S(76 + i) for i in range(9)]
sRT, sCY = 86, 94
vSY, vLane = V(0), V(1)

def sched(mfmas, fixed, flex, cap=2.0):
    out = []; qs = [list(q) for q in flex]
    placed = set()
    def ready(item, g):
        if item[2] > g: return False
        if len(item) > 3 and any(id(d) not in placed for d in item[3]): return False
        return True
    for g, m in enumerate(mfmas):
        out.append(m)
        room = cap
        for ins, cost in fixed.get(g, []):
            out.append(ins); room -= cost; placed.add(id(ins))
        progress = True
        while progress:
            progress = False
            for q in qs:
                if q and ready(q[0], g) and q[0][1] <= room + 1e-9:
                    it = q.pop(0); out.append(it[0]); room -= it[1]; placed.add(id(it[0])); progress = True
                    break
    while any(qs):
        for q in qs:
            if q and ready(q[0], 10 ** 6):
                it = q.pop(0); out.append(it[0]); placed.add(id(it[0])); break
        else:
            raise RuntimeError("unschedulable")
    return out

def xlane_max(lst, x, t0, t1):
    a = lst.append
    a(I("v_mov_b32", t0, x)); a(I("v_mov_b32", t1, x))
    a(I("v_permlane32_swap_b32", t0, t1))
    a(I("v_max_f32", x, t0, t1))
    a(I("v_mov_b32", t0, x)); a(I("v_mov_b32", t1, x))
    a(I("v_permlane16_swap_b32", t0, t1))
    a(I("v_max_f32", x, t0, t1))

def mods(*m): return " ".join(x for x in m if x)

def gen_kf(name, stamps=False, kv_mods="nt", exp=(), f_mods="", wo_mods="", kvwin=16, kvres=8, NB=18, kvpre=0, tail=0, prio=2, slp=4, touch=1, kvlate=0, eq=8, h1d=0, kvearly=1, fsl=1, tsl=0, out_mods=""):
    L = lambda s: f"L_{name}_{s}"
    spins = []
    ce = None
    def TSTAMP(lst, i):
        if tail == 1: STAMP(lst, i, True)
    def STAMP(lst, i, force=False):
        if tail and not force and 0 < i < (6 if tail == 1 else 7): return
        if stamps:
            lst.append(I("s_memrealtime", S(4, 2))); lst.append(I("s_memtime", S(6, 2))); lst.append(WAIT(lgkm=0))
            lst.append(I("s_mov_b32", S(sRT + i), S(4))); lst.append(I("s_mov_b32", S(sCY + i), S(6)))
    def STAMP_OUT(lst, vt, vd):
        if not stamps: return
        a = lst.append
        a(WAIT(vm=0)); STAMP(lst, 7)
        if "xcc" in exp:
            a(RAW(f"    s_getreg_b32 s{sCY+1}, hwreg(HW_REG_XCC_ID)")); a(RAW(f"    s_getreg_b32 s{sCY+2}, hwreg(HW_REG_HW_ID)"))
        a(I("s_add_u32", sA[0], pWS[0], 0x4000000)); a(I("s_addc_u32", sA[1], pWS[1], 0))
        a(I("s_mov_b32", sA[2], 0x100000)); a(I("s_mov_b32", sA[3], 0x20000))
        a(I("s_lshl_b32", sT0, S(2), 3)); a(I("s_add_u32", sT0, sT0, sW)); a(I("s_lshl_b32", sT0, sT0, 6))
        a(I("v_mov_b32", vt, 0))
        for i in range(8):
            a(I("v_mov_b32", vd, S(sRT + i))); a(I("buffer_store_dword", vd, vt, sA, sT0, mods=f"offen offset:{4*i}")); a(I("s_nop", 1))
            a(I("v_mov_b32", vd, S(sCY + i))); a(I("buffer_store_dword", vd, vt, sA, sT0, mods=f"offen offset:{32+4*i}")); a(I("s_nop", 1))
        a(WAIT(vm=0))
    def srd(e, d, ptr, off, size):
        e(I("s_add_u32", d[0], ptr[0], off)); e(I("s_addc_u32", d[1], ptr[1], 0))
        if isinstance(size, tuple): e(I("s_sub_u32", d[2], size[0], size[1]))
        else: e(I("s_mov_b32", d[2], size))
        e(I("s_mov_b32", d[3], 0x20000))
    def spin_tail(site_label, sleep):
        r = [I("s_sleep", sleep)] if sleep else []
        return r + [I("s_sub_u32", sBUD, sBUD, 1), I("s_cbranch_scc0", site_label), I("s_endpgm")]
    def check2(site, vF, off, need):
        early = I("ds_read_b64", vF, vSY, mods=f"offset:{off}")
        chk = [I("v_min_u32", vF[0], vF[0], vF[1]), I("v_cmp_gt_u32", VCC, need, vF[0]),
               I("s_cbranch_vccnz", L("spin_" + site)), LABEL(L("ret_" + site))]
        if "nosync" in exp: return early, chk[:2]
        spins.append([LABEL(L("spin_" + site)), I("ds_read_b64", vF, vSY, mods=f"offset:{off}"), WAIT(lgkm=0),
                      I("v_min_u32", vF[0], vF[0], vF[1]), I("v_cmp_gt_u32", VCC, need, vF[0]),
                      I("s_cbranch_vccz", L("ret_" + site))] + spin_tail(L("spin_" + site), 1))
        return early, chk
    def check1(site, vF, off, need):
        early = I("ds_read_b32", vF[0], vSY, mods=f"offset:{off}")
        chk = [I("v_cmp_gt_u32", VCC, need, vF[0]), I("s_cbranch_vccnz", L("spin_" + site)), LABEL(L("ret_" + site))]
        if "nosync" in exp: return early, chk[:1]
        spins.append([LABEL(L("spin_" + site)), I("ds_read_b32", vF[0], vSY, mods=f"offset:{off}"), WAIT(lgkm=0),
                      I("v_cmp_gt_u32", VCC, need, vF[0]),
                      I("s_cbranch_vccz", L("ret_" + site))] + spin_tail(L("spin_" + site), 0))
        return early, chk
    def poll(lst, site, regs, off, nwords, need, sleep=1, addr=None):
        if "nosync" in exp: return
        a = lst.append
        ad = addr or vSY
        a(LABEL(L("poll_" + site)))
        op = {1: "ds_read_b32", 2: "ds_read_b64"}.get(nwords, "ds_read_b128")
        a(I(op, regs.sub(0, min(nwords, 4)), ad, mods=f"offset:{off}"))
        if nwords == 6: a(I("ds_read_b64", regs.sub(4, 2), ad, mods=f"offset:{off+16}"))
        a(WAIT(lgkm=0))
        if nwords == 2: a(I("v_min_u32", regs[0], regs[0], regs[1]))
        elif nwords >= 4:
            a(I("v_min3_u32", regs[0], regs[0], regs[1], regs[2]))
            if nwords == 4: a(I("v_min_u32", regs[0], regs[0], regs[3]))
            else:
                a(I("v_min3_u32", regs[0], regs[0], regs[3], regs[4])); a(I("v_min_u32", regs[0], regs[0], regs[5]))
        a(I("v_cmp_gt_u32", VCC, need, regs[0]))
        a(I("s_cbranch_vccz", L("pok_" + site)))
        lst.extend(spin_tail(L("poll_" + site), sleep))
        a(LABEL(L("pok_" + site)))
    def arrive(lst, site, t0, t1, off, total, word, vm=0):
        a = lst.append
        a(WAIT(vm=vm))
        a(I("v_mov_b32", t0, 1))
        a(I("s_mov_b64", EXEC, 1))
        a(I("ds_add_rtn_u32", t1, vSY, t0, mods=f"offset:{off}")); a(WAIT(lgkm=0))
        a(I("v_cmp_eq_u32", VCC, total - 1, t1))
        a(I("s_cbranch_vccz", L("arr_" + site)))
        poll(lst, "nonce" + site, t0, F_NONCE, 1, 1)
        a(I("v_mov_b32", t1, word))
        st = I("buffer_store_dword", t0, t1, sFL, 0, mods="offen sc1"); st.nocount = True
        a(st)
        a(LABEL(L("arr_" + site)))
        a(I("s_mov_b64", EXEC, -1))
    def tail_srds(e):
        e(I("s_mul_i32", sT0, sB, 13 * 131072)); e(I("s_lshl_b32", sT1, sKG, 15)); e(I("s_add_u32", sT0, sT0, sT1))
        srd(e, sOa, pWS, sT0, (13 * 131072, sT1))
        e(I("s_lshl_b32", sT0, sB, 3)); e(I("s_add_u32", sT0, sT0, sNG))
        e(I("s_lshl_b32", sL2, sT0, 7))
        e(I("s_mul_i32", sT0, sT0, 4 * 53248)); e(I("s_add_u32", sT0, sT0, P_OFF))
        srd(e, sP, pWS, sT0, 4 * 53248)
        e(I("s_mul_i32", sT0, sB, 212992)); e(I("s_lshl_b32", sT1, sNG, 7)); e(I("s_add_u32", sT0, sT0, sT1))
        srd(e, sOUT, pOUT, sT0, (1703936, sT0))
        srd(e, sFL, pWS, FL_OFF, 65536)
        e(I("s_lshl_b32", sT0, sB, 2)); e(I("s_add_u32", sT0, sT0, sKG)); e(I("s_add_u32", sT0, sT0, 64))
        e(I("s_lshl_b32", sL1, sT0, 7))
    def lane_kv(lst, vKl, vVl, t0):
        a = lst.append
        a(I("v_and_b32", t0, 7, vLane)); a(I("v_mul_u32_u24", vKl, BLK, t0))
        a(I("v_bfe_u32", t0, vLane, 3, 1)); a(I("v_lshl_add_u32", vKl, t0, 8, vKl))
        a(I("v_lshrrev_b32", t0, 4, vLane)); a(I("v_lshl_add_u32", vKl, t0, 4, vKl))
        a(I("v_bfe_u32", t0, vLane, 2, 3)); a(I("v_mul_u32_u24", vVl, BLK, t0))
        a(I("v_lshrrev_b32", t0, 5, vLane)); a(I("v_lshl_add_u32", vVl, t0, 8, vVl))
        a(I("v_and_b32", t0, 3, vLane)); a(I("v_lshl_add_u32", vVl, t0, 3, vVl))
    def wo_rd_addr(e, dst, t0, t1):
        e(I("v_and_b32", t0, 3, vLane)); e(I("v_lshlrev_b32", t0, 3, t0))
        e(I("v_bfe_u32", t1, vLane, 3, 2)); e(I("v_mul_u32_u24", t1, BLK, t1)); e(I("v_add_u32", t0, t0, t1))
        e(I("v_bfe_u32", t1, vLane, 2, 1)); e(I("v_lshl_add_u32", t0, t1, 7, t0))
        e(I("v_bfe_u32", t1, vLane, 5, 1)); e(I("v_lshl_add_u32", dst, t1, 8, t0))
    def final_part(lst, tag, vA, vB, R):
        e = lst.append
        e(I("v_lshlrev_b32", vA, 4, vLane))
        e(I("v_and_b32", vB, 15, vLane)); e(I("v_lshlrev_b32", vB, 10, vB))
        e(I("v_lshrrev_b32", R[0], 4, vLane)); e(I("v_lshl_add_u32", vB, R[0], 3, vB))
        e(I("s_mul_i32", sT0, sKG, 12)); e(I("s_add_u32", sT0, sT0, sW))
        e(I("s_lshl_b32", sT1, sT0, 10))
        e(I("s_add_u32", sT2, sT1, 8192))
        e(I("s_cmp_lt_u32", sW, 4)); e(I("s_cselect_b32", sT3, 1, 0)); e(I("s_cmp_eq_u32", sKG, 3)); e(I("s_cselect_b32", sT3, 1, sT3))
        e(I("s_cmp_eq_u32", sT3, 1)); e(I("s_cselect_b32", sT2, sT2, OOB))
        poll(lst, "go" + tag, R.sub(0, 1), F_GO, 1, 1)
        STAMP(lst, 6)
        for i, so in enumerate((sT1, sT2)):
            for s in range(4):
                e(I("s_add_u32", sSO, so, s * 53248))
                e(I("buffer_load_dwordx4", R.sub((i * 4 + s) * 4, 4), vA, sP, sSO, mods="offen sc1"))
        for i in range(2):
            B = lambda s, r: R[(i * 4 + s) * 4 + r]
            for r in range(4):
                e(I("v_add_f32", B(0, r), B(0, r), B(1, r))); e(I("v_add_f32", B(2, r), B(2, r), B(3, r)))
            for r in range(4): e(I("v_add_f32", B(0, r), B(0, r), B(2, r)))
            e(I("v_cvt_pk_bf16_f32", B(0, 0), B(0, 0), B(0, 1))); e(I("v_cvt_pk_bf16_f32", B(0, 1), B(0, 2), B(0, 3)))
            if i: e(I("s_add_u32", sT0, sT0, 8))
            e(I("s_lshr_b32", sT1, sT0, 2)); e(I("s_lshl_b32", sT1, sT1, 14)); e(I("s_and_b32", sSO, sT0, 3)); e(I("s_lshl_b32", sSO, sSO, 5))
            e(I("s_add_u32", sSO, sSO, sT1))
            if i:
                e(I("s_cmp_eq_u32", sT3, 1)); e(I("s_cselect_b32", sSO, sSO, OOB))
            e(I("buffer_store_dwordx2", R.sub(i * 16, 2), vB, sOUT, sSO, mods=mods("offen", out_mods)))
        STAMP_OUT(lst, vA, vB)
        e(I("s_endpgm"))

    pre = []; e = pre.append
    e(I("s_cmp_ge_u32", S(2), 256))
    e(I("s_cbranch_scc1", L("end")))
    e(I("s_load_dwordx16", S(28, 16), S(0, 2), 0))
    e(I("v_lshrrev_b32", V(2), 6, V(0)))
    e(I("v_and_b32", vLane, 63, V(0)))
    e(I("v_readfirstlane_b32", sW, V(2)))
    e(I("s_and_b32", sT0, S(2), 1)); e(I("s_lshl_b32", sT0, sT0, 2))
    e(I("s_lshr_b32", sT1, S(2), 6)); e(I("s_add_u32", sB, sT0, sT1))
    e(I("s_bfe_u32", sKG, S(2), (2 << 16) | 1)); e(I("s_lshl_b32", sT0, sKG, 3))
    e(I("s_bfe_u32", sNG, S(2), (3 << 16) | 3)); e(I("s_add_u32", sH, sT0, sNG))
    e(I("s_mov_b32", sC2T, 2 * TILE)); e(I("s_mov_b32", sBUD, 400000))
    e(I("s_lshl_b32", sROT, sT1, 1)); e(I("s_add_u32", sROT, sROT, sNG))
    if "norot" in exp: e(I("s_mov_b32", sROT, 0))
    e(I("v_lshlrev_b32", V(3), 2, vLane)); e(I("v_add_u32", V(3), SY, V(3))); e(I("v_mov_b32", V(4), 0))
    e(I("ds_write_b32", V(3), V(4)))
    e(I("v_mov_b32", vSY, SY))
    e(I("s_sub_u32", sHW, sW, 4)); e(I("s_and_b32", sLW, sW, 1))
    e(I("s_cmp_ge_u32", sW, 4))
    e(I("s_cbranch_scc1", L("helper")))

    vK, vV, vOr = V(2), V(3), V(4)
    vT0, vT1, vT2 = V(5), V(6), V(7)
    NEGM = [V(8 + 4 * t, 4) for t in range(3)]
    SB = [[[V(20 + ((e_ * 2 + sb) * 3 + t) * 4, 4) for t in range(3)] for sb in range(2)] for e_ in range(2)]
    vT3, vSYd, vF = V(68), V(69), V(70, 2)
    O = [[V(72 + (t * 8 + T) * 4, 4) for T in range(8)] for t in range(3)]
    Q = [[V(168 + (t * 4 + kk) * 4, 4) for kk in range(4)] for t in range(3)]
    LA_ = [A(4 * t, 4) for t in range(3)]
    ONES = A(12, 4)
    POOL = [A(16 + 4 * i, 4) for i in range(6)]
    XR = [[[V((20 if st == 0 else 168) + (h_ * 4 + t) * 4, 4) for t in range(4)] for h_ in range(2)] for st in range(2)]
    Q13A = [V(52, 4), V(56, 4)]
    W13 = [V(60, 4), V(64, 4)]
    WQF = [A(4 * T, 4) for T in range(8)]
    vXa = [V(8), V(9), V(10), V(11)]
    vWQ, vW13 = V(4), V(12)
    cq = []; e = cq.append
    if prio: e(I("s_setprio", prio))
    lane_kv(cq, vK, vV, vT0)
    e(I("v_lshrrev_b32", vT0, 5, vLane)); e(I("v_lshl_add_u32", vWQ, vT0, 8, vV))
    e(I("v_add_u32", vWQ, WQ_BASE, vWQ))
    e(I("s_lshl_b32", sT0, sW, 6)); e(I("v_add_u32", vW13, sT0, vWQ))
    e(I("v_and_b32", vT0, 3, vLane)); e(I("v_mul_u32_u24", vT0, BLK, vT0))
    e(I("v_bfe_u32", vT1, vLane, 2, 2)); e(I("v_lshl_add_u32", vT0, vT1, 7, vT0))
    e(I("v_lshrrev_b32", vT1, 4, vLane)); e(I("v_lshl_add_u32", vT0, vT1, 4, vT0))
    for t in range(3):
        e(I("s_mul_i32", sT0, sW, 3)); e(I("s_add_u32", sT0, sT0, t))
        e(I("s_lshr_b32", sT1, sT0, 1)); e(I("s_mul_i32", sT1, sT1, 4 * BLK))
        e(I("s_and_b32", sT0, sT0, 1)); e(I("s_lshl_b32", sT0, sT0, 9))
        e(I("s_add_u32", sT0, sT0, sT1)); e(I("s_add_u32", sT0, sT0, XB0))
        e(I("v_add_u32", vXa[t], sT0, vT0))
    e(I("v_and_b32", vT0, 1, vLane)); e(I("v_mul_u32_u24", vT0, BLK, vT0))
    e(I("v_bfe_u32", vT2, vLane, 1, 3)); e(I("v_lshl_add_u32", vT0, vT2, 7, vT0))
    e(I("v_lshl_add_u32", vT0, vT1, 4, vT0))
    e(I("v_add_u32", vXa[3], XB0 + 24 * BLK, vT0))
    e(I("s_lshl_b32", sT0, sW, 2)); e(I("s_add_u32", sT0, sT0, SY)); e(I("v_mov_b32", vSYd, sT0))
    e(I("s_mov_b32", sC2[0], f32bits(CSCALE))); e(I("s_mov_b32", sC2[1], f32bits(CSCALE)))
    e(WAIT(lgkm=0))
    STAMP(cq, 0)
    e(I("s_barrier"))
    if "fonly" in exp: e(I("s_endpgm"))
    for t in range(3):
        for T in range(8):
            for r in range(4): e(I("v_mov_b32", O[t][T][r], 0))
    for R in Q13A:
        for r in range(4): e(I("v_mov_b32", R[r], 0))
    tail_srds(e)
    def xreads(c, st):
        return [I("ds_read_b128", XR[st][h_][t], vXa[t], mods=f"offset:{(c & 1) * XBSZ + h_ * 64}") for h_ in range(2) for t in range(4)]
    def wqreads(s, T):
        return [I("ds_read_b64_tr_b16", WQF[T].sub(2 * hh, 2), vWQ, mods=f"offset:{(s & 7) * WQ_CH + hh * 256 + T * 32}") for hh in range(2)]
    def w13reads(s):
        return [I("ds_read_b64_tr_b16", W13[x].sub(2 * hh, 2), vW13, mods=f"offset:{(s & 7) * WQ_CH + hh * 256 + x * 32}")
                for x in range(2) for hh in range(2)]
    def done_write(off):
        return [I("v_mov_b32", vF[0], sDN), I("ds_write_b32", vSYd, vF[0], mods=f"offset:{off}")]
    poll(cq, "cq0", vF, F_RDYF, 1, 1, sleep=tsl)
    cq.extend(xreads(0, 0))
    LAQ = 4
    for T in range(LAQ): cq.extend(wqreads(0, T))
    e(I("s_mov_b32", sDN, 2)); cq.extend(done_write(F_DONEF))
    e(I("s_mov_b32", sNEED, 2))
    e(I("s_mov_b32", sCNT, 0))
    STAMP(cq, 1, tail in (4, 5))
    e(LABEL(L("cq_loop")))
    mf = []; fixed = {}
    def fx(g, ins, cost=1): fixed.setdefault(g, []).append((ins, cost))
    for s in range(8):
        st = (s >> 1) & 1; h_ = s & 1
        base = len(mf)
        if h_ == 0:
            early, chk = check1(f"cq{s}", vF, F_RDYF + 4 * (((s >> 1) + 1) & 1), sNEED)
            fx(base + eq, early)
        for i, r in enumerate(w13reads(s)): fx(base + 3 * i + 2, r)
        for T in range(8):
            g0 = len(mf)
            for t in range(3):
                mf.append(I(MFMA, O[t][T], WQF[T], XR[st][h_][t], O[t][T]))
            if T in (5, 6):
                mf.append(I(MFMA, Q13A[T - 5], W13[T - 5], XR[st][h_][3], Q13A[T - 5]))
            f = s * 8 + T + LAQ
            s2, T2 = f >> 3, f & 7
            if T2 == 0 and h_ == 0:
                for x in chk: fx(g0, x, 0.5 if x.cls == "valu" else 0)
                fx(g0, I("s_add_u32", sNEED, sNEED, 1), 0)
                if tail in (4, 5):
                    tmp = [I("s_cmp_eq_u32", sCNT, tail - 4), I("s_cbranch_scc0", L(f"sk{s}"))]
                    STAMP(tmp, 2 + (s >> 1), True); tmp.append(LABEL(L(f"sk{s}")))
                    for x in tmp: fx(g0, x, 0)
            if T2 == 0 and h_ == 1:
                fx(g0 - 1, I("s_add_u32", sDN, sDN, 1), 0)
                for x in done_write(F_DONEF): fx(g0, x, 0.5)
            rr = wqreads(s2, T2)
            fx(g0 + (1 if T2 == 0 else 0), rr[0]); fx(g0 + (2 if T2 == 0 else 1), rr[1])
            if h_ == 0 and T >= 4:
                xr = xreads((s >> 1) + 1, 1 - st)
                fx(g0 + 2, xr[2 * (T - 4)]); fx(g0 + 2, xr[2 * (T - 4) + 1])
                if T == 7:
                    fx(g0 + 2, I("s_add_u32", sDN, sDN, 3), 0)
                    for x in done_write(F_DONEF): fx(g0 + 2, x, 0.5)
    cqb = sched(mf, fixed, [])
    cv = []; e = cv.append
    e(I("s_mov_b32", sDN, 1000)); cv.extend(done_write(F_DONEF))
    STAMP(cv, 2)
    if tail in (4, 5): STAMP(cv, 6, True)
    allp = [(Q13A[0], Q13A[1], Q13A[0])] + [(O[t][2 * kk], O[t][2 * kk + 1], Q[t][kk]) for kk in range(4) for t in range(3)]
    for X, Y, Z in allp:
        for R in (X, Y):
            e(I("v_pk_mul_f32", R.sub(0, 2), R.sub(0, 2), sC2)); e(I("v_pk_mul_f32", R.sub(2, 2), R.sub(2, 2), sC2))
        e(I("v_cvt_pk_bf16_f32", Z[0], X[0], X[1])); e(I("v_cvt_pk_bf16_f32", Z[1], X[2], X[3]))
        e(I("v_cvt_pk_bf16_f32", Z[2], Y[0], Y[1])); e(I("v_cvt_pk_bf16_f32", Z[3], Y[2], Y[3]))
    for X, Y, Z in allp:
        e(I("v_permlane32_swap_b32", Z[0], Z[2])); e(I("v_permlane32_swap_b32", Z[1], Z[3]))
    for X, Y, Z in allp:
        e(I("v_permlane16_swap_b32", Z[0], Z[2])); e(I("v_permlane16_swap_b32", Z[1], Z[3]))
    e(I("v_lshlrev_b32", vT0, 4, vLane))
    e(I("s_lshl_b32", sT0, sW, 10)); e(I("s_add_u32", sT0, sT0, Q13X))
    e(I("v_add_u32", vT0, sT0, vT0))
    e(I("ds_write_b128", vT0, Q13A[0]))
    e(I("s_mov_b32", sDN, 1001)); cv.extend(done_write(F_DONEF))
    zero = []
    for t in range(3):
        for T in range(8):
            for r in range(4): zero.append(I("v_mov_b32", O[t][T][r], 0))
    zero.append(I("v_mov_b32", vT3, 0x3F803F80))
    for t in range(3):
        for r in range(4): zero.append(I("v_accvgpr_write_b32", LA_[t][r], 0))
    for r in range(4): zero.append(I("v_accvgpr_write_b32", ONES[r], vT3))
    e(I("v_add_u32", vV, TILE, vV))
    e(I("s_mov_b32", sKSL, 0)); e(I("s_mov_b32", sVSL, 1)); e(I("s_mov_b32", sKD, 0))
    e(I("s_mov_b32", sCNT, 0)); e(I("s_mov_b32", sDN, 0))
    e(I("s_mov_b32", sNEED, 2)); e(I("s_mov_b32", sNEED2, 3))
    poll(cv, "k0", vF, F_RDYKV, 2, 1)
    def kread(buf, addr, uh, sb, kk):
        return I("ds_read_b128", buf, addr, mods=f"offset:{uh * 8 * BLK + sb * 512 + kk * 64}")
    def vreads(buf, uh, T):
        return [I("ds_read_b64_tr_b16", buf.sub(2 * hh, 2), vV, mods=f"offset:{uh * 8 * BLK + hh * 512 + T * 32}") for hh in range(2)]
    def qk_simple(lst, addr, uh, D, C):
        for sb in range(2):
            for kk in range(4): lst.append(kread(POOL[kk], addr, uh, sb, kk))
            for kk in range(4):
                for t in range(3):
                    c = D[sb][t] if kk else (0 if C is None else C[t])
                    lst.append(I(MFMA, D[sb][t], POOL[kk], Q[t][kk], c))
    def rowmax(lst, D, t, dst):
        a = lst.append
        x, y = D[0][t], D[1][t]
        a(I("v_max3_f32", dst, x[0], x[1], x[2])); a(I("v_max3_f32", dst, dst, x[3], y[0]))
        a(I("v_max3_f32", dst, dst, y[1], y[2])); a(I("v_max_f32", dst, dst, y[3]))
        xlane_max(lst, dst, vT1, vT2)
    def exps(D, t, sb): return [I("v_exp_f32", D[sb][t][r], D[sb][t][r]) for r in range(4)]
    def cvts(D, t):
        x, y = D[0][t], D[1][t]
        return [I("v_cvt_pk_bf16_f32", x[0], x[0], x[1]), I("v_cvt_pk_bf16_f32", x[1], x[2], x[3]),
                I("v_cvt_pk_bf16_f32", x[2], y[0], y[1]), I("v_cvt_pk_bf16_f32", x[3], y[2], y[3])]
    P8 = POOL + [A(0, 4), A(4, 4)]
    for i in range(8): e(kread(P8[i], vK, 0, i >> 2, i & 3))
    zq = list(zero)
    for i in range(8):
        for t in range(3):
            e(I(MFMA, SB[0][i >> 2][t], P8[i], Q[t][i & 3], SB[0][i >> 2][t] if i & 3 else 0))
            for _ in range(3):
                if zq and zq[0].op == "v_mov_b32": e(zq.pop(0))
    cv.extend(zq)
    for t in range(3):
        rowmax(cv, SB[0], t, vT0)
        e(I("v_sub_f32", NEGM[t][0], "0xc0e00000", vT0))
        for r in range(1, 4): e(I("v_mov_b32", NEGM[t][r], NEGM[t][0]))
        for sb in range(2):
            for r in range(4): e(I("v_add_f32", SB[0][sb][t][r], SB[0][sb][t][r], NEGM[t][0]))
    BUFSEQ = list(range(6)) * 2 + list(range(5)) * 4
    LAF = 4
    def frag_reads(f):
        f &= 31
        buf = POOL[BUFSEQ[f]]
        blk, i = f >> 3, f & 7
        if blk == 0: return [kread(buf, vK, 1, i >> 2, i & 3)]
        if blk == 1: return vreads(buf, 0, i)
        if blk == 2: return [kread(buf, vK, 0, i >> 2, i & 3)]
        return vreads(buf, 1, i)
    def exp_order(D):
        o = []
        for t in range(3): o += [(x, t) for x in exps(D, t, 0)]
        for t in range(3): o += [(x, t) for x in exps(D, t, 1)]
        return o
    for f in range(LAF): cv.extend(frag_reads(f))
    for x, t in exp_order(SB[0])[:NB]: e(x)
    STAMP(cv, 3)
    e(LABEL(L("c_loop")))
    body = []
    def blockA(par, fbase, extra):
        D = SB[1 - par]; Pn = SB[par]
        mf = []; fixed = {}
        for i in range(8):
            f = fbase + i; sb, kk = i >> 2, i & 3
            g0 = len(mf)
            for t in range(3):
                mf.append(I(MFMA, D[sb][t], POOL[BUFSEQ[f]], Q[t][kk], NEGM[t] if kk == 0 else D[sb][t]))
            for g, items in extra.items():
                if g == g0: fixed.setdefault(g, []).extend(items)
            for j, r in enumerate(frag_reads(f + LAF)): fixed.setdefault(g0 + j, []).append((r, 1))
        for g, items in extra.items():
            if g % 3: fixed.setdefault(g, []).extend(items)
        eo = exp_order(Pn)[NB:]
        qe = [(x, 2, 0) for x, t in eo]
        dep = {t: [x for x, tt in eo if tt == t] for t in range(3)}
        qs = []
        p = [Pn[0][t][r] for t in range(3) for r in range(4)]
        for t in range(3):
            for x in cvts(Pn, t): qs.append((x, 1, 0, dep[t]))
            if t == 0:
                qs.append((I("v_or3_b32", vOr, p[0], p[1], p[2]), 1, 0))
            elif t == 1:
                qs.append((I("v_or3_b32", vOr, vOr, p[3], p[4]), 1, 0))
                qs.append((I("v_or3_b32", vOr, vOr, p[5], p[6]), 1, 0))
            else:
                qs.append((I("v_or3_b32", vOr, vOr, p[7], p[8]), 1, 0))
                qs.append((I("v_or3_b32", vOr, vOr, p[9], p[10]), 1, 0))
                qs.append((I("v_or_b32", vOr, vOr, p[11]), 1, 0))
        qs.append((I("v_and_b32", vOr, 0x40004000, vOr), 1, 0))
        qs.append((I("v_cmp_ne_u32", VCC, 0, vOr), 1, 23))
        out = sched(mf, fixed, [qe, qs])
        if "norare" not in exp: out.append(I("s_cbranch_vccnz", L(f"c_rare{par}")))
        out.append(LABEL(L(f"c_ret{par}")))
        return out
    def blockB(par, fbase, extra):
        Pn = SB[par]; Dn = SB[1 - par]
        mf = []; fixed = {}
        for t in range(3):
            mf.append(I(MFMA, LA_[t], ONES, Pn[0][t], LA_[t]))
        for g, items in extra.items():
            if g < 3 or g % 3: fixed.setdefault(g, []).extend(items)
        for i in range(8):
            f = fbase + i
            g0 = len(mf)
            for t in range(3):
                mf.append(I(MFMA, O[t][i], POOL[BUFSEQ[f]], Pn[0][t], O[t][i]))
            for g, items in extra.items():
                if g == g0: fixed.setdefault(g, []).extend(items)
            for j, r in enumerate(frag_reads(f + LAF)): fixed.setdefault(g0 + j, []).append((r, 1))
        qe = [(x, 2, 0 if k < 12 else 4) for k, (x, t) in enumerate(exp_order(Dn)[:NB])]
        return sched(mf, fixed, [qe])
    def slot_adv(sSL, sD):
        return [I("s_add_u32", sSL, sSL, 2), I("s_cmp_ge_u32", sSL, NSLOT),
                I("s_cselect_b32", sD, (2 - NSLOT) * TILE, sC2T), I("s_cselect_b32", sT0, NSLOT, 0),
                I("s_sub_u32", sSL, sSL, sT0)]
    c1 = lambda lst: [(x, 0.5 if x.cls == "valu" else (1 if x.cls.startswith("lds") else 0)) for x in lst]
    eV, cV = check2("cv", vF, F_RDYKV, sNEED)
    eK, cK = check2("ck", vF, F_RDYKV, sNEED2)
    body += blockA(0, 0, {4: c1([eV]), 12: c1(cV)})
    body += blockB(0, 8, {0: c1(slot_adv(sKSL, sKD)), 2: c1([I("v_add_u32", vK, sKD, vK)]), 5: c1([eK]), 15: c1(cK)})
    body += blockA(1, 16, {})
    nx = [I("s_add_u32", sNEED, sNEED, 2), I("s_add_u32", sNEED2, sNEED2, 2), I("s_min_u32", sNEED2, sNEED2, 16),
          I("s_add_u32", sDN, sDN, 2)]
    body += blockB(1, 24, {16: c1(slot_adv(sVSL, sVD) + nx), 17: c1(done_write(F_DONEKV)), 20: c1([I("v_add_u32", vV, sVD, vV)])})
    def filt(lst):
        o = []
        for x in lst:
            if "noexp" in exp and x.op == "v_exp_f32": continue
            if "nolds" in exp and x.cls == "ldsrd": continue
            if "novalu" in exp and x.cls == "valu" and x.op != "v_add_u32": continue
            if "nomfma" in exp and x.cls == "mfma": continue
            o.append(x)
        return o
    body = filt(body); cqb = filt(cqb)
    cqb += [I("s_add_u32", sCNT, sCNT, 1), I("s_cmp_lt_u32", sCNT, 2), I("s_cbranch_scc1", L("cq_loop"))]
    body += [I("s_add_u32", sCNT, sCNT, 1), I("s_cmp_lt_u32", sCNT, 8), I("s_cbranch_scc1", L("c_loop"))]
    ce = []; e = ce.append
    STAMP(ce, 4); TSTAMP(ce, 1)
    vWr, vOo = V(2), V(3)
    ACC = [[V(20 + (t * 4 + T) * 4, 4) for T in range(4)] for t in range(3)]
    SETS = [168, 72, 120]
    OF = [[[V(SETS[s] + (t * 4 + kk) * 4, 4) for kk in range(4)] for t in range(3)] for s in range(3)]
    WF = [A(4 * i, 4) for i in range(8)]
    e(I("v_lshlrev_b32", vOo, 4, vLane)); e(I("s_mul_i32", sT0, sW, 3 * 131072)); e(I("v_add_u32", vOo, sT0, vOo))
    e(I("s_lshl_b32", sT1, sNG, 12))
    vR = [V(8 + 2 * t, 2) for t in range(3)]
    for t in range(3): e(I("v_accvgpr_read_b32", vR[t][0], LA_[t][0]))
    for t in range(3): e(I("v_rcp_f32", vR[t][0], vR[t][0]))
    for t in range(3): e(I("v_mov_b32", vR[t][1], vR[t][0]))
    for t in range(3):
        for kk in range(4):
            X, Y, Z = O[t][2 * kk], O[t][2 * kk + 1], OF[0][t][kk]
            for R in (X, Y):
                e(I("v_pk_mul_f32", R.sub(0, 2), R.sub(0, 2), vR[t])); e(I("v_pk_mul_f32", R.sub(2, 2), R.sub(2, 2), vR[t]))
            e(I("v_cvt_pk_bf16_f32", Z[0], X[0], X[1])); e(I("v_cvt_pk_bf16_f32", Z[1], X[2], X[3]))
            e(I("v_cvt_pk_bf16_f32", Z[2], Y[0], Y[1])); e(I("v_cvt_pk_bf16_f32", Z[3], Y[2], Y[3]))
            e(I("buffer_store_dwordx4", Z, vOo, sOa, sT1, mods=f"offen offset:{kk*1024} sc1"))
        e(I("s_add_u32", sT1, sT1, 131072))
    wo_rd_addr(e, vWr, vT0, vT1)
    e(I("v_add_u32", V(4), 61440, vWr)); e(I("v_add_u32", V(7), 122880, vWr))
    def oloads(g):
        r = [I("s_add_u32", sT1, sNG, g), I("s_and_b32", sT1, sT1, 7), I("s_lshl_b32", sT1, sT1, 12)]
        for t in range(3):
            r.append(I("s_add_u32", sSO, sT1, t * 131072))
            for kk in range(4):
                r.append(I("buffer_load_dwordx4", OF[g % 3][t][kk], vOo, sOa, sSO, mods=f"offen offset:{kk*1024}"))
        return r
    def wreads(g, kk, T):
        buf = WF[(kk & 1) * 4 + T]
        base = WSLOT[g] * TILE + kk * 4 * BLK + T * 32
        a_, off = [vWr, V(4), V(7)][base // 61440], base % 61440
        return [I("ds_read_b64_tr_b16", buf.sub(2 * hh, 2), a_, mods=f"offset:{off + hh*512}") for hh in range(2)]
    def head_block(g, ol):
        nonlocal ce
        poll(ce, f"wo{g}", vF, F_RDYWO + 4 * (g & 1), 1, (g >> 1) + 1, sleep=tsl)
        for T in range(4): ce.extend(wreads(g, 0, T))
        mf = []; fixed = {}
        for kk in range(4):
            for T in range(4):
                g0 = len(mf)
                for t in range(3):
                    mf.append(I(MFMA, ACC[t][T], WF[(kk & 1) * 4 + T], OF[g % 3][t][kk], 0 if (g == 0 and kk == 0) else ACC[t][T]))
                if kk < 3:
                    rr = wreads(g, kk + 1, T)
                    fixed.setdefault(g0, []).append((rr[0], 1)); fixed.setdefault(g0 + 1, []).append((rr[1], 1))
        ce.extend(sched(mf, fixed, [[(x, 0.5 if x.cls == "salu" else 1, 1) for x in ol]]))
    head_block(0, [])
    e(I("s_lshl_b32", sT0, sNG, 2)); e(I("s_add_u32", sT2, sT0, sL1))
    e(I("ds_read_b32", vF[0], vSY, mods=f"offset:{F_RDYO}")); e(WAIT(lgkm=0))
    e(I("v_cmp_gt_u32", VCC, 2, vF[0]))
    e(I("s_cbranch_vccnz", L("c_late")))
    ceA = oloads(1) + oloads(2)
    arrive(ceA, "c1a", vT0, vT1, F_CNT1, 6, sT2, vm=24)
    ceA.append(I("s_branch", L("c_go")))
    ceB = [LABEL(L("c_late"))]
    arrive(ceB, "c1b", vT0, vT1, F_CNT1, 6, sT2)
    TSTAMP(ceB, 2)
    poll(ceB, "o1", vF, F_RDYO, 1, 1, sleep=tsl); ceB.extend(oloads(1))
    poll(ceB, "o2", vF, F_RDYO, 1, 2, sleep=tsl); ceB.extend(oloads(2))
    ce1 = ce
    ce = [LABEL(L("c_go"))]; e = ce.append
    STAMP(ce, 5); TSTAMP(ce, 3)
    for g in range(1, 8):
        if g + 2 < 8: poll(ce, f"o{g+2}", vF, F_RDYO, 1, g + 2, sleep=tsl)
        head_block(g, oloads(g + 2) if g + 2 < 8 else [])
    TSTAMP(ce, 4)
    e(I("v_lshlrev_b32", vT0, 4, vLane))
    e(I("s_mul_i32", sT0, sKG, 53248)); e(I("s_mul_i32", sT1, sW, 12288)); e(I("s_add_u32", sT0, sT0, sT1))
    for t in range(3):
        for T in range(4):
            e(I("buffer_store_dwordx4", ACC[t][T], vT0, sP, sT0, mods=f"offen offset:{T*1024} sc1"))
        e(I("s_add_u32", sT0, sT0, 4096))
    e(I("s_lshl_b32", sT0, sKG, 2)); e(I("s_add_u32", sT2, sT0, sL2))
    arrive(ce, "c2", vT0, vT1, F_CNT2, 8, sT2)
    TSTAMP(ce, 5)
    final_part(ce, "c", vT0, vT1, V(72, 32))
    rare = []
    for par in range(2):
        r_ = []; e = r_.append
        e(LABEL(L(f"c_rare{par}")))
        e(WAIT(lgkm=0)); e(I("s_nop", 15))
        if par == 0:
            aN, uhN, aN1, uhN1 = vK, 0, vK, 1
        else:
            e(I("v_subrev_u32", vT3, sKD, vK))
            aN, uhN, aN1, uhN1 = vT3, 1, vK, 0
        Dn, Dn1 = SB[par], SB[1 - par]
        qk_simple(r_, aN, uhN, Dn, None)
        for t in range(3):
            rowmax(r_, Dn, t, vT0)
            e(I("v_add_f32", vT0, "0x40e00000", vT0))
            e(I("v_max_f32_e64", vT0, vT0, "-" + str(NEGM[t][0])))
            e(I("v_sub_f32_e64", vT1, "-" + str(NEGM[t][0]), vT0))
            e(I("v_exp_f32", vT1, vT1))
            for r in range(4): e(I("v_sub_f32", NEGM[t][r], 0, vT0))
            for T in range(8):
                for r in range(4): e(I("v_mul_f32", O[t][T][r], O[t][T][r], vT1))
            for r in range(4):
                e(I("v_accvgpr_read_b32", vT2, LA_[t][r])); e(I("v_mul_f32", vT2, vT2, vT1)); e(I("v_accvgpr_write_b32", LA_[t][r], vT2))
            for sb in range(2):
                for r in range(4): e(I("v_add_f32", Dn[sb][t][r], Dn[sb][t][r], NEGM[t][0]))
            r_.extend(exps(Dn, t, 0)); r_.extend(exps(Dn, t, 1)); r_.extend(cvts(Dn, t))
        qk_simple(r_, aN1, uhN1, Dn1, NEGM)
        fb = 8 if par == 0 else 24
        for f in range(fb, fb + LAF): r_.extend(frag_reads(f))
        e(WAIT(lgkm=0)); e(I("s_nop", 15))
        e(I("s_branch", L(f"c_ret{par}")))
        rare.append(r_)

    hT0, hT1, hT2, hT3 = V(5), V(6), V(7), V(4)
    hP = V(8, 8)
    hSYw, hVal, hIss = V(16), V(17), V(18)
    hp = []; e = hp.append
    e(LABEL(L("helper")))
    if "noload" in exp: e(I("s_endpgm"))
    e(I("s_cmp_ge_u32", sHW, 2))
    e(I("s_cbranch_scc1", L("h23")))
    h01 = []; e = h01.append
    sX, sWQ = sA, sBd
    hXo, hXo2, hWo = [V(26 + m) for m in range(4)], [V(20), V(21)], [V(22 + m) for m in range(4)]
    e(I("v_and_b32", hT0, 7, vLane)); e(I("v_lshlrev_b32", hT0, 4, hT0)); e(I("v_lshrrev_b32", hT1, 3, vLane))
    e(I("v_lshl_add_u32", hXo[3], hT1, 12, hT0)); e(I("v_lshl_add_u32", hXo2[1], hT1, 11, hT0))
    for m in range(3): e(I("v_add_u32", hXo[m], 96 - 32 * m, hXo[3]))
    e(I("v_add_u32", hXo2[1], 192 * 1024 + 64, hXo2[1])); e(I("v_add_u32", hXo2[0], 32, hXo2[1]))
    e(I("v_and_b32", hT0, 15, vLane)); e(I("v_lshlrev_b32", hT0, 4, hT0))
    e(I("v_bfe_u32", hT1, vLane, 4, 1)); e(I("v_lshl_add_u32", hT0, hT1, 15, hT0))
    e(I("v_lshrrev_b32", hT1, 5, vLane)); e(I("v_lshl_add_u32", hWo[0], hT1, 17, hT0))
    for m in range(1, 4): e(I("v_add_u32", hWo[m], m * (8192 - BLK), hWo[0]))
    e(I("s_lshl_b32", sT0, sLW, 2)); e(I("s_add_u32", sT0, sT0, SY + F_RDYF)); e(I("v_mov_b32", hSYw, sT0))
    e(WAIT(lgkm=0))
    e(I("s_mul_i32", sT0, sB, 212992)); e(I("s_add_u32", sX[0], pX[0], sT0)); e(I("s_addc_u32", sX[1], pX[1], 0))
    e(I("s_sub_u32", sX[0], sX[0], 96)); e(I("s_subb_u32", sX[1], sX[1], 0))
    e(I("s_mov_b32", sX[2], 212992 + 96)); e(I("s_mov_b32", sX[3], 0x20000))
    e(I("s_lshl_b32", sT0, sH, 8)); srd(e, sWQ, pWQ, sT0, (4194304, sT0))
    def x_issue(lst, c):
        a = lst.append
        a(I("s_add_u32", sSO, sROT, c)); a(I("s_and_b32", sSO, sSO, 7)); a(I("s_lshl_b32", sSO, sSO, 7))
        if "nox" in exp: a(I("s_mov_b32", sSO, OOB))
        for G in range(6):
            a(I("s_mov_b32", M0, XB0 + (c & 1) * XBSZ + 4 * G * BLK))
            a(I("s_add_u32", sT0, sSO, G * 32768))
            for m in range(4):
                a(I("buffer_load_dwordx4", hXo[m], sX, sT0, mods=mods(f"offen offset:{m*BLK}", f_mods, "lds")))
        a(I("s_mov_b32", M0, XB0 + (c & 1) * XBSZ + 24 * BLK))
        a(I("s_nop", 0))
        for m in range(2):
            a(I("buffer_load_dwordx4", hXo2[m], sX, sSO, mods=mods(f"offen offset:{m*BLK}", f_mods, "lds")))
    def w_issue(lst, s_):
        a = lst.append
        a(I("s_add_u32", sSO, sROT, s_ >> 1)); a(I("s_and_b32", sSO, sSO, 7)); a(I("s_lshl_b32", sSO, sSO, 19))
        if s_ & 1: a(I("s_add_u32", sSO, sSO, 1 << 18))
        if "nowq" in exp: a(I("s_mov_b32", sSO, OOB))
        for hl in range(2):
            a(I("s_mov_b32", M0, WQ_BASE + (s_ & 7) * WQ_CH + hl * 4 * BLK))
            a(I("s_add_u32", sT0, sSO, hl * 65536))
            for m in range(4):
                a(I("buffer_load_dwordx4", hWo[m], sWQ, sT0, mods=mods(f"offen offset:{m*BLK}", f_mods, "lds")))
    def pub(lst, val):
        lst.append(WAIT(vm=0)); lst.append(I("v_mov_b32", hVal, val)); lst.append(I("ds_write_b32", hSYw, hVal))
    STAMP(h01, 0)
    e(I("s_cmp_eq_u32", sLW, 0)); e(I("s_cbranch_scc0", L("f1")))
    fs = [[], [LABEL(L("f1")), I("s_barrier")] + ([I("s_sleep", h1d)] if h1d else [])]
    for lw in range(2):
        f_ = fs[lw]
        for c in range(lw, 9, 2):
            if c >= 4: poll(f_, f"hw{c}", hP, F_DONEF, 4, 4 * c - 12, sleep=fsl)
            for s_ in (2 * c - 1, 2 * c):
                if 0 <= s_ < 16: w_issue(f_, s_)
            if 2 <= c < 8:
                if tail == 2: STAMP(f_, c >> 1, True)
                if tail == 3 and c in (4, 5): STAMP(f_, 1, True)
                poll(f_, f"hx{c}", hP, F_DONEF, 4, 4 * c - 7, sleep=fsl)
                if tail == 3 and c in (4, 5): STAMP(f_, 2, True)
                if tail == 3 and c in (6, 7): STAMP(f_, 5, True)
            if c < 8: x_issue(f_, c)
            if c == 0: f_.append(I("s_barrier"))
            if c == 8 - kvearly:
                f_.append(I("v_mov_b32", hVal, 1)); f_.append(I("ds_write_b32", vSY, hVal, mods=f"offset:{F_FISS}"))
            if tail == 3 and c in (4, 5): STAMP(f_, 3, True)
            pub(f_, c + 1)
            if tail == 3 and c in (4, 5): STAMP(f_, 4, True)
        if lw == 0: f_.append(I("s_branch", L("f2")))
    h01a = h01
    h01 = [LABEL(L("f2"))]; e = h01.append
    STAMP(h01, 1)
    if "fonly" in exp:
        STAMP_OUT(h01, hT0, hT1); e(I("s_endpgm"))
    tail_srds(e)
    hK, hV = V(2), V(3)
    hNEG = V(20, 4); hS = [V(24, 4), V(28, 4)]; hL = V(32, 4)
    hO = [V(36 + 4 * T, 4) for T in range(8)]
    hQ = [V(68 + 4 * kk, 4) for kk in range(4)]
    hKF = [[V(84 + (sb * 4 + kk) * 4, 4) for kk in range(4)] for sb in range(2)]
    hVF = [V(116 + 4 * T, 4) for T in range(8)]
    hONES = V(148, 4)
    lane_kv(h01, hK, hV, hT0)
    e(I("s_mul_i32", sT0, sLW, 8 * BLK)); e(I("v_add_u32", hK, sT0, hK))
    e(I("s_add_u32", sT0, sT0, TILE)); e(I("v_add_u32", hV, sT0, hV))
    for T in range(8):
        for r in range(4): e(I("v_mov_b32", hO[T][r], 0))
    for r in range(4):
        e(I("v_mov_b32", hL[r], 0)); e(I("v_mov_b32", hNEG[r], "0x7f000000")); e(I("v_mov_b32", hONES[r], 0x3F803F80))
    e(I("s_lshl_b32", sT0, sLW, 2)); e(I("s_add_u32", sT0, sT0, SY + F_DONEKV + 16)); e(I("v_mov_b32", hSYw, sT0))
    poll(h01, "hq13", hP, F_DONEF, 4, 1001, sleep=slp)
    STAMP(h01, 3)
    e(I("v_lshlrev_b32", hT0, 4, vLane)); e(I("v_add_u32", hT0, Q13X, hT0))
    for kk in range(4): e(I("ds_read_b128", hQ[kk], hT0, mods=f"offset:{kk*1024}"))
    e(I("s_mov_b32", sNEED, 2)); e(I("s_mov_b32", sKSL, 0))
    e(LABEL(L("h_loop")))
    hb = []; e = hb.append
    poll(hb, "hkv", hP, F_RDYKV, 2, sNEED, sleep=slp)
    for sb in range(2):
        for kk in range(4): e(I("ds_read_b128", hKF[sb][kk], hK, mods=f"offset:{sb*512 + kk*64}"))
    for T in range(8):
        for hh in range(2): e(I("ds_read_b64_tr_b16", hVF[T].sub(2 * hh, 2), hV, mods=f"offset:{hh*512 + T*32}"))
    e(I("v_mov_b32", hVal, sNEED)); e(I("ds_write_b32", hSYw, hVal))
    for sb in range(2):
        for kk in range(4):
            e(I(MFMA, hS[sb], hKF[sb][kk], hQ[kk], hNEG if kk == 0 else hS[sb]))
    e(I("s_add_u32", sKSL, sKSL, 2)); e(I("s_cmp_ge_u32", sKSL, NSLOT))
    e(I("s_cselect_b32", sKD, (2 - NSLOT) * TILE, sC2T)); e(I("s_cselect_b32", sT0, NSLOT, 0)); e(I("s_sub_u32", sKSL, sKSL, sT0))
    e(I("s_add_u32", sT0, sKSL, 1)); e(I("s_cmp_ge_u32", sT0, NSLOT)); e(I("s_cselect_b32", sT0, 0, sT0))
    e(I("s_cmp_lt_u32", sT0, 2)); e(I("s_cselect_b32", sVD, (2 - NSLOT) * TILE, sC2T))
    def hsoft(lst):
        a = lst.append
        for sb in range(2):
            for r in range(4): a(I("v_exp_f32", hS[sb][r], hS[sb][r]))
        x, y = hS
        a(I("v_cvt_pk_bf16_f32", x[0], x[0], x[1])); a(I("v_cvt_pk_bf16_f32", x[1], x[2], x[3]))
        a(I("v_cvt_pk_bf16_f32", x[2], y[0], y[1])); a(I("v_cvt_pk_bf16_f32", x[3], y[2], y[3]))
    hsoft(hb)
    e(I("v_or3_b32", hT0, hS[0][0], hS[0][1], hS[0][2])); e(I("v_or_b32", hT0, hT0, hS[0][3]))
    e(I("v_and_b32", hT0, 0x40004000, hT0))
    e(I("v_cmp_ne_u32", VCC, 0, hT0))
    if "norare" not in exp: e(I("s_cbranch_vccnz", L("h_rare")))
    e(LABEL(L("h_ret")))
    e(I(MFMA, hL, hONES, hS[0], hL))
    for T in range(8): e(I(MFMA, hO[T], hVF[T], hS[0], hO[T]))
    e(I("v_add_u32", hK, sKD, hK)); e(I("v_add_u32", hV, sVD, hV))
    e(I("s_add_u32", sNEED, sNEED, 2)); e(I("s_cmp_le_u32", sNEED, 16))
    e(I("s_cbranch_scc1", L("h_loop")))
    if "noH13" in exp: hb = [x for x in hb if not (x.cls == "mfma" or x.op in ("v_exp_f32", "v_cvt_pk_bf16_f32", "s_cbranch_vccnz") or x.op.startswith("ds_read_b64_tr") or (x.op == "ds_read_b128"))]
    hf = []; e = hf.append
    STAMP(hf, 4); TSTAMP(hf, 1)
    e(I("v_lshlrev_b32", hT0, 4, vLane))
    e(I("s_cmp_eq_u32", sLW, 0)); e(I("s_cbranch_scc0", L("hf1")))
    e(I("v_add_u32", hT1, HXA, hT0))
    for x in range(4): e(I("ds_write_b128", hT1, hO[4 + x], mods=f"offset:{x*1024}"))
    e(I("v_add_u32", hT1, Q13X, hT0))
    e(I("s_branch", L("hf2")))
    hf1 = []; e = hf1.append
    e(LABEL(L("hf1")))
    e(I("v_add_u32", hT1, Q13X, hT0))
    for x in range(4): e(I("ds_write_b128", hT1, hO[x], mods=f"offset:{x*1024}"))
    for x in range(4):
        for r in range(4): e(I("v_mov_b32", hO[x][r], hO[4 + x][r]))
    e(I("v_add_u32", hT1, HXA, hT0))
    hf2 = []; e = hf2.append
    e(LABEL(L("hf2")))
    e(I("v_lshlrev_b32", hT2, 3, vLane))
    e(I("s_lshl_b32", sT0, sLW, 9)); e(I("s_add_u32", sT0, sT0, HML))
    e(I("v_add_u32", hT3, sT0, hT2))
    e(I("v_mov_b32", hNEG[1], hL[0]))
    e(I("ds_write_b64", hT3, hNEG.sub(0, 2)))
    e(I("s_lshl_b32", sT0, sLW, 2)); e(I("s_add_u32", sT0, sT0, SY + F_HFIN)); e(I("v_mov_b32", hSYw, sT0))
    e(I("v_mov_b32", hVal, 1)); e(I("ds_write_b32", hSYw, hVal))
    poll(hf2, "hfin", hP, F_HFIN, 2, 1, sleep=0)
    ML = V(68, 2)
    PO = [V(84 + x * 4, 4) for x in range(4)]
    e(I("s_xor_b32", sT0, sLW, 1)); e(I("s_lshl_b32", sT0, sT0, 9)); e(I("s_add_u32", sT0, sT0, HML))
    e(I("v_add_u32", hT2, sT0, hT2))
    e(I("ds_read_b64", ML, hT2))
    for x in range(4): e(I("ds_read_b128", PO[x], hT1, mods=f"offset:{x*1024}"))
    e(I("v_min_f32", hT2, ML[0], hNEG[0]))
    e(I("v_sub_f32", ML[0], hT2, ML[0])); e(I("v_exp_f32", ML[0], ML[0]))
    e(I("v_sub_f32", hNEG[0], hT2, hNEG[0])); e(I("v_exp_f32", hNEG[0], hNEG[0]))
    e(I("v_mul_f32", hT3, ML[0], ML[1])); e(I("v_fmac_f32", hT3, hNEG[0], hNEG[1]))
    e(I("v_rcp_f32", hT3, hT3))
    e(I("v_mul_f32", ML[0], ML[0], hT3)); e(I("v_mul_f32", hNEG[0], hNEG[0], hT3))
    for x in range(4):
        for r in range(4):
            e(I("v_mul_f32", hO[x][r], hO[x][r], hNEG[0]))
            e(I("v_fmac_f32", hO[x][r], PO[x][r], ML[0]))
    e(I("s_lshl_b32", sT0, sLW, 11)); e(I("s_lshl_b32", sT1, sNG, 12)); e(I("s_add_u32", sT0, sT0, sT1)); e(I("s_add_u32", sT0, sT0, 12 * 131072))
    for j in range(2):
        X, Y = hO[2 * j], hO[2 * j + 1]
        e(I("v_cvt_pk_bf16_f32", X[0], X[0], X[1])); e(I("v_cvt_pk_bf16_f32", X[1], X[2], X[3]))
        e(I("v_cvt_pk_bf16_f32", X[2], Y[0], Y[1])); e(I("v_cvt_pk_bf16_f32", X[3], Y[2], Y[3]))
        e(I("buffer_store_dwordx4", X, hT0, sOa, sT0, mods=f"offen offset:{j*1024} sc1"))
    e(I("s_lshl_b32", sT0, sNG, 2)); e(I("s_add_u32", sT2, sT0, sL1))
    arrive(hf2, "h1", hT0, hT1, F_CNT1, 6, sT2)
    TSTAMP(hf2, 2)
    e(I("s_cmp_eq_u32", sLW, 1)); e(I("s_cbranch_scc0", L("h_p3")))
    poll(hf2, "wn1", hT2, F_NONCE, 1, 1)
    e(I("s_add_u32", sT0, sNG, 1))
    e(I("v_add_u32", hT1, sT0, vLane)); e(I("v_and_b32", hT1, 7, hT1)); e(I("v_lshlrev_b32", hT1, 2, hT1)); e(I("v_add_u32", hT1, sL1, hT1))
    e(I("s_mov_b64", EXEC, 127))
    e(LABEL(L("w1")))
    e(I("buffer_load_dword", hT0, hT1, sFL, 0, mods="offen sc1")); e(WAIT(vm=0))
    e(I("v_cmp_ne_u32", VCC, hT0, hT2))
    e(I("s_nop", 2)); e(I("s_or_b32", sT0, "vcc_lo", 0x80)); e(I("s_ff1_i32_b32", sT0, sT0))
    e(I("v_mov_b32", hT0, sT0)); e(I("ds_write_b32", vSY, hT0, mods=f"offset:{F_RDYO}"))
    e(I("s_cmp_eq_u32", sT0, 7)); e(I("s_cbranch_scc1", L("w1ok")))
    hf2.extend(spin_tail(L("w1"), 2))
    e(LABEL(L("w1ok")))
    e(I("s_mov_b64", EXEC, -1))
    e(I("s_branch", L("h_p3")))
    hr = []; e = hr.append
    e(LABEL(L("h_rare")))
    e(I("s_nop", 15))
    for sb in range(2):
        for kk in range(4):
            e(I(MFMA, hS[sb], hKF[sb][kk], hQ[kk], 0 if kk == 0 else hS[sb]))
    x, y = hS
    e(I("v_max3_f32", hT0, x[0], x[1], x[2])); e(I("v_max3_f32", hT0, hT0, x[3], y[0]))
    e(I("v_max3_f32", hT0, hT0, y[1], y[2])); e(I("v_max_f32", hT0, hT0, y[3]))
    xlane_max(hr, hT0, hT1, hT2)
    e(I("v_add_f32", hT0, "0x40e00000", hT0))
    e(I("v_max_f32_e64", hT0, hT0, "-" + str(hNEG[0])))
    e(I("v_sub_f32_e64", hT1, "-" + str(hNEG[0]), hT0))
    e(I("v_exp_f32", hT1, hT1))
    for r in range(4): e(I("v_sub_f32", hNEG[r], 0, hT0))
    for T in range(8):
        for r in range(4): e(I("v_mul_f32", hO[T][r], hO[T][r], hT1))
    for r in range(4): e(I("v_mul_f32", hL[r], hL[r], hT1))
    for sb in range(2):
        for r in range(4): e(I("v_add_f32", hS[sb][r], hS[sb][r], hNEG[0]))
    hsoft(hr)
    e(I("s_nop", 3))
    e(I("s_branch", L("h_ret")))
    h23 = []; e = h23.append
    sK, sV = sA, sBd
    hG, hD, hDst = V(20), V(21), V(22)
    RB = [V(24 + 32 * b, 32) for b in range(6)] + [A(0, 32)]
    NRB = 7
    e(LABEL(L("h23")))
    e(I("v_lshlrev_b32", hG, 4, vLane)); e(I("s_lshl_b32", sT0, sLW, 13)); e(I("v_add_u32", hG, sT0, hG))
    e(I("s_lshl_b32", sT0, sB, 5)); e(I("s_add_u32", sT0, sT0, sH)); e(I("s_lshl_b32", sT0, sT0, 17))
    e(WAIT(lgkm=0))
    srd(e, sK, pK, sT0, 131072); srd(e, sV, pV, sT0, 131072)
    def Lq(i):
        if i >= 16: return
        if i >= 2: e(WAIT(vm=kvwin))
        for hf_ in range(2):
            e(I("s_mov_b32", sSO, (i >> 1) * 16384 + hf_ * 4096 + (OOB if "nokv" in exp else 0)))
            for m in range(4):
                e(I("buffer_load_dwordx4", RB[i % NRB].sub((hf_ * 4 + m) * 4, 4), hG, sV if i & 1 else sK, sSO,
                    mods=mods(f"offen offset:{m*1024}", kv_mods)))
    def Wr(i):
        if i == 2: poll(h23, "fwq", hP, F_DONEF, 4, 1000)
        if i >= 9: poll(h23, f"fwk{i}", hP, F_DONEKV, 6, i - 8, sleep=slp)
        e(I("v_add_u32", hDst, (i % NSLOT) * TILE, hD))
        for m in range(8):
            e(I("ds_write_b128", hDst, RB[i % NRB].sub(m * 4, 4), mods=f"offset:{(m & 1) * 4 * BLK + (m >> 1) * 256}"))
        e(I("v_mov_b32", hVal, i + 1)); e(I("ds_write_b32", hSYw, hVal))
    STAMP(h23, 0)
    e(I("s_barrier"))
    if "fonly" in exp: e(I("s_endpgm"))
    if kvlate: e(I("s_sleep", kvlate))
    for i in range(kvpre): Lq(i)
    e(I("v_and_b32", hT0, 15, vLane)); e(I("v_lshlrev_b32", hT0, 4, hT0))
    e(I("v_lshrrev_b32", hT1, 4, vLane)); e(I("v_mul_u32_u24", hT1, BLK, hT1)); e(I("v_add_u32", hD, hT0, hT1))
    e(I("s_mul_i32", sT0, sLW, 8 * BLK)); e(I("v_add_u32", hD, sT0, hD))
    e(I("s_lshl_b32", sT0, sLW, 2)); e(I("s_add_u32", sT0, sT0, SY + F_RDYKV)); e(I("v_mov_b32", hSYw, sT0))
    tail_srds(e)
    e(I("s_lshl_b32", sT0, sKG, 20)); e(I("s_lshl_b32", sT1, sNG, 7)); e(I("s_add_u32", sT0, sT0, sT1))
    srd(e, sWO, pWO, sT0, (4194304, sT0))
    srd(e, sCN, pDBG, 0, 256)
    e(I("s_xor_b32", sT0, sLW, 1)); e(I("s_or_b32", sT0, sT0, sH)); e(I("s_cmp_eq_u32", sT0, 0)); e(I("s_cbranch_scc0", L("nonw")))
    e(I("s_memrealtime", S(4, 2))); e(WAIT(lgkm=0))
    e(I("s_or_b32", sT0, S(4), 1)); e(I("s_lshl_b32", sT1, sB, 5))
    e(I("s_mov_b64", EXEC, 1))
    e(I("v_mov_b32", hP[0], sT0)); e(I("v_mov_b32", hT0, sT1))
    stn = I("buffer_store_dword", hP[0], hT0, sCN, 0, mods="offen sc1"); stn.nocount = True
    e(stn)
    e(I("s_mov_b64", EXEC, -1))
    e(LABEL(L("nonw")))
    for i in range(kvpre): Wr(i)
    STAMP(h23, 1)
    if kvearly: poll(h23, "kvres", hP, F_FISS, 1, 1, sleep=2)
    else: poll(h23, "kvres", hP, F_RDYF, 2, kvres, sleep=2)
    STAMP(h23, 2)
    for i in range(kvpre, kvpre + 7):
        Lq(i)
        if kvpre == 0 and i in (2, 3): Wr(i - 2)
    if kvpre == 0: Lq(7); Lq(8)
    for i in range(2, 16):
        Wr(i); Lq(i + 7)
    e(I("s_cmp_eq_u32", sLW, 1)); e(I("s_cbranch_scc0", L("nononce")))
    e(I("s_lshl_b32", sT0, sB, 5)); e(I("v_mov_b32", hT0, sT0))
    e(I("s_mov_b64", EXEC, 1))
    e(LABEL(L("nn")))
    e(I("buffer_load_dword", hP[0], hT0, sCN, 0, mods="offen sc1")); e(WAIT(vm=0))
    e(I("v_cmp_eq_u32", VCC, 0, hP[0]))
    e(I("s_cbranch_vccz", L("nnok")))
    h23.extend(spin_tail(L("nn"), 4))
    e(LABEL(L("nnok")))
    e(I("ds_write_b32", vSY, hP[0], mods=f"offset:{F_NONCE}"))
    e(I("s_mov_b64", EXEC, -1))
    e(LABEL(L("nononce")))
    STAMP(h23, 3); TSTAMP(h23, 1)
    vW = [V(24 + b) for b in range(4)]
    e(I("v_and_b32", hT0, 7, vLane)); e(I("v_lshlrev_b32", hT0, 4, hT0))
    e(I("v_bfe_u32", hT1, vLane, 3, 1)); e(I("v_lshl_add_u32", hT0, hT1, 10, hT0))
    e(I("v_lshrrev_b32", hT1, 4, vLane)); e(I("v_lshl_add_u32", vW[0], hT1, 13, hT0))
    for b in range(1, 4): e(I("v_add_u32", vW[b], b * 992, vW[0]))
    e(I("s_lshl_b32", sT0, sLW, 2)); e(I("s_add_u32", sT0, sT0, SY + F_RDYWO)); e(I("v_mov_b32", hSYw, sT0))
    for i in range(4):
        e(I("s_cmp_eq_u32", sLW, 0))
        e(I("s_cselect_b32", sNEED, WNEED[2 * i], WNEED[2 * i + 1]))
        e(I("s_cselect_b32", sT2, WSLOT[2 * i], WSLOT[2 * i + 1])); e(I("s_mul_i32", sM0, sT2, TILE))
        if i:
            e(WAIT(vm=0)); e(I("v_mov_b32", hVal, i)); e(I("ds_write_b32", hSYw, hVal))
        poll(h23, f"wf{i}", hP, F_DONEKV, 6, sNEED, sleep=slp if i < 3 else 1)
        e(I("s_add_u32", sT1, sNG, sLW)); e(I("s_add_u32", sT1, sT1, 2 * i)); e(I("s_and_b32", sT1, sT1, 7)); e(I("s_lshl_b32", sT1, sT1, 17))
        for kk in range(4):
            e(I("s_add_u32", M0, sM0, kk * 4 * BLK))
            e(I("s_add_u32", sSO, sT1, kk * 32768))
            for b in range(4):
                e(I("buffer_load_dwordx4", vW[b], sWO, sSO, mods=mods(f"offen offset:{b*BLK}", wo_mods, "lds")))
        if i == 0 and touch:
            for i2 in range(1, 4):
                e(I("s_add_u32", sT1, sNG, sLW)); e(I("s_add_u32", sT1, sT1, 2 * i2)); e(I("s_and_b32", sT1, sT1, 7)); e(I("s_lshl_b32", sT1, sT1, 17))
                for kk in range(4):
                    e(I("s_add_u32", sSO, sT1, kk * 32768))
                    for b in range(4):
                        e(I("buffer_load_dwordx4", V(32 + ((i2 - 1) * 16 + kk * 4 + b) % 40 * 4, 4), vW[b], sWO, sSO, mods=f"offen offset:{b*BLK}"))
            e(WAIT(vm=48)); e(I("v_mov_b32", hVal, 1)); e(I("ds_write_b32", hSYw, hVal))
    e(WAIT(vm=0)); e(I("v_mov_b32", hVal, 4)); e(I("ds_write_b32", hSYw, hVal))
    STAMP(h23, 4); TSTAMP(h23, 2)
    h3 = []; e = h3.append
    e(LABEL(L("h_p3")))
    hWr, hOo, hF = V(2), V(3), V(8)
    hACC = [V(24 + 4 * T, 4) for T in range(4)]
    hOF = [[V(40 + (x * 4 + kk) * 4, 4) for kk in range(4)] for x in range(2)]
    hWF = [V(72 + 4 * i, 4) for i in range(16)]
    wo_rd_addr(e, hWr, hT0, hT1)
    e(I("v_lshlrev_b32", hOo, 4, vLane))
    for x in range(2):
        e(I("s_lshl_b32", sT0, sHW, 1)); e(I("s_add_u32", sT0, sT0, x))
        if x == 0: poll(h3, "hown", hF, F_CNT1, 1, 6)
        poll(h3, f"ho{x}", hF, F_RDYO, 1, sT0)
        if x == 0: STAMP(h3, 5); TSTAMP(h3, 3)
        e(I("s_add_u32", sT1, sNG, sT0)); e(I("s_and_b32", sT1, sT1, 7))
        e(I("s_lshl_b32", sT1, sT1, 12)); e(I("s_add_u32", sSO, sT1, 12 * 131072))
        for kk in range(4):
            e(I("buffer_load_dwordx4", hOF[x][kk], hOo, sOa, sSO, mods=f"offen offset:{kk*1024}"))
    for x in range(2):
        e(I("s_add_u32", sT2, sHW, 1))
        poll(h3, f"hwo{x}", hF, F_RDYWO + 4 * x, 1, sT2)
        e(I("s_lshl_b32", sT0, sHW, 1)); e(I("s_add_u32", sT0, sT0, x + 7))
        e(I("s_cmp_ge_u32", sT0, 9)); e(I("s_cselect_b32", sT1, 9, 0)); e(I("s_sub_u32", sT0, sT0, sT1))
        e(I("s_mul_i32", sT0, sT0, TILE)); e(I("v_add_u32", hT0, sT0, hWr))
        for kk in range(4):
            for T in range(4):
                for hh in range(2):
                    e(I("ds_read_b64_tr_b16", hWF[kk * 4 + T].sub(2 * hh, 2), hT0, mods=f"offset:{kk*4*BLK + T*32 + hh*512}"))
        for kk in range(4):
            for T in range(4):
                e(I(MFMA, hACC[T], hWF[kk * 4 + T], hOF[x][kk], 0 if (x == 0 and kk == 0) else hACC[T]))
    e(I("s_lshl_b32", sT0, sHW, 12)); e(I("s_add_u32", sT0, sT0, RED)); e(I("v_add_u32", hT0, sT0, hOo))
    for T in range(4): e(I("ds_write_b128", hT0, hACC[T], mods=f"offset:{T*1024}"))
    e(I("v_mov_b32", hT1, 1)); e(I("s_mov_b64", EXEC, 1))
    e(I("ds_add_u32", vSY, hT1, mods=f"offset:{F_CNT3}")); e(I("s_mov_b64", EXEC, -1))
    poll(h3, "hred", hF, F_CNT3, 1, 4, sleep=0)
    e(I("s_lshl_b32", sT0, sHW, 10)); e(I("s_add_u32", sT0, sT0, RED)); e(I("v_add_u32", hT0, sT0, hOo))
    for s in range(4): e(I("ds_read_b128", hWF[s], hT0, mods=f"offset:{s*4096}"))
    for r in range(4):
        e(I("v_add_f32", hWF[0][r], hWF[0][r], hWF[1][r])); e(I("v_add_f32", hWF[2][r], hWF[2][r], hWF[3][r]))
    for r in range(4): e(I("v_add_f32", hWF[0][r], hWF[0][r], hWF[2][r]))
    e(I("s_mul_i32", sT0, sKG, 53248)); e(I("s_lshl_b32", sT1, sHW, 10)); e(I("s_add_u32", sT0, sT0, sT1)); e(I("s_add_u32", sT0, sT0, 49152))
    e(I("buffer_store_dwordx4", hWF[0], hOo, sP, sT0, mods="offen sc1"))
    e(I("s_lshl_b32", sT0, sKG, 2)); e(I("s_add_u32", sT2, sT0, sL2))
    TSTAMP(h3, 4)
    arrive(h3, "h2", hT0, hT1, F_CNT2, 8, sT2)
    TSTAMP(h3, 5)
    e(I("s_cmp_eq_u32", sHW, 3)); e(I("s_cbranch_scc0", L("nowatch")))
    poll(h3, "wn2", hT2, F_NONCE, 1, 1)
    e(I("v_lshlrev_b32", hT1, 2, vLane)); e(I("v_add_u32", hT1, sL2, hT1))
    e(I("s_mov_b64", EXEC, 15))
    e(LABEL(L("w2")))
    e(I("buffer_load_dword", hT0, hT1, sFL, 0, mods="offen sc1")); e(WAIT(vm=0))
    e(I("v_cmp_ne_u32", VCC, hT0, hT2))
    e(I("s_cbranch_vccz", L("w2ok")))
    h3.extend(spin_tail(L("w2"), 2))
    e(LABEL(L("w2ok")))
    e(I("s_mov_b64", EXEC, -1))
    e(I("v_mov_b32", hT0, 1)); e(I("ds_write_b32", vSY, hT0, mods=f"offset:{F_GO}"))
    e(LABEL(L("nowatch")))
    final_part(h3, "h", hT0, hT1, V(72, 32))
    fin = [LABEL(L("end")), I("s_endpgm")]

    paths = [pre + cq + cqb + cqb + cv + body + body + ce1 + ceA + ce, body + ce1 + ceB + ce,
             rare[0], rare[1],
             pre + hp + h01a + fs[0] + h01 + hb + hb + hf + hf2 + h3, h01a + fs[1] + h01,
             hb + hf[:3] + hf1 + hf2,
             pre + hp + h23 + h3,
             hb + hr] + spins
    apply_waits(paths)
    apply_hazards(paths)
    order = [pre, cq, cqb, cv, body, ce1, ceA, ceB, ce, hp, h01a, fs[0], fs[1], h01, hb, hf, hf1, hf2, h23, h3, fin, hr, rare[0], rare[1]] + spins
    txt = "\n".join(render(x) for x in order)
    return txt, dict(vgpr=256, sgpr=102, accum=216)
```

```python
from ir import *
import struct

def f32bits(x): return struct.unpack("<I", struct.pack("<f", x))[0]
CSCALE = (128 ** -0.5) * 1.4426950408889634
BLK = 1056
TILE = 16 * BLK
NSLOT = 9
XB0 = 0
XBSZ = 26 * BLK
NXB = 3
WQ_BASE = 88704
WQ_CH = 8 * BLK
SY = WQ_BASE + 8 * WQ_CH
Q13X = SY + 256
HML = Q13X + 4096
HXA = 9 * TILE
RED = 6 * TILE
KF_LDS = 163840
OOB = 0x40000000
MFMA = "v_mfma_f32_16x16x32_bf16"
WSLOT = [7, 8, 0, 1, 2, 3, 4, 5]
WNEED = [8, 10, 10, 12, 12, 14, 14, 16]
P_OFF = 0x1000000
FL_OFF = 0x2000000
F_RDYF, F_RDYKV, F_DONEF, F_DONEKV, F_HFIN = 0, 8, 16, 32, 64
F_RDYWO, F_CNT1, F_CNT2, F_CNT3, F_GO, F_RDYO, F_NONCE, F_FISS = 80, 96, 100, 104, 108, 112, 116, 120

sA, sBd, sOa, sP, sOUT = S(8, 4), S(12, 4), S(16, 4), S(20, 4), S(24, 4)
sWO, sCN, sFL = S(64, 4), S(68, 4), S(72, 4)
pX, pK, pV, pWQ, pWO, pOUT, pDBG, pWS = [S(28 + 2 * i, 2) for i in range(8)]
sW, sB, sH, sT0, sT1, sT2, sT3 = [S(44 + i) for i in range(7)]
sCNT, sNEED, sNEED2, sKSL, sVSL, sKD, sVD = [S(51 + i) for i in range(7)]
sC2 = S(58, 2)
sHW, sM0, sSO, sTI = S(60), S(61), S(62), S(63)
sLW, sC2T, sROT, sDN, sBUD, sNG, sKG, sL1, sL2 = [S(76 + i) for i in range(9)]
sRT, sCY = 86, 94
vSY, vLane = V(0), V(1)

def sched(mfmas, fixed, flex, cap=2.0):
    out = []; qs = [list(q) for q in flex]
    placed = set()
    def ready(item, g):
        if item[2] > g: return False
        if len(item) > 3 and any(id(d) not in placed for d in item[3]): return False
        return True
    for g, m in enumerate(mfmas):
        out.append(m)
        room = cap
        for ins, cost in fixed.get(g, []):
            out.append(ins); room -= cost; placed.add(id(ins))
        progress = True
        while progress:
            progress = False
            for q in qs:
                if q and ready(q[0], g) and q[0][1] <= room + 1e-9:
                    it = q.pop(0); out.append(it[0]); room -= it[1]; placed.add(id(it[0])); progress = True
                    break
    while any(qs):
        for q in qs:
            if q and ready(q[0], 10 ** 6):
                it = q.pop(0); out.append(it[0]); placed.add(id(it[0])); break
        else:
            raise RuntimeError("unschedulable")
    return out

def xlane_max(lst, x, t0, t1):
    a = lst.append
    a(I("v_mov_b32", t0, x)); a(I("v_mov_b32", t1, x))
    a(I("v_permlane32_swap_b32", t0, t1))
    a(I("v_max_f32", x, t0, t1))
    a(I("v_mov_b32", t0, x)); a(I("v_mov_b32", t1, x))
    a(I("v_permlane16_swap_b32", t0, t1))
    a(I("v_max_f32", x, t0, t1))

def mods(*m): return " ".join(x for x in m if x)

def gen_kf(name, stamps=False, kv_mods="nt", exp=(), f_mods="", wo_mods="", kvwin=16, kvres=8, NB=18, kvpre=0, tail=0, prio=2, slp=4, touch=1, kvlate=0, eq=8, h1d=0, kvearly=1, fsl=1, tsl=0, out_mods="", kv0=4, look=7, etail=9, p3c=1, ipf=0, mw=2):
    L = lambda s: f"L_{name}_{s}"
    spins = []
    ce = None
    def TSTAMP(lst, i):
        if tail == 1: STAMP(lst, i, True)
    def STAMP(lst, i, force=False):
        if tail and not force and 0 < i < (6 if tail == 1 else 7): return
        if stamps:
            lst.append(I("s_memrealtime", S(4, 2))); lst.append(I("s_memtime", S(6, 2))); lst.append(WAIT(lgkm=0))
            lst.append(I("s_mov_b32", S(sRT + i), S(4))); lst.append(I("s_mov_b32", S(sCY + i), S(6)))
    def STAMP_OUT(lst, vt, vd):
        if not stamps: return
        a = lst.append
        a(WAIT(vm=0)); STAMP(lst, 7)
        if "xcc" in exp:
            a(RAW(f"    s_getreg_b32 s{sCY+1}, hwreg(HW_REG_XCC_ID)")); a(RAW(f"    s_getreg_b32 s{sCY+2}, hwreg(HW_REG_HW_ID)"))
        a(I("s_add_u32", sA[0], pWS[0], 0x4000000)); a(I("s_addc_u32", sA[1], pWS[1], 0))
        a(I("s_mov_b32", sA[2], 0x100000)); a(I("s_mov_b32", sA[3], 0x20000))
        a(I("s_lshl_b32", sT0, S(2), 3)); a(I("s_add_u32", sT0, sT0, sW)); a(I("s_lshl_b32", sT0, sT0, 6))
        a(I("v_mov_b32", vt, 0))
        for i in range(8):
            a(I("v_mov_b32", vd, S(sRT + i))); a(I("buffer_store_dword", vd, vt, sA, sT0, mods=f"offen offset:{4*i}")); a(I("s_nop", 1))
            a(I("v_mov_b32", vd, S(sCY + i))); a(I("buffer_store_dword", vd, vt, sA, sT0, mods=f"offen offset:{32+4*i}")); a(I("s_nop", 1))
        a(WAIT(vm=0))
    def srd(e, d, ptr, off, size):
        e(I("s_add_u32", d[0], ptr[0], off)); e(I("s_addc_u32", d[1], ptr[1], 0))
        if isinstance(size, tuple): e(I("s_sub_u32", d[2], size[0], size[1]))
        else: e(I("s_mov_b32", d[2], size))
        e(I("s_mov_b32", d[3], 0x20000))
    def spin_tail(site_label, sleep):
        r = [I("s_sleep", sleep)] if sleep else []
        return r + [I("s_sub_u32", sBUD, sBUD, 1), I("s_cbranch_scc0", site_label), I("s_endpgm")]
    def check2(site, vF, off, need):
        early = I("ds_read_b64", vF, vSY, mods=f"offset:{off}")
        chk = [I("v_min_u32", vF[0], vF[0], vF[1]), I("v_cmp_gt_u32", VCC, need, vF[0]),
               I("s_cbranch_vccnz", L("spin_" + site)), LABEL(L("ret_" + site))]
        if "nosync" in exp: return early, chk[:2]
        spins.append([LABEL(L("spin_" + site)), I("ds_read_b64", vF, vSY, mods=f"offset:{off}"), WAIT(lgkm=0),
                      I("v_min_u32", vF[0], vF[0], vF[1]), I("v_cmp_gt_u32", VCC, need, vF[0]),
                      I("s_cbranch_vccz", L("ret_" + site))] + spin_tail(L("spin_" + site), 1))
        return early, chk
    def check1(site, vF, off, need):
        early = I("ds_read_b32", vF[0], vSY, mods=f"offset:{off}")
        chk = [I("v_cmp_gt_u32", VCC, need, vF[0]), I("s_cbranch_vccnz", L("spin_" + site)), LABEL(L("ret_" + site))]
        if "nosync" in exp: return early, chk[:1]
        spins.append([LABEL(L("spin_" + site)), I("ds_read_b32", vF[0], vSY, mods=f"offset:{off}"), WAIT(lgkm=0),
                      I("v_cmp_gt_u32", VCC, need, vF[0]),
                      I("s_cbranch_vccz", L("ret_" + site))] + spin_tail(L("spin_" + site), 0))
        return early, chk
    def poll(lst, site, regs, off, nwords, need, sleep=1, addr=None):
        if "nosync" in exp: return
        a = lst.append
        ad = addr or vSY
        a(LABEL(L("poll_" + site)))
        op = {1: "ds_read_b32", 2: "ds_read_b64"}.get(nwords, "ds_read_b128")
        a(I(op, regs.sub(0, min(nwords, 4)), ad, mods=f"offset:{off}"))
        if nwords == 6: a(I("ds_read_b64", regs.sub(4, 2), ad, mods=f"offset:{off+16}"))
        a(WAIT(lgkm=0))
        if nwords == 2: a(I("v_min_u32", regs[0], regs[0], regs[1]))
        elif nwords >= 4:
            a(I("v_min3_u32", regs[0], regs[0], regs[1], regs[2]))
            if nwords == 4: a(I("v_min_u32", regs[0], regs[0], regs[3]))
            else:
                a(I("v_min3_u32", regs[0], regs[0], regs[3], regs[4])); a(I("v_min_u32", regs[0], regs[0], regs[5]))
        a(I("v_cmp_gt_u32", VCC, need, regs[0]))
        a(I("s_cbranch_vccz", L("pok_" + site)))
        lst.extend(spin_tail(L("poll_" + site), sleep))
        a(LABEL(L("pok_" + site)))
    def arrive(lst, site, t0, t1, off, total, word, vm=0):
        a = lst.append
        a(WAIT(vm=vm))
        a(I("v_mov_b32", t0, 1))
        a(I("s_mov_b64", EXEC, 1))
        a(I("ds_add_rtn_u32", t1, vSY, t0, mods=f"offset:{off}")); a(WAIT(lgkm=0))
        a(I("v_cmp_eq_u32", VCC, total - 1, t1))
        a(I("s_cbranch_vccz", L("arr_" + site)))
        poll(lst, "nonce" + site, t0, F_NONCE, 1, 1)
        a(I("v_mov_b32", t1, word))
        st = I("buffer_store_dword", t0, t1, sFL, 0, mods="offen sc1"); st.nocount = True
        a(st)
        a(LABEL(L("arr_" + site)))
        a(I("s_mov_b64", EXEC, -1))
    def tail_srds(e):
        e(I("s_mul_i32", sT0, sB, 13 * 131072)); e(I("s_lshl_b32", sT1, sKG, 15)); e(I("s_add_u32", sT0, sT0, sT1))
        srd(e, sOa, pWS, sT0, (13 * 131072, sT1))
        e(I("s_lshl_b32", sT0, sB, 3)); e(I("s_add_u32", sT0, sT0, sNG))
        e(I("s_lshl_b32", sL2, sT0, 7))
        e(I("s_mul_i32", sT0, sT0, 4 * 53248)); e(I("s_add_u32", sT0, sT0, P_OFF))
        srd(e, sP, pWS, sT0, 4 * 53248)
        e(I("s_mul_i32", sT0, sB, 212992)); e(I("s_lshl_b32", sT1, sNG, 7)); e(I("s_add_u32", sT0, sT0, sT1))
        srd(e, sOUT, pOUT, sT0, (1703936, sT0))
        srd(e, sFL, pWS, FL_OFF, 65536)
        e(I("s_lshl_b32", sT0, sB, 2)); e(I("s_add_u32", sT0, sT0, sKG)); e(I("s_add_u32", sT0, sT0, 64))
        e(I("s_lshl_b32", sL1, sT0, 7))
    def lane_kv(lst, vKl, vVl, t0):
        a = lst.append
        a(I("v_and_b32", t0, 7, vLane)); a(I("v_mul_u32_u24", vKl, BLK, t0))
        a(I("v_bfe_u32", t0, vLane, 3, 1)); a(I("v_lshl_add_u32", vKl, t0, 8, vKl))
        a(I("v_lshrrev_b32", t0, 4, vLane)); a(I("v_lshl_add_u32", vKl, t0, 4, vKl))
        a(I("v_bfe_u32", t0, vLane, 2, 3)); a(I("v_mul_u32_u24", vVl, BLK, t0))
        a(I("v_lshrrev_b32", t0, 5, vLane)); a(I("v_lshl_add_u32", vVl, t0, 8, vVl))
        a(I("v_and_b32", t0, 3, vLane)); a(I("v_lshl_add_u32", vVl, t0, 3, vVl))
    def wo_rd_addr(e, dst, t0, t1):
        e(I("v_and_b32", t0, 3, vLane)); e(I("v_lshlrev_b32", t0, 3, t0))
        e(I("v_bfe_u32", t1, vLane, 3, 2)); e(I("v_mul_u32_u24", t1, BLK, t1)); e(I("v_add_u32", t0, t0, t1))
        e(I("v_bfe_u32", t1, vLane, 2, 1)); e(I("v_lshl_add_u32", t0, t1, 7, t0))
        e(I("v_bfe_u32", t1, vLane, 5, 1)); e(I("v_lshl_add_u32", dst, t1, 8, t0))
    def final_part(lst, tag, vA, vB, R):
        e = lst.append
        e(I("v_lshlrev_b32", vA, 4, vLane))
        e(I("v_and_b32", vB, 15, vLane)); e(I("v_lshlrev_b32", vB, 10, vB))
        e(I("v_lshrrev_b32", R[0], 4, vLane)); e(I("v_lshl_add_u32", vB, R[0], 3, vB))
        e(I("s_mul_i32", sT0, sKG, 12)); e(I("s_add_u32", sT0, sT0, sW))
        e(I("s_lshl_b32", sT1, sT0, 10))
        e(I("s_add_u32", sT2, sT1, 8192))
        e(I("s_cmp_lt_u32", sW, 4)); e(I("s_cselect_b32", sT3, 1, 0)); e(I("s_cmp_eq_u32", sKG, 3)); e(I("s_cselect_b32", sT3, 1, sT3))
        e(I("s_cmp_eq_u32", sT3, 1)); e(I("s_cselect_b32", sT2, sT2, OOB))
        poll(lst, "go" + tag, R.sub(0, 1), F_GO, 1, 1)
        STAMP(lst, 6)
        for i, so in enumerate((sT1, sT2)):
            for s in range(4):
                e(I("s_add_u32", sSO, so, s * 53248))
                e(I("buffer_load_dwordx4", R.sub((i * 4 + s) * 4, 4), vA, sP, sSO, mods="offen sc1"))
        for i in range(2):
            B = lambda s, r: R[(i * 4 + s) * 4 + r]
            for r in range(4):
                e(I("v_add_f32", B(0, r), B(0, r), B(1, r))); e(I("v_add_f32", B(2, r), B(2, r), B(3, r)))
            for r in range(4): e(I("v_add_f32", B(0, r), B(0, r), B(2, r)))
            e(I("v_cvt_pk_bf16_f32", B(0, 0), B(0, 0), B(0, 1))); e(I("v_cvt_pk_bf16_f32", B(0, 1), B(0, 2), B(0, 3)))
            if i: e(I("s_add_u32", sT0, sT0, 8))
            e(I("s_lshr_b32", sT1, sT0, 2)); e(I("s_lshl_b32", sT1, sT1, 14)); e(I("s_and_b32", sSO, sT0, 3)); e(I("s_lshl_b32", sSO, sSO, 5))
            e(I("s_add_u32", sSO, sSO, sT1))
            if i:
                e(I("s_cmp_eq_u32", sT3, 1)); e(I("s_cselect_b32", sSO, sSO, OOB))
            e(I("buffer_store_dwordx2", R.sub(i * 16, 2), vB, sOUT, sSO, mods=mods("offen", out_mods)))
        STAMP_OUT(lst, vA, vB)
        e(I("s_endpgm"))

    pre = []; e = pre.append
    e(LABEL(L("start")))
    e(I("s_cmp_ge_u32", S(2), 256))
    e(I("s_cbranch_scc1", L("end")))
    if "perm" in exp:
        e(I("s_mul_i32", S(2), S(2), 37)); e(I("s_add_u32", S(2), S(2), 11)); e(I("s_and_b32", S(2), S(2), 255))
    if "perm2" in exp:
        e(I("s_brev_b32", S(2), S(2))); e(I("s_lshr_b32", S(2), S(2), 24))
    e(I("s_load_dwordx16", S(28, 16), S(0, 2), 0))
    e(I("v_lshrrev_b32", V(2), 6, V(0)))
    e(I("v_and_b32", vLane, 63, V(0)))
    e(I("v_readfirstlane_b32", sW, V(2)))
    e(I("s_and_b32", sT0, S(2), 1)); e(I("s_lshl_b32", sT0, sT0, 2))
    e(I("s_lshr_b32", sT1, S(2), 6)); e(I("s_add_u32", sB, sT0, sT1))
    e(I("s_bfe_u32", sKG, S(2), (2 << 16) | 1)); e(I("s_lshl_b32", sT0, sKG, 3))
    e(I("s_bfe_u32", sNG, S(2), (3 << 16) | 3)); e(I("s_add_u32", sH, sT0, sNG))
    e(I("s_mov_b32", sC2T, 2 * TILE)); e(I("s_mov_b32", sBUD, 400000))
    e(I("s_lshl_b32", sROT, sT1, 1)); e(I("s_add_u32", sROT, sROT, sNG))
    if "norot" in exp: e(I("s_mov_b32", sROT, 0))
    e(I("v_lshlrev_b32", V(3), 2, vLane)); e(I("v_add_u32", V(3), SY, V(3))); e(I("v_mov_b32", V(4), 0))
    e(I("ds_write_b32", V(3), V(4)))
    e(I("v_mov_b32", vSY, SY))
    e(I("s_sub_u32", sHW, sW, 4)); e(I("s_and_b32", sLW, sW, 1))
    e(I("s_cmp_ge_u32", sW, 4))
    e(I("s_cbranch_scc1", L("helper")))

    vK, vV, vOr = V(2), V(3), V(4)
    vT0, vT1, vT2 = V(5), V(6), V(7)
    NEGM = [V(8 + 4 * t, 4) for t in range(3)]
    SB = [[[V(20 + ((e_ * 2 + sb) * 3 + t) * 4, 4) for t in range(3)] for sb in range(2)] for e_ in range(2)]
    vT3, vSYd, vF = V(68), V(69), V(70, 2)
    O = [[V(72 + (t * 8 + T) * 4, 4) for T in range(8)] for t in range(3)]
    Q = [[V(168 + (t * 4 + kk) * 4, 4) for kk in range(4)] for t in range(3)]
    LA_ = [A(4 * t, 4) for t in range(3)]
    ONES = A(12, 4)
    POOL = [A(16 + 4 * i, 4) for i in range(6)]
    XR = [[[V((20 if st == 0 else 168) + (h_ * 4 + t) * 4, 4) for t in range(4)] for h_ in range(2)] for st in range(2)]
    Q13A = [V(52, 4), V(56, 4)]
    W13 = [V(60, 4), V(64, 4)]
    WQF = [A(4 * T, 4) for T in range(8)]
    vXa = [V(8), V(9), V(10), V(11)]
    vWQ, vW13 = V(4), V(12)
    cq = []; e = cq.append
    if prio: e(I("s_setprio", prio))
    lane_kv(cq, vK, vV, vT0)
    e(I("v_lshrrev_b32", vT0, 5, vLane)); e(I("v_lshl_add_u32", vWQ, vT0, 8, vV))
    e(I("v_add_u32", vWQ, WQ_BASE, vWQ))
    e(I("s_lshl_b32", sT0, sW, 6)); e(I("v_add_u32", vW13, sT0, vWQ))
    e(I("v_and_b32", vT0, 3, vLane)); e(I("v_mul_u32_u24", vT0, BLK, vT0))
    e(I("v_bfe_u32", vT1, vLane, 2, 2)); e(I("v_lshl_add_u32", vT0, vT1, 7, vT0))
    e(I("v_lshrrev_b32", vT1, 4, vLane)); e(I("v_lshl_add_u32", vT0, vT1, 4, vT0))
    for t in range(3):
        e(I("s_mul_i32", sT0, sW, 3)); e(I("s_add_u32", sT0, sT0, t))
        e(I("s_lshr_b32", sT1, sT0, 1)); e(I("s_mul_i32", sT1, sT1, 4 * BLK))
        e(I("s_and_b32", sT0, sT0, 1)); e(I("s_lshl_b32", sT0, sT0, 9))
        e(I("s_add_u32", sT0, sT0, sT1)); e(I("s_add_u32", sT0, sT0, XB0))
        e(I("v_add_u32", vXa[t], sT0, vT0))
    e(I("v_and_b32", vT0, 1, vLane)); e(I("v_mul_u32_u24", vT0, BLK, vT0))
    e(I("v_bfe_u32", vT2, vLane, 1, 3)); e(I("v_lshl_add_u32", vT0, vT2, 7, vT0))
    e(I("v_lshl_add_u32", vT0, vT1, 4, vT0))
    e(I("v_add_u32", vXa[3], XB0 + 24 * BLK, vT0))
    e(I("s_lshl_b32", sT0, sW, 2)); e(I("s_add_u32", sT0, sT0, SY)); e(I("v_mov_b32", vSYd, sT0))
    e(I("s_mov_b32", sC2[0], f32bits(CSCALE))); e(I("s_mov_b32", sC2[1], f32bits(CSCALE)))
    e(WAIT(lgkm=0))
    STAMP(cq, 0)
    e(I("s_barrier"))
    if "fonly" in exp: e(I("s_endpgm"))
    for t in range(3):
        for T in range(8):
            for r in range(4): e(I("v_mov_b32", O[t][T][r], 0))
    for R in Q13A:
        for r in range(4): e(I("v_mov_b32", R[r], 0))
    tail_srds(e)
    def xreads(c, st):
        return [I("ds_read_b128", XR[st][h_][t], vXa[t], mods=f"offset:{h_ * 64}") for h_ in range(2) for t in range(4)]
    def wqreads(s, T):
        return [I("ds_read_b64_tr_b16", WQF[T].sub(2 * hh, 2), vWQ, mods=f"offset:{(s & 7) * WQ_CH + hh * 256 + T * 32}") for hh in range(2)]
    def w13reads(s):
        return [I("ds_read_b64_tr_b16", W13[x].sub(2 * hh, 2), vW13, mods=f"offset:{(s & 7) * WQ_CH + hh * 256 + x * 32}")
                for x in range(2) for hh in range(2)]
    def done_write(off):
        return [I("v_mov_b32", vF[0], sDN), I("ds_write_b32", vSYd, vF[0], mods=f"offset:{off}")]
    poll(cq, "cq0", vF, F_RDYF, 1, 1, sleep=tsl)
    cq.extend(xreads(0, 0))
    LAQ = 4
    for T in range(LAQ): cq.extend(wqreads(0, T))
    e(I("s_mov_b32", sDN, 2)); cq.extend(done_write(F_DONEF))
    e(I("s_mov_b32", sNEED, 2))
    e(I("s_mov_b32", sCNT, 0)); e(I("s_mov_b32", sKSL, 0)); e(I("s_mov_b32", sVD, XBSZ))
    STAMP(cq, 1, tail in (4, 5))
    e(LABEL(L("cq_loop")))
    mf = []; fixed = {}
    def fx(g, ins, cost=1): fixed.setdefault(g, []).append((ins, cost))
    for s in range(8):
        st = (s >> 1) & 1; h_ = s & 1
        base = len(mf)
        if h_ == 0:
            early, chk = check1(f"cq{s}", vF, F_RDYF + 4 * (((s >> 1) + 1) & 1), sNEED)
            fx(base + eq, early)
        for i, r in enumerate(w13reads(s)): fx(base + 3 * i + 2, r)
        for T in range(8):
            g0 = len(mf)
            for t in range(3):
                mf.append(I(MFMA, O[t][T], WQF[T], XR[st][h_][t], O[t][T]))
            if T in (5, 6):
                mf.append(I(MFMA, Q13A[T - 5], W13[T - 5], XR[st][h_][3], Q13A[T - 5]))
            f = s * 8 + T + LAQ
            s2, T2 = f >> 3, f & 7
            if T2 == 0 and h_ == 0:
                for x in chk: fx(g0, x, 0.5 if x.cls == "valu" else 0)
                fx(g0, I("s_add_u32", sNEED, sNEED, 1), 0)
                if tail in (4, 5):
                    tmp = [I("s_cmp_eq_u32", sCNT, tail - 4), I("s_cbranch_scc0", L(f"sk{s}"))]
                    STAMP(tmp, 2 + (s >> 1), True); tmp.append(LABEL(L(f"sk{s}")))
                    for x in tmp: fx(g0, x, 0)
            if T2 == 0 and h_ == 1:
                fx(g0 - 1, I("s_add_u32", sDN, sDN, 1), 0)
                for x in done_write(F_DONEF): fx(g0, x, 0.5)
            rr = wqreads(s2, T2)
            fx(g0 + (1 if T2 == 0 else 0), rr[0]); fx(g0 + (2 if T2 == 0 else 1), rr[1])
            if h_ == 0 and T == 1:
                for x in (I("s_add_u32", sKSL, sKSL, 1), I("s_cmp_ge_u32", sKSL, NXB), I("s_cselect_b32", sKD, -(NXB - 1) * XBSZ, sVD),
                          I("s_cselect_b32", sKSL, 0, sKSL)): fx(g0, x, 0)
            if h_ == 0 and T in (2, 3):
                for t_ in range(2): fx(g0 + 2, I("v_add_u32", vXa[2 * (T - 2) + t_], sKD, vXa[2 * (T - 2) + t_]), 0.5)
            if h_ == 0 and T >= 4:
                xr = xreads((s >> 1) + 1, 1 - st)
                fx(g0 + 2, xr[2 * (T - 4)]); fx(g0 + 2, xr[2 * (T - 4) + 1])
                if T == 7:
                    fx(g0 + 2, I("s_add_u32", sDN, sDN, 3), 0)
                    for x in done_write(F_DONEF): fx(g0 + 2, x, 0.5)
    cqb = sched(mf, fixed, [])
    cv = []; e = cv.append
    e(I("s_mov_b32", sDN, 1000)); cv.extend(done_write(F_DONEF))
    STAMP(cv, 2)
    if tail in (4, 5): STAMP(cv, 6, True)
    allp = [(Q13A[0], Q13A[1], Q13A[0])] + [(O[t][2 * kk], O[t][2 * kk + 1], Q[t][kk]) for kk in range(4) for t in range(3)]
    for X, Y, Z in allp:
        for R in (X, Y):
            e(I("v_pk_mul_f32", R.sub(0, 2), R.sub(0, 2), sC2)); e(I("v_pk_mul_f32", R.sub(2, 2), R.sub(2, 2), sC2))
        e(I("v_cvt_pk_bf16_f32", Z[0], X[0], X[1])); e(I("v_cvt_pk_bf16_f32", Z[1], X[2], X[3]))
        e(I("v_cvt_pk_bf16_f32", Z[2], Y[0], Y[1])); e(I("v_cvt_pk_bf16_f32", Z[3], Y[2], Y[3]))
    for X, Y, Z in allp:
        e(I("v_permlane32_swap_b32", Z[0], Z[2])); e(I("v_permlane32_swap_b32", Z[1], Z[3]))
    for X, Y, Z in allp:
        e(I("v_permlane16_swap_b32", Z[0], Z[2])); e(I("v_permlane16_swap_b32", Z[1], Z[3]))
    e(I("v_lshlrev_b32", vT0, 4, vLane))
    e(I("s_lshl_b32", sT0, sW, 10)); e(I("s_add_u32", sT0, sT0, Q13X))
    e(I("v_add_u32", vT0, sT0, vT0))
    e(I("ds_write_b128", vT0, Q13A[0]))
    e(I("s_mov_b32", sDN, 1001)); cv.extend(done_write(F_DONEF))
    zero = []
    for t in range(3):
        for T in range(8):
            for r in range(4): zero.append(I("v_mov_b32", O[t][T][r], 0))
    zero.append(I("v_mov_b32", vT3, 0x3F803F80))
    for t in range(3):
        for r in range(4): zero.append(I("v_accvgpr_write_b32", LA_[t][r], 0))
    for r in range(4): zero.append(I("v_accvgpr_write_b32", ONES[r], vT3))
    e(I("v_add_u32", vV, TILE, vV))
    e(I("s_mov_b32", sKSL, 0)); e(I("s_mov_b32", sVSL, 1)); e(I("s_mov_b32", sKD, 0))
    e(I("s_mov_b32", sCNT, 0)); e(I("s_mov_b32", sDN, 0))
    e(I("s_mov_b32", sNEED, 2)); e(I("s_mov_b32", sNEED2, 3))
    poll(cv, "k0", vF, F_RDYKV, 2, 1)
    def kread(buf, addr, uh, sb, kk):
        return I("ds_read_b128", buf, addr, mods=f"offset:{uh * 8 * BLK + sb * 512 + kk * 64}")
    def vreads(buf, uh, T):
        return [I("ds_read_b64_tr_b16", buf.sub(2 * hh, 2), vV, mods=f"offset:{uh * 8 * BLK + hh * 512 + T * 32}") for hh in range(2)]
    def qk_simple(lst, addr, uh, D, C):
        for sb in range(2):
            for kk in range(4): lst.append(kread(POOL[kk], addr, uh, sb, kk))
            for kk in range(4):
                for t in range(3):
                    c = D[sb][t] if kk else (0 if C is None else C[t])
                    lst.append(I(MFMA, D[sb][t], POOL[kk], Q[t][kk], c))
    def rowmax(lst, D, t, dst):
        a = lst.append
        x, y = D[0][t], D[1][t]
        a(I("v_max3_f32", dst, x[0], x[1], x[2])); a(I("v_max3_f32", dst, dst, x[3], y[0]))
        a(I("v_max3_f32", dst, dst, y[1], y[2])); a(I("v_max_f32", dst, dst, y[3]))
        xlane_max(lst, dst, vT1, vT2)
    def exps(D, t, sb): return [I("v_exp_f32", D[sb][t][r], D[sb][t][r]) for r in range(4)]
    def cvts(D, t):
        x, y = D[0][t], D[1][t]
        return [I("v_cvt_pk_bf16_f32", x[0], x[0], x[1]), I("v_cvt_pk_bf16_f32", x[1], x[2], x[3]),
                I("v_cvt_pk_bf16_f32", x[2], y[0], y[1]), I("v_cvt_pk_bf16_f32", x[3], y[2], y[3])]
    P8 = POOL + [A(0, 4), A(4, 4)]
    for i in range(8): e(kread(P8[i], vK, 0, i >> 2, i & 3))
    zq = list(zero)
    for i in range(8):
        for t in range(3):
            e(I(MFMA, SB[0][i >> 2][t], P8[i], Q[t][i & 3], SB[0][i >> 2][t] if i & 3 else 0))
            for _ in range(3):
                if zq and zq[0].op == "v_mov_b32": e(zq.pop(0))
    cv.extend(zq)
    for t in range(3):
        rowmax(cv, SB[0], t, vT0)
        e(I("v_sub_f32", NEGM[t][0], "0xc0e00000", vT0))
        for r in range(1, 4): e(I("v_mov_b32", NEGM[t][r], NEGM[t][0]))
        for sb in range(2):
            for r in range(4): e(I("v_add_f32", SB[0][sb][t][r], SB[0][sb][t][r], NEGM[t][0]))
    BUFSEQ = list(range(6)) * 2 + list(range(5)) * 4
    LAF = 4
    def frag_reads(f):
        f &= 31
        buf = POOL[BUFSEQ[f]]
        blk, i = f >> 3, f & 7
        if blk == 0: return [kread(buf, vK, 1, i >> 2, i & 3)]
        if blk == 1: return vreads(buf, 0, i)
        if blk == 2: return [kread(buf, vK, 0, i >> 2, i & 3)]
        return vreads(buf, 1, i)
    def exp_order(D):
        o = []
        for t in range(3): o += [(x, t) for x in exps(D, t, 0)]
        for t in range(3): o += [(x, t) for x in exps(D, t, 1)]
        return o
    for f in range(LAF): cv.extend(frag_reads(f))
    for x, t in exp_order(SB[0])[:NB]: e(x)
    STAMP(cv, 3)
    e(LABEL(L("c_loop")))
    body = []
    def blockA(par, fbase, extra):
        D = SB[1 - par]; Pn = SB[par]
        mf = []; fixed = {}
        for i in range(8):
            f = fbase + i; sb, kk = i >> 2, i & 3
            g0 = len(mf)
            for t in range(3):
                mf.append(I(MFMA, D[sb][t], POOL[BUFSEQ[f]], Q[t][kk], NEGM[t] if kk == 0 else D[sb][t]))
            for g, items in extra.items():
                if g == g0: fixed.setdefault(g, []).extend(items)
            for j, r in enumerate(frag_reads(f + LAF)): fixed.setdefault(g0 + j, []).append((r, 1))
        for g, items in extra.items():
            if g % 3: fixed.setdefault(g, []).extend(items)
        eo = exp_order(Pn)[NB:]
        qe = [(x, 2, 0) for x, t in eo]
        dep = {t: [x for x, tt in eo if tt == t] for t in range(3)}
        qs = []
        p = [Pn[0][t][r] for t in range(3) for r in range(4)]
        for t in range(3):
            for x in cvts(Pn, t): qs.append((x, 1, 0, dep[t]))
            if t == 0:
                qs.append((I("v_or3_b32", vOr, p[0], p[1], p[2]), 1, 0))
            elif t == 1:
                qs.append((I("v_or3_b32", vOr, vOr, p[3], p[4]), 1, 0))
                qs.append((I("v_or3_b32", vOr, vOr, p[5], p[6]), 1, 0))
            else:
                qs.append((I("v_or3_b32", vOr, vOr, p[7], p[8]), 1, 0))
                qs.append((I("v_or3_b32", vOr, vOr, p[9], p[10]), 1, 0))
                qs.append((I("v_or_b32", vOr, vOr, p[11]), 1, 0))
        qs.append((I("v_and_b32", vOr, 0x40004000, vOr), 1, 0))
        qs.append((I("v_cmp_ne_u32", VCC, 0, vOr), 1, 23))
        out = sched(mf, fixed, [qe, qs])
        if "norare" not in exp: out.append(I("s_cbranch_vccnz", L(f"c_rare{par}")))
        out.append(LABEL(L(f"c_ret{par}")))
        return out
    def blockB(par, fbase, extra):
        Pn = SB[par]; Dn = SB[1 - par]
        mf = []; fixed = {}
        for t in range(3):
            mf.append(I(MFMA, LA_[t], ONES, Pn[0][t], LA_[t]))
        for g, items in extra.items():
            if g < 3 or g % 3: fixed.setdefault(g, []).extend(items)
        for i in range(8):
            f = fbase + i
            g0 = len(mf)
            for t in range(3):
                mf.append(I(MFMA, O[t][i], POOL[BUFSEQ[f]], Pn[0][t], O[t][i]))
            for g, items in extra.items():
                if g == g0: fixed.setdefault(g, []).extend(items)
            for j, r in enumerate(frag_reads(f + LAF)): fixed.setdefault(g0 + j, []).append((r, 1))
        qe = [(x, 2, 0 if k < 12 else 4) for k, (x, t) in enumerate(exp_order(Dn)[:NB])]
        return sched(mf, fixed, [qe])
    def slot_adv(sSL, sD):
        return [I("s_add_u32", sSL, sSL, 2), I("s_cmp_ge_u32", sSL, NSLOT),
                I("s_cselect_b32", sD, (2 - NSLOT) * TILE, sC2T), I("s_cselect_b32", sT0, NSLOT, 0),
                I("s_sub_u32", sSL, sSL, sT0)]
    c1 = lambda lst: [(x, 0.5 if x.cls == "valu" else (1 if x.cls.startswith("lds") else 0)) for x in lst]
    eV, cV = check2("cv", vF, F_RDYKV, sNEED)
    eK, cK = check2("ck", vF, F_RDYKV, sNEED2)
    body += blockA(0, 0, {4: c1([eV]), 12: c1(cV)})
    body += blockB(0, 8, {0: c1(slot_adv(sKSL, sKD)), 2: c1([I("v_add_u32", vK, sKD, vK)]), 5: c1([eK]), 15: c1(cK)})
    body += blockA(1, 16, {})
    nx = [I("s_add_u32", sNEED, sNEED, 2), I("s_add_u32", sNEED2, sNEED2, 2), I("s_min_u32", sNEED2, sNEED2, 16),
          I("s_add_u32", sDN, sDN, 2)]
    body += blockB(1, 24, {16: c1(slot_adv(sVSL, sVD) + nx), 17: c1(done_write(F_DONEKV)), 20: c1([I("v_add_u32", vV, sVD, vV)])})
    def filt(lst):
        o = []
        for x in lst:
            if "noexp" in exp and x.op == "v_exp_f32": continue
            if "nolds" in exp and x.cls == "ldsrd": continue
            if "novalu" in exp and x.cls == "valu" and x.op != "v_add_u32": continue
            if "nomfma" in exp and x.cls == "mfma": continue
            o.append(x)
        return o
    body = filt(body); cqb = filt(cqb)
    cqb += [I("s_add_u32", sCNT, sCNT, 1), I("s_cmp_lt_u32", sCNT, 2), I("s_cbranch_scc1", L("cq_loop"))]
    body += [I("s_add_u32", sCNT, sCNT, 1), I("s_cmp_lt_u32", sCNT, 8), I("s_cbranch_scc1", L("c_loop"))]
    ce = []; e = ce.append
    STAMP(ce, 4); TSTAMP(ce, 1)
    vWr, vOo = V(2), V(3)
    ACC = [[V(20 + (t * 4 + T) * 4, 4) for T in range(4)] for t in range(3)]
    SETS = [168, 72, 120]
    OF = [[[V(SETS[s] + (t * 4 + kk) * 4, 4) for kk in range(4)] for t in range(3)] for s in range(3)]
    WF = [A(4 * i, 4) for i in range(8)]
    e(I("v_lshlrev_b32", vOo, 4, vLane)); e(I("s_mul_i32", sT0, sW, 3 * 131072)); e(I("v_add_u32", vOo, sT0, vOo))
    e(I("s_lshl_b32", sT1, sNG, 12))
    vR = [V(8 + 2 * t, 2) for t in range(3)]
    for t in range(3): e(I("v_accvgpr_read_b32", vR[t][0], LA_[t][0]))
    for t in range(3): e(I("v_rcp_f32", vR[t][0], vR[t][0]))
    for t in range(3): e(I("v_mov_b32", vR[t][1], vR[t][0]))
    for t in range(3):
        for kk in range(4):
            X, Y, Z = O[t][2 * kk], O[t][2 * kk + 1], OF[0][t][kk]
            for R in (X, Y):
                e(I("v_pk_mul_f32", R.sub(0, 2), R.sub(0, 2), vR[t])); e(I("v_pk_mul_f32", R.sub(2, 2), R.sub(2, 2), vR[t]))
            e(I("v_cvt_pk_bf16_f32", Z[0], X[0], X[1])); e(I("v_cvt_pk_bf16_f32", Z[1], X[2], X[3]))
            e(I("v_cvt_pk_bf16_f32", Z[2], Y[0], Y[1])); e(I("v_cvt_pk_bf16_f32", Z[3], Y[2], Y[3]))
            e(I("buffer_store_dwordx4", Z, vOo, sOa, sT1, mods=f"offen offset:{kk*1024} sc1"))
        e(I("s_add_u32", sT1, sT1, 131072))
    wo_rd_addr(e, vWr, vT0, vT1)
    e(I("v_add_u32", V(4), 61440, vWr)); e(I("v_add_u32", V(7), 122880, vWr))
    def oloads(g):
        so = [sT1, sSO, sT3]
        r = [I("s_add_u32", sT1, sNG, g), I("s_and_b32", sT1, sT1, 7), I("s_lshl_b32", sT1, sT1, 12),
             I("s_add_u32", sSO, sT1, 131072), I("s_add_u32", sT3, sT1, 262144)]
        for kk in range(4):
            for t in range(3):
                r.append(I("buffer_load_dwordx4", OF[g % 3][t][kk], vOo, sOa, so[t], mods=f"offen offset:{kk*1024}"))
        return r
    def wreads(g, kk, T):
        buf = WF[(kk & 1) * 4 + T]
        base = WSLOT[g] * TILE + kk * 4 * BLK + T * 32
        a_, off = [vWr, V(4), V(7)][base // 61440], base % 61440
        return [I("ds_read_b64_tr_b16", buf.sub(2 * hh, 2), a_, mods=f"offset:{off + hh*512}") for hh in range(2)]
    def head_block(g, ol, first=True, chain=False):
        nonlocal ce
        if first:
            poll(ce, f"wo{g}", vF, F_RDYWO + 4 * (g & 1), 1, (g >> 1) + 1, sleep=tsl)
            for T in range(4): ce.extend(wreads(g, 0, T))
        mf = []; fixed = {}
        fa = lambda gp, xs: fixed.setdefault(gp, []).extend(c1(xs))
        start = 1
        if chain and ol:
            eo, co = check1(f"po{g}", vF.sub(0, 1), F_RDYO, g + 2)
            fa(2, [eo]); fa(11, co); start = 12
        if chain and g < 7:
            ew, cw = check1(f"pw{g}", vF.sub(1, 1), F_RDYWO + 4 * ((g + 1) & 1), ((g + 1) >> 1) + 1)
            fa(20, [ew]); fa(35, cw)
        for kk in range(4):
            for T in range(4):
                g0 = len(mf)
                for t in range(3):
                    mf.append(I(MFMA, ACC[t][T], WF[(kk & 1) * 4 + T], OF[g % 3][t][kk], 0 if (g == 0 and kk == 0) else ACC[t][T]))
                if kk < 3 or (chain and g < 7):
                    rr = wreads(g, kk + 1, T) if kk < 3 else wreads(g + 1, 0, T)
                    fixed.setdefault(g0, []).append((rr[0], 1)); fixed.setdefault(g0 + 1, []).append((rr[1], 1))
        ce.extend(sched(mf, fixed, [[(x, 0.5 if x.cls == "salu" else 1, start) for x in ol]]))
    head_block(0, [])
    e(I("s_lshl_b32", sT0, sNG, 2)); e(I("s_add_u32", sT2, sT0, sL1))
    e(I("ds_read_b32", vF[0], vSY, mods=f"offset:{F_RDYO}")); e(WAIT(lgkm=0))
    e(I("v_cmp_gt_u32", VCC, 2, vF[0]))
    e(I("s_cbranch_vccnz", L("c_late")))
    ceA = oloads(1) + oloads(2)
    arrive(ceA, "c1a", vT0, vT1, F_CNT1, 6, sT2, vm=24)
    ceA.append(I("s_branch", L("c_go")))
    ceB = [LABEL(L("c_late"))]
    arrive(ceB, "c1b", vT0, vT1, F_CNT1, 6, sT2)
    TSTAMP(ceB, 2)
    poll(ceB, "o1", vF, F_RDYO, 1, 1, sleep=tsl); ceB.extend(oloads(1))
    poll(ceB, "o2", vF, F_RDYO, 1, 2, sleep=tsl); ceB.extend(oloads(2))
    ce1 = ce
    ce = [LABEL(L("c_go"))]; e = ce.append
    STAMP(ce, 5); TSTAMP(ce, 3)
    for g in range(1, 8):
        if not p3c and g + 2 < 8: poll(ce, f"o{g+2}", vF, F_RDYO, 1, g + 2, sleep=tsl)
        head_block(g, oloads(g + 2) if g + 2 < 8 else [], first=(g == 1 or not p3c), chain=bool(p3c))
    TSTAMP(ce, 4)
    e(I("v_lshlrev_b32", vT0, 4, vLane))
    e(I("s_mul_i32", sT0, sKG, 53248)); e(I("s_mul_i32", sT1, sW, 12288)); e(I("s_add_u32", sT0, sT0, sT1))
    for t in range(3):
        for T in range(4):
            e(I("buffer_store_dwordx4", ACC[t][T], vT0, sP, sT0, mods=f"offen offset:{T*1024} sc1"))
        e(I("s_add_u32", sT0, sT0, 4096))
    e(I("s_lshl_b32", sT0, sKG, 2)); e(I("s_add_u32", sT2, sT0, sL2))
    arrive(ce, "c2", vT0, vT1, F_CNT2, 8, sT2)
    TSTAMP(ce, 5)
    final_part(ce, "c", vT0, vT1, V(72, 32))
    rare = []
    for par in range(2):
        r_ = []; e = r_.append
        e(LABEL(L(f"c_rare{par}")))
        e(WAIT(lgkm=0)); e(I("s_nop", 15))
        if par == 0:
            aN, uhN, aN1, uhN1 = vK, 0, vK, 1
        else:
            e(I("v_subrev_u32", vT3, sKD, vK))
            aN, uhN, aN1, uhN1 = vT3, 1, vK, 0
        Dn, Dn1 = SB[par], SB[1 - par]
        qk_simple(r_, aN, uhN, Dn, None)
        for t in range(3):
            rowmax(r_, Dn, t, vT0)
            e(I("v_add_f32", vT0, "0x40e00000", vT0))
            e(I("v_max_f32_e64", vT0, vT0, "-" + str(NEGM[t][0])))
            e(I("v_sub_f32_e64", vT1, "-" + str(NEGM[t][0]), vT0))
            e(I("v_exp_f32", vT1, vT1))
            for r in range(4): e(I("v_sub_f32", NEGM[t][r], 0, vT0))
            for T in range(8):
                for r in range(4): e(I("v_mul_f32", O[t][T][r], O[t][T][r], vT1))
            for r in range(4):
                e(I("v_accvgpr_read_b32", vT2, LA_[t][r])); e(I("v_mul_f32", vT2, vT2, vT1)); e(I("v_accvgpr_write_b32", LA_[t][r], vT2))
            for sb in range(2):
                for r in range(4): e(I("v_add_f32", Dn[sb][t][r], Dn[sb][t][r], NEGM[t][0]))
            r_.extend(exps(Dn, t, 0)); r_.extend(exps(Dn, t, 1)); r_.extend(cvts(Dn, t))
        qk_simple(r_, aN1, uhN1, Dn1, NEGM)
        fb = 8 if par == 0 else 24
        for f in range(fb, fb + LAF): r_.extend(frag_reads(f))
        e(WAIT(lgkm=0)); e(I("s_nop", 15))
        e(I("s_branch", L(f"c_ret{par}")))
        rare.append(r_)

    hT0, hT1, hT2, hT3 = V(5), V(6), V(7), V(4)
    hP = V(8, 8)
    hSYw, hVal, hIss = V(16), V(17), V(18)
    hp = []; e = hp.append
    e(LABEL(L("helper")))
    if "noload" in exp: e(I("s_endpgm"))
    e(I("s_cmp_ge_u32", sHW, 2))
    e(I("s_cbranch_scc1", L("h23")))
    h01 = []; e = h01.append
    sX, sWQ = sA, sBd
    hXo, hXo2, hWo = [V(26 + m) for m in range(4)], [V(20), V(21)], [V(22 + m) for m in range(4)]
    e(I("v_and_b32", hT0, 7, vLane)); e(I("v_lshlrev_b32", hT0, 4, hT0)); e(I("v_lshrrev_b32", hT1, 3, vLane))
    e(I("v_lshl_add_u32", hXo[3], hT1, 12, hT0)); e(I("v_lshl_add_u32", hXo2[1], hT1, 11, hT0))
    for m in range(3): e(I("v_add_u32", hXo[m], 96 - 32 * m, hXo[3]))
    e(I("v_add_u32", hXo2[1], 192 * 1024 + 64, hXo2[1])); e(I("v_add_u32", hXo2[0], 32, hXo2[1]))
    e(I("v_and_b32", hT0, 15, vLane)); e(I("v_lshlrev_b32", hT0, 4, hT0))
    e(I("v_bfe_u32", hT1, vLane, 4, 1)); e(I("v_lshl_add_u32", hT0, hT1, 15, hT0))
    e(I("v_lshrrev_b32", hT1, 5, vLane)); e(I("v_lshl_add_u32", hWo[0], hT1, 17, hT0))
    for m in range(1, 4): e(I("v_add_u32", hWo[m], m * (8192 - BLK), hWo[0]))
    e(I("s_lshl_b32", sT0, sLW, 2)); e(I("s_add_u32", sT0, sT0, SY + F_RDYF)); e(I("v_mov_b32", hSYw, sT0))
    e(WAIT(lgkm=0))
    e(I("s_mul_i32", sT0, sB, 212992)); e(I("s_add_u32", sX[0], pX[0], sT0)); e(I("s_addc_u32", sX[1], pX[1], 0))
    e(I("s_sub_u32", sX[0], sX[0], 96)); e(I("s_subb_u32", sX[1], sX[1], 0))
    e(I("s_mov_b32", sX[2], 212992 + 96)); e(I("s_mov_b32", sX[3], 0x20000))
    e(I("s_lshl_b32", sT0, sH, 8)); srd(e, sWQ, pWQ, sT0, (4194304, sT0))
    def x_issue(lst, c):
        a = lst.append
        a(I("s_add_u32", sSO, sROT, c)); a(I("s_and_b32", sSO, sSO, 7)); a(I("s_lshl_b32", sSO, sSO, 7))
        if "nox" in exp: a(I("s_mov_b32", sSO, OOB))
        for G in range(6):
            a(I("s_mov_b32", M0, XB0 + (c % NXB) * XBSZ + 4 * G * BLK))
            a(I("s_add_u32", sT0, sSO, G * 32768))
            for m in range(4):
                a(I("buffer_load_dwordx4", hXo[m], sX, sT0, mods=mods(f"offen offset:{m*BLK}", f_mods, "lds")))
        a(I("s_mov_b32", M0, XB0 + (c % NXB) * XBSZ + 24 * BLK))
        a(I("s_nop", 0))
        for m in range(2):
            a(I("buffer_load_dwordx4", hXo2[m], sX, sSO, mods=mods(f"offen offset:{m*BLK}", f_mods, "lds")))
    def w_issue(lst, s_):
        a = lst.append
        a(I("s_add_u32", sSO, sROT, s_ >> 1)); a(I("s_and_b32", sSO, sSO, 7)); a(I("s_lshl_b32", sSO, sSO, 19))
        if s_ & 1: a(I("s_add_u32", sSO, sSO, 1 << 18))
        if "nowq" in exp: a(I("s_mov_b32", sSO, OOB))
        for hl in range(2):
            a(I("s_mov_b32", M0, WQ_BASE + (s_ & 7) * WQ_CH + hl * 4 * BLK))
            a(I("s_add_u32", sT0, sSO, hl * 65536))
            for m in range(4):
                a(I("buffer_load_dwordx4", hWo[m], sWQ, sT0, mods=mods(f"offen offset:{m*BLK}", f_mods, "lds")))
    def pub(lst, val):
        lst.append(WAIT(vm=0)); lst.append(I("v_mov_b32", hVal, val)); lst.append(I("ds_write_b32", hSYw, hVal))
    STAMP(h01, 0)
    e(I("s_cmp_eq_u32", sLW, 0)); e(I("s_cbranch_scc0", L("f1")))
    fs = [[], [LABEL(L("f1")), I("s_barrier")] + ([I("s_sleep", h1d)] if h1d else [])]
    for lw in range(2):
        f_ = fs[lw]
        for c in range(lw, 9, 2):
            if c >= 4: poll(f_, f"hw{c}", hP, F_DONEF, 4, 4 * c - 12, sleep=fsl)
            for s_ in (2 * c - 1, 2 * c):
                if 0 <= s_ < 16: w_issue(f_, s_)
            if NXB <= c < 8:
                if tail == 2: STAMP(f_, c >> 1, True)
                if tail == 3 and c in (4, 5): STAMP(f_, 1, True)
                poll(f_, f"hx{c}", hP, F_DONEF, 4, 4 * (c - NXB) + 1, sleep=fsl)
                if tail == 3 and c in (4, 5): STAMP(f_, 2, True)
                if tail == 3 and c in (6, 7): STAMP(f_, 5, True)
            if c < 8: x_issue(f_, c)
            if c == 0: f_.append(I("s_barrier"))
            if c == 8 - kvearly:
                f_.append(I("v_mov_b32", hVal, 1)); f_.append(I("ds_write_b32", vSY, hVal, mods=f"offset:{F_FISS}"))
            if tail == 3 and c in (4, 5): STAMP(f_, 3, True)
            pub(f_, c + 1)
            if tail == 3 and c in (4, 5): STAMP(f_, 4, True)
        if lw == 0: f_.append(I("s_branch", L("f2")))
    h01a = h01
    h01 = [LABEL(L("f2"))]; e = h01.append
    STAMP(h01, 1)
    if "fonly" in exp:
        STAMP_OUT(h01, hT0, hT1); e(I("s_endpgm"))
    tail_srds(e)
    srd(e, sCN, pDBG, 0, 256)
    e(I("s_cmp_eq_u32", sLW, 0)); e(I("s_cbranch_scc0", L("nononce")))
    e(I("s_lshl_b32", sT0, sB, 5)); e(I("v_mov_b32", hT0, sT0))
    e(I("s_mov_b64", EXEC, 1))
    e(LABEL(L("nn")))
    e(I("buffer_load_dword", hP[0], hT0, sCN, 0, mods="offen sc1")); e(WAIT(vm=0))
    e(I("v_cmp_eq_u32", VCC, 0, hP[0]))
    e(I("s_cbranch_vccz", L("nnok")))
    h01.extend(spin_tail(L("nn"), 4))
    e(LABEL(L("nnok")))
    e(I("ds_write_b32", vSY, hP[0], mods=f"offset:{F_NONCE}"))
    e(I("s_mov_b64", EXEC, -1))
    e(LABEL(L("nononce")))
    hK, hV = V(2), V(3)
    hNEG = V(20, 4); hS = [V(24, 4), V(28, 4)]; hL = V(32, 4)
    hO = [V(36 + 4 * T, 4) for T in range(8)]
    hQ = [V(68 + 4 * kk, 4) for kk in range(4)]
    hKF = [[V(84 + (sb * 4 + kk) * 4, 4) for kk in range(4)] for sb in range(2)]
    hVF = [V(116 + 4 * T, 4) for T in range(8)]
    hONES = V(148, 4)
    lane_kv(h01, hK, hV, hT0)
    e(I("s_mul_i32", sT0, sLW, 8 * BLK)); e(I("v_add_u32", hK, sT0, hK))
    e(I("s_add_u32", sT0, sT0, TILE)); e(I("v_add_u32", hV, sT0, hV))
    for T in range(8):
        for r in range(4): e(I("v_mov_b32", hO[T][r], 0))
    for r in range(4):
        e(I("v_mov_b32", hL[r], 0)); e(I("v_mov_b32", hNEG[r], "0x7f000000")); e(I("v_mov_b32", hONES[r], 0x3F803F80))
    e(I("s_lshl_b32", sT0, sLW, 2)); e(I("s_add_u32", sT0, sT0, SY + F_DONEKV + 16)); e(I("v_mov_b32", hSYw, sT0))
    poll(h01, "hq13", hP, F_DONEF, 4, 1001, sleep=slp)
    STAMP(h01, 3)
    e(I("v_lshlrev_b32", hT0, 4, vLane)); e(I("v_add_u32", hT0, Q13X, hT0))
    for kk in range(4): e(I("ds_read_b128", hQ[kk], hT0, mods=f"offset:{kk*1024}"))
    e(I("s_mov_b32", sNEED, 2)); e(I("s_mov_b32", sKSL, 0))
    e(LABEL(L("h_loop")))
    hb = []; e = hb.append
    poll(hb, "hkv", hP, F_RDYKV, 2, sNEED, sleep=slp)
    for sb in range(2):
        for kk in range(4): e(I("ds_read_b128", hKF[sb][kk], hK, mods=f"offset:{sb*512 + kk*64}"))
    for T in range(8):
        for hh in range(2): e(I("ds_read_b64_tr_b16", hVF[T].sub(2 * hh, 2), hV, mods=f"offset:{hh*512 + T*32}"))
    e(I("v_mov_b32", hVal, sNEED)); e(I("ds_write_b32", hSYw, hVal))
    for sb in range(2):
        for kk in range(4):
            e(I(MFMA, hS[sb], hKF[sb][kk], hQ[kk], hNEG if kk == 0 else hS[sb]))
    e(I("s_add_u32", sKSL, sKSL, 2)); e(I("s_cmp_ge_u32", sKSL, NSLOT))
    e(I("s_cselect_b32", sKD, (2 - NSLOT) * TILE, sC2T)); e(I("s_cselect_b32", sT0, NSLOT, 0)); e(I("s_sub_u32", sKSL, sKSL, sT0))
    e(I("s_add_u32", sT0, sKSL, 1)); e(I("s_cmp_ge_u32", sT0, NSLOT)); e(I("s_cselect_b32", sT0, 0, sT0))
    e(I("s_cmp_lt_u32", sT0, 2)); e(I("s_cselect_b32", sVD, (2 - NSLOT) * TILE, sC2T))
    def hsoft(lst):
        a = lst.append
        for sb in range(2):
            for r in range(4): a(I("v_exp_f32", hS[sb][r], hS[sb][r]))
        x, y = hS
        a(I("v_cvt_pk_bf16_f32", x[0], x[0], x[1])); a(I("v_cvt_pk_bf16_f32", x[1], x[2], x[3]))
        a(I("v_cvt_pk_bf16_f32", x[2], y[0], y[1])); a(I("v_cvt_pk_bf16_f32", x[3], y[2], y[3]))
    hsoft(hb)
    e(I("v_or3_b32", hT0, hS[0][0], hS[0][1], hS[0][2])); e(I("v_or_b32", hT0, hT0, hS[0][3]))
    e(I("v_and_b32", hT0, 0x40004000, hT0))
    e(I("v_cmp_ne_u32", VCC, 0, hT0))
    if "norare" not in exp: e(I("s_cbranch_vccnz", L("h_rare")))
    e(LABEL(L("h_ret")))
    e(I(MFMA, hL, hONES, hS[0], hL))
    for T in range(8): e(I(MFMA, hO[T], hVF[T], hS[0], hO[T]))
    e(I("v_add_u32", hK, sKD, hK)); e(I("v_add_u32", hV, sVD, hV))
    e(I("s_add_u32", sNEED, sNEED, 2)); e(I("s_cmp_le_u32", sNEED, 16))
    e(I("s_cbranch_scc1", L("h_loop")))
    if "noH13" in exp: hb = [x for x in hb if not (x.cls == "mfma" or x.op in ("v_exp_f32", "v_cvt_pk_bf16_f32", "s_cbranch_vccnz") or x.op.startswith("ds_read_b64_tr") or (x.op == "ds_read_b128"))]
    hf = []; e = hf.append
    STAMP(hf, 4); TSTAMP(hf, 1)
    e(I("v_lshlrev_b32", hT0, 4, vLane))
    e(I("s_cmp_eq_u32", sLW, 0)); e(I("s_cbranch_scc0", L("hf1")))
    e(I("v_add_u32", hT1, HXA, hT0))
    for x in range(4): e(I("ds_write_b128", hT1, hO[4 + x], mods=f"offset:{x*1024}"))
    e(I("v_add_u32", hT1, Q13X, hT0))
    e(I("s_branch", L("hf2")))
    hf1 = []; e = hf1.append
    e(LABEL(L("hf1")))
    e(I("v_add_u32", hT1, Q13X, hT0))
    for x in range(4): e(I("ds_write_b128", hT1, hO[x], mods=f"offset:{x*1024}"))
    for x in range(4):
        for r in range(4): e(I("v_mov_b32", hO[x][r], hO[4 + x][r]))
    e(I("v_add_u32", hT1, HXA, hT0))
    hf2 = []; e = hf2.append
    e(LABEL(L("hf2")))
    e(I("v_lshlrev_b32", hT2, 3, vLane))
    e(I("s_lshl_b32", sT0, sLW, 9)); e(I("s_add_u32", sT0, sT0, HML))
    e(I("v_add_u32", hT3, sT0, hT2))
    e(I("v_mov_b32", hNEG[1], hL[0]))
    e(I("ds_write_b64", hT3, hNEG.sub(0, 2)))
    e(I("s_lshl_b32", sT0, sLW, 2)); e(I("s_add_u32", sT0, sT0, SY + F_HFIN)); e(I("v_mov_b32", hSYw, sT0))
    e(I("v_mov_b32", hVal, 1)); e(I("ds_write_b32", hSYw, hVal))
    poll(hf2, "hfin", hP, F_HFIN, 2, 1, sleep=0)
    ML = V(68, 2)
    PO = [V(84 + x * 4, 4) for x in range(4)]
    e(I("s_xor_b32", sT0, sLW, 1)); e(I("s_lshl_b32", sT0, sT0, 9)); e(I("s_add_u32", sT0, sT0, HML))
    e(I("v_add_u32", hT2, sT0, hT2))
    e(I("ds_read_b64", ML, hT2))
    for x in range(4): e(I("ds_read_b128", PO[x], hT1, mods=f"offset:{x*1024}"))
    e(I("v_min_f32", hT2, ML[0], hNEG[0]))
    e(I("v_sub_f32", ML[0], hT2, ML[0])); e(I("v_exp_f32", ML[0], ML[0]))
    e(I("v_sub_f32", hNEG[0], hT2, hNEG[0])); e(I("v_exp_f32", hNEG[0], hNEG[0]))
    e(I("v_mul_f32", hT3, ML[0], ML[1])); e(I("v_fmac_f32", hT3, hNEG[0], hNEG[1]))
    e(I("v_rcp_f32", hT3, hT3))
    e(I("v_mul_f32", ML[0], ML[0], hT3)); e(I("v_mul_f32", hNEG[0], hNEG[0], hT3))
    for x in range(4):
        for r in range(4):
            e(I("v_mul_f32", hO[x][r], hO[x][r], hNEG[0]))
            e(I("v_fmac_f32", hO[x][r], PO[x][r], ML[0]))
    e(I("s_lshl_b32", sT0, sLW, 11)); e(I("s_lshl_b32", sT1, sNG, 12)); e(I("s_add_u32", sT0, sT0, sT1)); e(I("s_add_u32", sT0, sT0, 12 * 131072))
    for j in range(2):
        X, Y = hO[2 * j], hO[2 * j + 1]
        e(I("v_cvt_pk_bf16_f32", X[0], X[0], X[1])); e(I("v_cvt_pk_bf16_f32", X[1], X[2], X[3]))
        e(I("v_cvt_pk_bf16_f32", X[2], Y[0], Y[1])); e(I("v_cvt_pk_bf16_f32", X[3], Y[2], Y[3]))
        e(I("buffer_store_dwordx4", X, hT0, sOa, sT0, mods=f"offen offset:{j*1024} sc1"))
    e(I("s_lshl_b32", sT0, sNG, 2)); e(I("s_add_u32", sT2, sT0, sL1))
    arrive(hf2, "h1", hT0, hT1, F_CNT1, 6, sT2)
    TSTAMP(hf2, 2)
    e(I("s_cmp_eq_u32", sLW, 1)); e(I("s_cbranch_scc0", L("h_p3")))
    poll(hf2, "wn1", hT2, F_NONCE, 1, 1)
    e(I("s_add_u32", sT0, sNG, 1))
    e(I("v_add_u32", hT1, sT0, vLane)); e(I("v_and_b32", hT1, 7, hT1)); e(I("v_lshlrev_b32", hT1, 2, hT1)); e(I("v_add_u32", hT1, sL1, hT1))
    e(I("s_mov_b64", EXEC, 127))
    e(LABEL(L("w1")))
    e(I("buffer_load_dword", hT0, hT1, sFL, 0, mods="offen sc1")); e(WAIT(vm=0))
    e(I("v_cmp_ne_u32", VCC, hT0, hT2))
    e(I("s_nop", 2)); e(I("s_or_b32", sT0, "vcc_lo", 0x80)); e(I("s_ff1_i32_b32", sT0, sT0))
    e(I("v_mov_b32", hT0, sT0)); e(I("ds_write_b32", vSY, hT0, mods=f"offset:{F_RDYO}"))
    e(I("s_cmp_eq_u32", sT0, 7)); e(I("s_cbranch_scc1", L("w1ok")))
    hf2.extend(spin_tail(L("w1"), 2))
    e(LABEL(L("w1ok")))
    e(I("s_mov_b64", EXEC, -1))
    e(I("s_branch", L("h_p3")))
    hr = []; e = hr.append
    e(LABEL(L("h_rare")))
    e(I("s_nop", 15))
    for sb in range(2):
        for kk in range(4):
            e(I(MFMA, hS[sb], hKF[sb][kk], hQ[kk], 0 if kk == 0 else hS[sb]))
    x, y = hS
    e(I("v_max3_f32", hT0, x[0], x[1], x[2])); e(I("v_max3_f32", hT0, hT0, x[3], y[0]))
    e(I("v_max3_f32", hT0, hT0, y[1], y[2])); e(I("v_max_f32", hT0, hT0, y[3]))
    xlane_max(hr, hT0, hT1, hT2)
    e(I("v_add_f32", hT0, "0x40e00000", hT0))
    e(I("v_max_f32_e64", hT0, hT0, "-" + str(hNEG[0])))
    e(I("v_sub_f32_e64", hT1, "-" + str(hNEG[0]), hT0))
    e(I("v_exp_f32", hT1, hT1))
    for r in range(4): e(I("v_sub_f32", hNEG[r], 0, hT0))
    for T in range(8):
        for r in range(4): e(I("v_mul_f32", hO[T][r], hO[T][r], hT1))
    for r in range(4): e(I("v_mul_f32", hL[r], hL[r], hT1))
    for sb in range(2):
        for r in range(4): e(I("v_add_f32", hS[sb][r], hS[sb][r], hNEG[0]))
    hsoft(hr)
    e(I("s_nop", 3))
    e(I("s_branch", L("h_ret")))
    h23 = []; e = h23.append
    sK, sV = sA, sBd
    hG, hD, hDst = V(20), V(21), V(22)
    RB = [V(24 + 32 * b, 32) for b in range(5)] + [A(0, 32)] + ([] if look else [V(184, 28 + 4)])
    NRB = len(RB)
    e(LABEL(L("h23")))
    e(I("v_lshlrev_b32", hG, 4, vLane)); e(I("s_lshl_b32", sT0, sLW, 13)); e(I("v_add_u32", hG, sT0, hG))
    e(I("s_lshl_b32", sT0, sB, 5)); e(I("s_add_u32", sT0, sT0, sH)); e(I("s_lshl_b32", sT0, sT0, 17))
    e(WAIT(lgkm=0))
    srd(e, sK, pK, sT0, 131072); srd(e, sV, pV, sT0, 131072)
    nwr = [0]
    vW4 = [A(36), A(37), A(38), A(39)]
    vW4 = [V(212), V(213), V(214), V(215)]
    def early_tail():
        e(I("v_and_b32", hT0, 7, vLane)); e(I("v_lshlrev_b32", hT0, 4, hT0))
        e(I("v_bfe_u32", hT1, vLane, 3, 1)); e(I("v_lshl_add_u32", hT0, hT1, 10, hT0))
        e(I("v_lshrrev_b32", hT1, 4, vLane)); e(I("v_lshl_add_u32", vW4[0], hT1, 13, hT0))
        for b in range(1, 4): e(I("v_add_u32", vW4[b], b * 992, vW4[0]))
        if touch:
            e(I("s_and_b32", sT1, sB, 3)); e(I("s_lshl_b32", sT1, sT1, 1)); e(I("s_add_u32", sT1, sT1, sLW)); e(I("s_lshl_b32", sT1, sT1, 17))
            for kk in range(4):
                e(I("s_add_u32", sSO, sT1, kk * 32768))
                for b in range(4):
                    t_ = I("buffer_load_dwordx4", A(32, 4), vW4[b], sWO, sSO, mods=f"offen offset:{b*BLK}"); t_.wr = set()
                    e(t_)
    def Lq(i):
        if i >= 16: return
        if i >= 2: e(WAIT(vm=kvwin))
        for hf_ in range(2):
            e(I("s_mov_b32", sSO, (i >> 1) * 16384 + hf_ * 4096 + (OOB if "nokv" in exp else 0)))
            for m in range(4):
                e(I("buffer_load_dwordx4", RB[i % NRB].sub((hf_ * 4 + m) * 4, 4), hG, sV if i & 1 else sK, sSO,
                    mods=mods(f"offen offset:{m*1024}", kv_mods)))
    def Wr(i):
        if i == 0: poll(h23, "fwq", hP, F_DONEF, 4, 1000)
        if i >= 9: poll(h23, f"fwk{i}", hP, F_DONEKV, 6, i - 8, sleep=slp)
        e(I("v_add_u32", hDst, (i % NSLOT) * TILE, hD))
        for m in range(8):
            e(I("ds_write_b128", hDst, RB[i % NRB].sub(m * 4, 4), mods=f"offset:{(m & 1) * 4 * BLK + (m >> 1) * 256}"))
        e(I("v_mov_b32", hVal, i + 1)); e(I("ds_write_b32", hSYw, hVal))
    if ipf:
        e(RAW("    s_getpc_b64 s[4:5]")); e(LABEL(L("pc")))
        e(RAW(f"    s_sub_u32 s64, s4, {L('pc')}-{L('start')}")); e(RAW("    s_subb_u32 s65, s5, 0"))
        e(RAW(f"    s_mov_b32 s66, {L('codeend')}-{L('start')}")); e(RAW("    s_mov_b32 s67, 0x20000"))
        e(I("s_lshr_b32", sT1, S(2), 3)); e(I("s_lshl_b32", sT1, sT1, 1)); e(I("s_add_u32", sT1, sT1, sLW)); e(I("s_lshl_b32", sT1, sT1, 10))
        e(I("v_lshlrev_b32", hT0, 4, vLane))
        t_ = I("buffer_load_dwordx4", A(32, 4), hT0, sWO, sT1, mods="offen"); t_.wr = set()
        e(t_)
    STAMP(h23, 0)
    e(I("s_barrier"))
    if "fonly" in exp: e(I("s_endpgm"))
    if kvlate: e(I("s_sleep", kvlate))
    e(I("v_and_b32", hT0, 15, vLane)); e(I("v_lshlrev_b32", hT0, 4, hT0))
    e(I("v_lshrrev_b32", hT1, 4, vLane)); e(I("v_mul_u32_u24", hT1, BLK, hT1)); e(I("v_add_u32", hD, hT0, hT1))
    e(I("s_mul_i32", sT0, sLW, 8 * BLK)); e(I("v_add_u32", hD, sT0, hD))
    e(I("s_lshl_b32", sT0, sLW, 2)); e(I("s_add_u32", sT0, sT0, SY + F_RDYKV)); e(I("v_mov_b32", hSYw, sT0))
    tail_srds(e)
    e(I("s_lshl_b32", sT0, sKG, 20)); e(I("s_lshl_b32", sT1, sNG, 7)); e(I("s_add_u32", sT0, sT0, sT1))
    srd(e, sWO, pWO, sT0, (4194304, sT0))
    srd(e, sCN, pDBG, 0, 256)
    e(I("s_xor_b32", sT0, sLW, 1)); e(I("s_or_b32", sT0, sT0, sH)); e(I("s_cmp_eq_u32", sT0, 0)); e(I("s_cbranch_scc0", L("nonw")))
    e(I("s_memrealtime", S(4, 2))); e(WAIT(lgkm=0))
    e(I("s_or_b32", sT0, S(4), 1)); e(I("s_lshl_b32", sT1, sB, 5))
    e(I("s_mov_b64", EXEC, 1))
    e(I("v_mov_b32", hP[0], sT0)); e(I("v_mov_b32", hT0, sT1))
    stn = I("buffer_store_dword", hP[0], hT0, sCN, 0, mods="offen sc1"); stn.nocount = True
    e(stn)
    e(I("s_mov_b64", EXEC, -1))
    e(LABEL(L("nonw")))
    STAMP(h23, 1)
    if kvearly: poll(h23, "kvres", hP, F_FISS, 1, 1, sleep=2)
    else: poll(h23, "kvres", hP, F_RDYF, 2, kvres, sleep=2)
    STAMP(h23, 2)
    if not look:
        for i in range(kv0): Lq(i)
        Wr(0); Wr(1)
        for i in range(kv0, 9):
            Lq(i)
            if i == kv0 + 1: Wr(2)
        Lq(9)
        for i in range(3, 16):
            Wr(i); Lq(i + 7)
    else:
        for i in range(16):
            if i >= look:
                assert look >= 5
                poll(h23, f"thr{i}", hP, F_DONEKV, 4, i - look + 1, sleep=2)
            Lq(i)
            if i == etail: early_tail()
            if i >= kv0 - 1:
                while nwr[0] <= i - 2: Wr(nwr[0]); nwr[0] += 1
        while nwr[0] < 16: Wr(nwr[0]); nwr[0] += 1
    if not look: early_tail()
    STAMP(h23, 3); TSTAMP(h23, 1)
    vW = vW4
    e(I("s_lshl_b32", sT0, sLW, 2)); e(I("s_add_u32", sT0, sT0, SY + F_RDYWO)); e(I("v_mov_b32", hSYw, sT0))
    for i in range(4):
        e(I("s_cmp_eq_u32", sLW, 0))
        e(I("s_cselect_b32", sNEED, WNEED[2 * i], WNEED[2 * i + 1]))
        e(I("s_cselect_b32", sT2, WSLOT[2 * i], WSLOT[2 * i + 1])); e(I("s_mul_i32", sM0, sT2, TILE))
        if i:
            e(WAIT(vm=0)); e(I("v_mov_b32", hVal, i)); e(I("ds_write_b32", hSYw, hVal))
        poll(h23, f"wf{i}", hP, F_DONEKV, 6, sNEED, sleep=slp if i < 3 else 1)
        e(I("s_add_u32", sT1, sNG, sLW)); e(I("s_add_u32", sT1, sT1, 2 * i)); e(I("s_and_b32", sT1, sT1, 7)); e(I("s_lshl_b32", sT1, sT1, 17))
        for kk in range(4):
            e(I("s_add_u32", M0, sM0, kk * 4 * BLK))
            e(I("s_add_u32", sSO, sT1, kk * 32768))
            for b in range(4):
                e(I("buffer_load_dwordx4", vW[b], sWO, sSO, mods=mods(f"offen offset:{b*BLK}", wo_mods, "lds")))
    e(WAIT(vm=0)); e(I("v_mov_b32", hVal, 4)); e(I("ds_write_b32", hSYw, hVal))
    STAMP(h23, 4); TSTAMP(h23, 2)
    h3 = []; e = h3.append
    e(LABEL(L("h_p3")))
    hWr, hOo, hF = V(2), V(3), V(8)
    hACC = [V(24 + 4 * T, 4) for T in range(4)]
    hOF = [[V(40 + (x * 4 + kk) * 4, 4) for kk in range(4)] for x in range(2)]
    hWF = [V(72 + 4 * i, 4) for i in range(16)]
    wo_rd_addr(e, hWr, hT0, hT1)
    e(I("v_lshlrev_b32", hOo, 4, vLane))
    for x in range(2):
        e(I("s_lshl_b32", sT0, sHW, 1)); e(I("s_add_u32", sT0, sT0, x))
        if x == 0: poll(h3, "hown", hF, F_CNT1, 1, 6)
        poll(h3, f"ho{x}", hF, F_RDYO, 1, sT0)
        if x == 0: STAMP(h3, 5); TSTAMP(h3, 3)
        e(I("s_add_u32", sT1, sNG, sT0)); e(I("s_and_b32", sT1, sT1, 7))
        e(I("s_lshl_b32", sT1, sT1, 12)); e(I("s_add_u32", sSO, sT1, 12 * 131072))
        for kk in range(4):
            e(I("buffer_load_dwordx4", hOF[x][kk], hOo, sOa, sSO, mods=f"offen offset:{kk*1024}"))
    for x in range(2):
        e(I("s_add_u32", sT2, sHW, 1))
        poll(h3, f"hwo{x}", hF, F_RDYWO + 4 * x, 1, sT2)
        e(I("s_lshl_b32", sT0, sHW, 1)); e(I("s_add_u32", sT0, sT0, x + 7))
        e(I("s_cmp_ge_u32", sT0, 9)); e(I("s_cselect_b32", sT1, 9, 0)); e(I("s_sub_u32", sT0, sT0, sT1))
        e(I("s_mul_i32", sT0, sT0, TILE)); e(I("v_add_u32", hT0, sT0, hWr))
        for kk in range(4):
            for T in range(4):
                for hh in range(2):
                    e(I("ds_read_b64_tr_b16", hWF[kk * 4 + T].sub(2 * hh, 2), hT0, mods=f"offset:{kk*4*BLK + T*32 + hh*512}"))
        for kk in range(4):
            for T in range(4):
                e(I(MFMA, hACC[T], hWF[kk * 4 + T], hOF[x][kk], 0 if (x == 0 and kk == 0) else hACC[T]))
    e(I("s_lshl_b32", sT0, sHW, 12)); e(I("s_add_u32", sT0, sT0, RED)); e(I("v_add_u32", hT0, sT0, hOo))
    for T in range(4): e(I("ds_write_b128", hT0, hACC[T], mods=f"offset:{T*1024}"))
    e(I("v_mov_b32", hT1, 1)); e(I("s_mov_b64", EXEC, 1))
    e(I("ds_add_u32", vSY, hT1, mods=f"offset:{F_CNT3}")); e(I("s_mov_b64", EXEC, -1))
    poll(h3, "hred", hF, F_CNT3, 1, 4, sleep=0)
    e(I("s_lshl_b32", sT0, sHW, 10)); e(I("s_add_u32", sT0, sT0, RED)); e(I("v_add_u32", hT0, sT0, hOo))
    for s in range(4): e(I("ds_read_b128", hWF[s], hT0, mods=f"offset:{s*4096}"))
    for r in range(4):
        e(I("v_add_f32", hWF[0][r], hWF[0][r], hWF[1][r])); e(I("v_add_f32", hWF[2][r], hWF[2][r], hWF[3][r]))
    for r in range(4): e(I("v_add_f32", hWF[0][r], hWF[0][r], hWF[2][r]))
    e(I("s_mul_i32", sT0, sKG, 53248)); e(I("s_lshl_b32", sT1, sHW, 10)); e(I("s_add_u32", sT0, sT0, sT1)); e(I("s_add_u32", sT0, sT0, 49152))
    e(I("buffer_store_dwordx4", hWF[0], hOo, sP, sT0, mods="offen sc1"))
    e(I("s_lshl_b32", sT0, sKG, 2)); e(I("s_add_u32", sT2, sT0, sL2))
    TSTAMP(h3, 4)
    arrive(h3, "h2", hT0, hT1, F_CNT2, 8, sT2)
    TSTAMP(h3, 5)
    e(I("s_cmp_eq_u32", sHW, 3)); e(I("s_cbranch_scc0", L("nowatch")))
    poll(h3, "wn2", hT2, F_NONCE, 1, 1)
    e(I("v_lshlrev_b32", hT1, 2, vLane)); e(I("v_add_u32", hT1, sL2, hT1))
    e(I("s_mov_b64", EXEC, 15))
    e(LABEL(L("w2")))
    e(I("buffer_load_dword", hT0, hT1, sFL, 0, mods="offen sc1")); e(WAIT(vm=0))
    e(I("v_cmp_ne_u32", VCC, hT0, hT2))
    e(I("s_cbranch_vccz", L("w2ok")))
    h3.extend(spin_tail(L("w2"), 2))
    e(LABEL(L("w2ok")))
    e(I("s_mov_b64", EXEC, -1))
    e(I("v_mov_b32", hT0, 1)); e(I("ds_write_b32", vSY, hT0, mods=f"offset:{F_GO}"))
    e(LABEL(L("nowatch")))
    final_part(h3, "h", hT0, hT1, V(72, 32))
    fin = [LABEL(L("end")), I("s_endpgm")]

    paths = [pre + cq + cqb + cqb + cv + body + body + ce1 + ceA + ce, body + ce1 + ceB + ce,
             rare[0], rare[1],
             pre + hp + h01a + fs[0] + h01 + hb + hb + hf + hf2 + h3, h01a + fs[1] + h01,
             hb + hf[:3] + hf1 + hf2,
             pre + hp + h23 + h3,
             hb + hr] + spins
    apply_waits(paths)
    if mw:
        for sq in ([body] if mw == 1 else [body, cqb, ce]): merge_waits(sq)
    apply_hazards(paths)
    order = [pre, cq, cqb, cv, body, ce1, ceA, ceB, ce, hp, h01a, fs[0], fs[1], h01, hb, hf, hf1, hf2, h23, h3, fin, hr, rare[0], rare[1]] + spins
    txt = "\n".join(render(x) for x in order) + f"\n{L('codeend')}:"
    return txt, dict(vgpr=256, sgpr=102, accum=216)
```

```python
import re

class Reg:
    __slots__ = ("k", "i", "n")
    def __init__(self, k, i, n=1):
        self.k, self.i, self.n = k, i, n
    def __str__(self):
        if self.k in ("vcc", "exec", "m0", "scc"):
            return self.k
        return f"{self.k}{self.i}" if self.n == 1 else f"{self.k}[{self.i}:{self.i+self.n-1}]"
    def units(self):
        if self.k in ("vcc", "exec", "m0", "scc"):
            return {(self.k, 0)}
        return {(self.k, self.i + j) for j in range(self.n)}
    def sub(self, off, n=1):
        assert off + n <= self.n, (str(self), off, n)
        return Reg(self.k, self.i + off, n)
    def __getitem__(self, j):
        return self.sub(j, 1)

def V(i, n=1): return Reg("v", i, n)
def A(i, n=1): return Reg("a", i, n)
def S(i, n=1): return Reg("s", i, n)
VCC = Reg("vcc", 0); EXEC = Reg("exec", 0); M0 = Reg("m0", 0)

TRANS = ("v_exp_f32", "v_log_f32", "v_rcp_f32", "v_rsq_f32", "v_sqrt_f32", "v_sin_f32", "v_cos_f32")

class Ins:
    def __init__(self, op, ops=(), mods="", raw=None, comment=None):
        self.op, self.ops, self.mods, self.raw, self.comment = op, list(ops), mods, raw, comment
        self.rd, self.wr = set(), set()
        self.cls = None
        self.pre_wait = {}
        self.pre_nop = 0
        self.classify()
    def regs(self, lst):
        s = set()
        for o in lst:
            if isinstance(o, Reg):
                s |= o.units()
        return s
    def classify(self):
        op, ops = self.op, self.ops
        if self.raw is not None:
            self.cls = "raw"; return
        if op.startswith("v_mfma"):
            self.cls = "mfma"; self.wr = self.regs(ops[:1]); self.rd = self.regs(ops[1:])
            self.rdC = self.regs(ops[3:4]); self.rdAB = self.regs(ops[1:3])
        elif op in ("v_swap_b32", "v_permlane32_swap_b32", "v_permlane16_swap_b32"):
            self.cls = "valu"; self.wr = self.regs(ops); self.rd = self.regs(ops)
        elif op.startswith("v_cmp"):
            self.cls = "valu"; self.wr = self.regs(ops[:1]); self.rd = self.regs(ops[1:])
        elif op in ("v_readfirstlane_b32", "v_readlane_b32"):
            self.cls = "valu"; self.wr = self.regs(ops[:1]); self.rd = self.regs(ops[1:])
        elif op.startswith("v_"):
            self.cls = "valu"; self.wr = self.regs(ops[:1]); self.rd = self.regs(ops[1:])
            if op.startswith("v_fmac") or op.startswith("v_dot2c"):
                self.rd |= self.wr
            if op == "v_cndmask_b32" and len(ops) == 3:
                self.rd |= VCC.units()
        elif op.startswith("ds_read") or op.startswith("ds_bpermute") or op.startswith("ds_swizzle") or "_rtn_" in op:
            self.cls = "ldsrd"; self.wr = self.regs(ops[:1]); self.rd = self.regs(ops[1:])
        elif op.startswith("ds_write") or op.startswith("ds_add"):
            self.cls = "ldswr"; self.rd = self.regs(ops)
        elif op.startswith("buffer_load") and "lds" in self.mods.split():
            self.cls = "dma"; self.rd = self.regs(ops) | M0.units()
        elif op.startswith("buffer_load") or op.startswith("global_load"):
            self.cls = "vmld"; self.wr = self.regs(ops[:1]); self.rd = self.regs(ops[1:])
        elif op.startswith("buffer_store") or op.startswith("global_store"):
            self.cls = "vmst"; self.rd = self.regs(ops)
            self.wide = op.endswith("x4") or op.endswith("x3")
            self.data = self.regs(ops[:1]) if op.startswith("buffer") else self.regs(ops[1:2])
        elif op.startswith("buffer_atomic") or op.startswith("global_atomic"):
            self.cls = "vmst"; self.rd = self.regs(ops); self.wide = False; self.data = set()
            if "sc0" in self.mods.split():
                self.cls = "vmld"; self.wr = self.regs(ops[:1])
        elif op in ("buffer_wbl2", "buffer_inv"):
            self.cls = "vmst"; self.wide = False; self.data = set()
        elif op.startswith("s_load") or op.startswith("s_memtime") or op.startswith("s_memrealtime"):
            self.cls = "smem"; self.wr = self.regs(ops[:1]); self.rd = self.regs(ops[1:])
        elif op == "s_waitcnt":
            self.cls = "wait"
        elif op == "s_nop":
            self.cls = "nop"
        elif op in ("s_barrier", "s_endpgm", "s_setprio", "s_sleep"):
            self.cls = "salu"
        elif op.startswith("s_cbranch") or op == "s_branch":
            self.cls = "branch"
            if "vcc" in op: self.rd = VCC.units()
        elif op.startswith("s_cmp") or op.startswith("s_bitcmp"):
            self.cls = "salu"; self.rd = self.regs(ops)
        elif op.startswith("s_"):
            self.cls = "salu"; self.wr = self.regs(ops[:1]); self.rd = self.regs(ops[1:])
        else:
            raise ValueError("unknown op " + op)
    def text(self):
        if self.raw is not None:
            return self.raw
        t = self.op
        if self.ops:
            t += " " + ", ".join(fmt(o) for o in self.ops)
        if self.mods:
            t += " " + self.mods
        if self.comment:
            t += "    ; " + self.comment
        return "    " + t
    def waitvals(self):
        d = {}
        for m in re.finditer(r"(vmcnt|lgkmcnt)\((\d+)\)", self.mods):
            d[m.group(1)] = int(m.group(2))
        return d
    def states(self):
        if self.cls == "nop": return int(self.ops[0]) + 1
        if self.cls == "raw": return 0
        return 1

def fmt(o):
    if isinstance(o, Reg): return str(o)
    if isinstance(o, int):
        return str(o) if -16 <= o <= 64 else hex(o & 0xffffffff)
    return str(o)

def I(op, *ops, mods="", c=None): return Ins(op, ops, mods, comment=c)
def LABEL(name): return Ins("label", raw=f"{name}:")
def RAW(t): return Ins("raw", raw=t)
def WAIT(vm=None, lgkm=None):
    m = []
    if vm is not None: m.append(f"vmcnt({vm})")
    if lgkm is not None: m.append(f"lgkmcnt({lgkm})")
    return Ins("s_waitcnt", (), " ".join(m))

def auto_waits(paths):
    need = {}
    for seq in paths:
        for cname, cnt_classes, ld_class, cap in (("lgkmcnt", ("ldsrd", "ldswr"), "ldsrd", 15),
                                                   ("vmcnt", ("vmld", "vmst", "dma"), "vmld", 63)):
            issued = 0
            done = 0
            pend = {}
            for ins in seq:
                if ins.cls == "wait":
                    w = ins.waitvals()
                    if cname in w: done = max(done, issued - w[cname])
                    continue
                if ins.cls == "smem" and cname == "lgkmcnt":
                    continue
                dep = -1
                for u in (ins.rd | ins.wr):
                    if u in pend: dep = max(dep, pend[u])
                if dep >= done:
                    n = min(issued - 1 - dep, cap)
                    k = (id(ins), cname)
                    need[k] = min(need.get(k, 99), n)
                    done = max(done, issued - n)
                elif (id(ins), cname) in need:
                    done = max(done, issued - need[(id(ins), cname)])
                if ins.cls in cnt_classes and not getattr(ins, "nocount", False):
                    if ins.cls == ld_class:
                        for u in ins.wr: pend[u] = issued
                    issued += 1
    return need

def apply_waits(paths):
    objs = {}
    for seq in paths:
        for ins in seq: objs[id(ins)] = ins
    need = auto_waits(paths)
    for (i, cname), n in need.items():
        objs[i].pre_wait[cname] = n

MFMA_PASSES = {"v_mfma_f32_16x16x32_bf16": 4, "v_mfma_f32_16x16x16_bf16": 4, "v_mfma_f32_32x32x16_bf16": 8}

def hazard_need(p, c):
    n = 0
    vreg = lambda s: {u for u in s if u[0] in ("v", "a")}
    if p.cls == "mfma":
        ps = MFMA_PASSES[p.op]
        big = {4: 8, 8: 12}[ps]; ovl = {4: 6, 8: 10}[ps]; war = {4: 3, 8: 7}[ps]
        if c.cls == "mfma":
            if p.wr & c.rdAB: n = max(n, big)
            if p.wr & c.rdC:
                if not (p.wr == c.rdC and MFMA_PASSES[c.op] == ps): n = max(n, ovl)
            if (p.wr & c.wr) and not (p.wr & c.rdC): n = max(n, ovl)
        elif c.cls in ("valu", "ldsrd", "ldswr", "vmld", "vmst", "dma"):
            if p.wr & (c.rd | c.wr): n = max(n, big)
            if c.cls == "valu" and (p.rdC & c.wr): n = max(n, war)
    if p.cls == "valu":
        if c.cls == "mfma" and (vreg(p.wr) & c.rd): n = max(n, 2)
        if p.op in TRANS and c.cls == "valu" and c.op not in TRANS and (p.wr & c.rd): n = max(n, 1)
        if p.op in TRANS and c.cls == "valu" and (p.wr & c.rd): n = max(n, 1)
        if c.op.startswith("v_permlane") and (vreg(p.wr) & c.rd): n = max(n, 2)
        if c.op in ("v_readfirstlane_b32", "v_readlane_b32") and (vreg(p.wr) & c.rd): n = max(n, 1)
        sw = {u for u in p.wr if u[0] in ("s", "vcc")}
        if sw:
            if c.cls == "valu" and (sw & c.rd): n = max(n, 2)
            if c.cls in ("vmld", "vmst", "dma") and (sw & c.rd): n = max(n, 5)
            if c.cls == "salu" and (sw & c.rd): n = max(n, 1)
        if "dpp" in c.mods or "row_" in c.mods or "quad_perm" in c.mods:
            if vreg(p.wr) & c.rd: n = max(n, 2)
    if p.cls == "vmst" and getattr(p, "wide", False):
        if p.data & c.wr: n = max(n, 2)
    if p.cls == "salu" and ("m0", 0) in p.wr and c.cls == "dma": n = max(n, 1)
    if p.cls == "salu" and ("exec", 0) in p.wr and c.cls in ("mfma",): n = max(n, 1)
    return n

def apply_hazards(paths, window=24):
    changed = True
    while changed:
        changed = False
        for seq in paths:
            for j, c in enumerate(seq):
                if c.cls in ("raw", "wait", "nop"): continue
                dist = c.pre_nop + (1 if c.pre_wait else 0)
                for i in range(j - 1, max(-1, j - window), -1):
                    p = seq[i]
                    n = hazard_need(p, c)
                    if n > dist:
                        c.pre_nop += n - dist
                        dist = n
                        changed = True
                    dist += p.states() + p.pre_nop + (1 if p.pre_wait else 0)
                    if dist >= 20: break

def render(seq):
    out = []
    for ins in seq:
        if ins.pre_wait:
            out.append("    s_waitcnt " + " ".join(f"{k}({v})" for k, v in sorted(ins.pre_wait.items(), reverse=True)))
        n = ins.pre_nop
        while n > 0:
            k = min(n, 16)
            out.append(f"    s_nop {k-1}")
            n -= k
        out.append(ins.text())
    return "\n".join(out)

def interleave(mfmas, fillers, cap=2.0, start=0):
    out = []
    q = list(fillers)
    for g, m in enumerate(mfmas):
        out.append(m)
        room = cap
        while q and g >= start:
            ins, cost, early = q[0]
            if early > g or cost > room + 1e-9:
                break
            out.extend(ins if isinstance(ins, list) else [ins])
            room -= cost
            q.pop(0)
    for ins, cost, early in q:
        out.extend(ins if isinstance(ins, list) else [ins])
    return out

def merge_waits(seq, minleft=1):
    idx = [i for i, x in enumerate(seq) if "lgkmcnt" in x.pre_wait]
    k = 0
    while k + 1 < len(idx):
        i, j = idx[k], idx[k + 1]
        between = seq[i:j]
        if any(x.cls in ("raw", "branch", "wait") for x in between) or seq[j].cls != "mfma" or seq[i].cls != "mfma":
            k += 1; continue
        n = sum(1 for x in between if x.cls in ("ldsrd", "ldswr"))
        need = seq[j].pre_wait["lgkmcnt"] - n
        if need >= minleft:
            seq[i].pre_wait["lgkmcnt"] = min(seq[i].pre_wait["lgkmcnt"], need)
            del seq[j].pre_wait["lgkmcnt"]
            k += 2
        else:
            k += 1
```
